```python
import torch

def _softmax(x, axis=-1):
    return torch.softmax(x, dim=axis)
def _gelu(x):
    return torch.nn.functional.gelu(x, approximate="tanh")
def _silu(x):
    return torch.nn.functional.silu(x)
def _sigmoid(x):
    return torch.sigmoid(x)
def _layernorm(x, axis=-1, eps=1e-5):
    m = x.mean(dim=axis, keepdim=True)
    v = x.var(dim=axis, keepdim=True, unbiased=False)
    return (x - m) / torch.sqrt(v + eps)
def _scatter_add(tgt, idx, src, axis=0):
    return tgt.clone().index_add_(axis, idx, src)
def _segment_sum(src, seg, n):
    out = torch.zeros((n,) + src.shape[1:], dtype=src.dtype)
    return out.index_add_(0, seg, src)
def _pad(x, pw):
    flat = tuple(v for pair in reversed(pw) for v in pair)
    return torch.nn.functional.pad(x, flat)

kernel_name = 'gated_mix__mha_block_cached__gqa_block_cached__decode'

def setup_inputs():

    _w = (lambda a: (lambda t: t.to(torch.bfloat16) if t.is_floating_point() else t)(torch.as_tensor(a)))
    def _A_setup():
        B, Sq, D = 4, 1, 512
        H, Sk, Dh = 32, 8192, 128
        return {
            "x": _w((lambda *s: torch.randn(*s, dtype=torch.bfloat16) * 0.05)(B, Sq, D)),
            "k_cache": _w((lambda *s: torch.randn(*s, dtype=torch.bfloat16) * 6.4)(B, H, Sk, Dh)),
            "v_cache": _w((lambda *s: torch.randn(*s, dtype=torch.bfloat16) * 0.05)(B, H, Sk, Dh)),
            "wq": _w((lambda *s: torch.randn(*s, dtype=torch.bfloat16) * 6.4)(D, H * Dh) * (D ** -0.5)),
            "wo": _w((lambda *s: torch.randn(*s, dtype=torch.bfloat16) * 0.05)(H * Dh, D) * ((H * Dh) ** -0.5)),
        }
    _A_in = _A_setup()

    def _B_setup():
        B, Sq, D = 4, 1, 512
        Hq, Hkv, Sk, Dh = 32, 8, 8192, 128
        assert Hq % Hkv == 0, (Hq, Hkv)
        return {
            "x": _w((lambda *s: torch.randn(*s, dtype=torch.bfloat16) * 0.05)(B, Sq, D)),
            "k_cache": _w((lambda *s: torch.randn(*s, dtype=torch.bfloat16) * 6.4)(B, Hkv, Sk, Dh)),
            "v_cache": _w((lambda *s: torch.randn(*s, dtype=torch.bfloat16) * 0.05)(B, Hkv, Sk, Dh)),
            "wq": _w((lambda *s: torch.randn(*s, dtype=torch.bfloat16) * 6.4)(D, Hq * Dh) * (D ** -0.5)),
            "wo": _w((lambda *s: torch.randn(*s, dtype=torch.bfloat16) * 0.05)(Hq * Dh, D) * ((Hq * Dh) ** -0.5)),
        }
    _B_in = _B_setup()

    return {
        "A_x": _A_in["x"],
        "A_k_cache": _A_in["k_cache"],
        "A_v_cache": _A_in["v_cache"],
        "A_wq": _A_in["wq"],
        "A_wo": _A_in["wo"],
        "B_x": _B_in["x"],
        "B_k_cache": _B_in["k_cache"],
        "B_v_cache": _B_in["v_cache"],
        "B_wq": _B_in["wq"],
        "B_wo": _B_in["wo"],
        "gate_w": _w((lambda *s: torch.randn(*s, dtype=torch.bfloat16) * 0.1)(512) * 16.0),
    }

def reference(A_x, A_k_cache, A_v_cache, A_wq, A_wo, B_x, B_k_cache, B_v_cache, B_wq, B_wo, gate_w):
    def _A_ref(x, k_cache, v_cache, wq, wo):
        B, Sq, D = x.shape
        H, Dh = 32, 128
        q = (lambda x, *d: x.permute(*d))((x @ wq).reshape(B, Sq, H, Dh), 0, 2, 1, 3)
        scores = torch.einsum("bhqd,bhkd->bhqk", q, k_cache) * (Dh ** -0.5)
        p = _softmax(scores, axis=-1)
        o = torch.einsum("bhqk,bhkd->bhqd", p, v_cache)
        return (lambda x, *d: x.permute(*d))(o, 0, 2, 1, 3).reshape(B, Sq, H * Dh) @ wo

    def _B_ref(x, k_cache, v_cache, wq, wo):
        B, Sq, D = x.shape
        Hq, Dh = 32, 128
        Hkv = k_cache.shape[1]
        rep = Hq // Hkv
        q = (lambda x, *d: x.permute(*d))((x @ wq).reshape(B, Sq, Hq, Dh), 0, 2, 1, 3)
        k = (lambda x, n, axis: torch.repeat_interleave(x, n, dim=axis))(k_cache, rep, axis=1)
        v = (lambda x, n, axis: torch.repeat_interleave(x, n, dim=axis))(v_cache, rep, axis=1)
        scores = torch.einsum("bhqd,bhkd->bhqk", q, k) * (Dh ** -0.5)
        p = _softmax(scores, axis=-1)
        o = torch.einsum("bhqk,bhkd->bhqd", p, v)
        return (lambda x, *d: x.permute(*d))(o, 0, 2, 1, 3).reshape(B, Sq, Hq * Dh) @ wo

    x = A_x
    g = _sigmoid((x * gate_w).sum(-1, keepdims=True))
    a = _A_ref(x, A_k_cache, A_v_cache, A_wq, A_wo)
    b = _B_ref(x, B_k_cache, B_v_cache, B_wq, B_wo)
    return g * a + (1 - g) * b
```

```python
import sys

NAME = "gated_mix__mha_block_cached__gqa_block_cached__decode"

QA_G   = 0x000000
QB_G   = 0x100000
GP_G   = 0x200000
YB_G   = 0x300000
YA_G   = 0x400000
GP_ML  = 0x500000
YA_ML  = 0x504000
EPOCH  = 0x508000
DIAG   = 0x510000
WS_USED = 0x520000

L_QA, L_QB = 0, 256
L_SPA, L_SPB = 2048, 10240
L_MLA, L_MLB = 18432, 18944
L_OB, L_RED = 19456, 20480
LDS_BYTES = 22528

SCALE = 0x3db504f3
LOG2E = 0x3fb8aa3b
SEL_LO, SEL_HI = 0x05040100, 0x07060302
TAGINC = 0x9e3779b9
NEG_INF = 0xff800000

class Asm:
    def __init__(self):
        self.L = []
        self.n = 0
    def __call__(self, s):
        self.L.append("  " + s)
    def label(self, s):
        self.L.append(s + ":")
    def uniq(self, p):
        self.n += 1
        return f"{p}_{self.n}"
    def text(self):
        return "\n".join(self.L) + "\n"

def vr(a, n=1):
    return f"v{a}" if n == 1 else f"v[{a}:{a+n-1}]"
def sr(a, n=1):
    return f"s{a}" if n == 1 else f"s[{a}:{a+n-1}]"

P_X, P_AK, P_AV, P_AWQ, P_AWO = 44, 46, 48, 50, 52
P_BK, P_BV, P_BWQ, P_BWO, P_GATE, P_OUT, P_DBG, P_WS = 56, 58, 60, 62, 64, 66, 68, 70

def gen(W=4, D=2, N0=4, diag=False, kvflags="nt", maxpoll=1 << 18, j6depth=2):
    a = Asm()
    NH = 4
    NWAVES = W + NH
    TA = 128 // W
    TB = 32 // W
    assert N0 % D == 0 and TB % D == 0 and (TA - N0) % D == 0
    a.L.append(f"; @launch grid=(256,1,1) block=({64*NWAVES},1,1) lds={LDS_BYTES}")
    a.L.append('.amdgcn_target "amdgcn-amd-amdhsa--gfx950"')
    a.L.append(".text")
    a.L.append(f".globl {NAME}_kernel")
    a.L.append(".p2align 8")
    a.L.append(f".type {NAME}_kernel,@function")
    a.label(f"{NAME}_kernel")
    a("s_cmp_ge_u32 s2, 256")
    a("s_cbranch_scc1 L_end")
    a("s_load_dwordx16 s[44:59], s[0:1], 0")
    a("s_load_dwordx8 s[60:67], s[0:1], 64")
    a("s_load_dwordx4 s[68:71], s[0:1], 96")
    if diag: a("s_memrealtime s[72:73]")
    a("v_lshrrev_b32 v1, 6, v0")
    a("v_and_b32 v0, 63, v0")
    a("v_and_b32 v3, 15, v0")
    a("v_readfirstlane_b32 s3, v1")
    a("v_lshrrev_b32 v2, 4, v0")
    a("s_waitcnt lgkmcnt(0)")
    a(f"s_cmp_ge_u32 s3, {W}")
    a("s_cbranch_scc1 L_H")

    def stamp(idx):
        if not diag: return
        a("s_memrealtime s[74:75]")
        a("s_waitcnt lgkmcnt(0)")
        a(f"v_mov_b32 v254, s74")
        a(f"s_lshl_b32 s76, s2, 3")
        a("s_add_u32 s76, s76, s3")
        a("s_lshl_b32 s76, s76, 6")
        a(f"s_add_u32 s76, s76, {DIAG + idx*4}")
        a("v_mov_b32 v255, s76")
        a("s_mov_b64 s[78:79], exec")
        a("s_mov_b64 exec, 1")
        a(f"global_store_dword v255, v254, s[{P_WS}:{P_WS+1}]")
        a("s_mov_b64 exec, s[78:79]")

    S_KC, S_VC = 8, 12
    S_KA, S_VA, S_KB, S_VB = 16, 18, 20, 22
    S_OFF, S_OFF2, S_IT, S_SEG = 24, 25, 26, 27
    S_SCALE, S_L2E, S_SELLO, S_SELHI, S_MASKHI = 28, 29, 30, 31, 32
    S_M4 = 36
    V_KO, V_VO = 4, 5
    V_P, V_ML, V_QA, V_QB = 6, 7, 8, 9
    V_Q = 12
    V_S = 28
    V_PB = 36
    V_ST = 40
    V_O = 48
    V_M, V_L, V_MN, V_AL, V_MLG = 80, 81, 82, 83, 84
    V_T = 86
    V_RING = 96
    def KR(d): return V_RING + 64 * d
    def VR(d): return V_RING + 64 * d + 32
    fl = (" " + kvflags) if kvflags else ""

    a(f"; ---------------- S waves ----------------")
    a("s_and_b32 s4, s2, 127")
    a("s_lshl_b32 s4, s4, 21")
    a("s_lshr_b32 s5, s2, 7")
    a("s_lshl_b32 s5, s5, 20")
    a("s_add_u32 s4, s4, s5")
    a("s_lshl_b32 s5, s2, 18")
    for (dst, p, o) in ((S_KA, P_AK, 4), (S_VA, P_AV, 4), (S_KB, P_BK, 5), (S_VB, P_BV, 5)):
        a(f"s_add_u32 s{dst}, s{p}, s{o}")
        a(f"s_addc_u32 s{dst+1}, s{p+1}, 0")
        a(f"s_and_b32 s{dst+1}, s{dst+1}, 0xffff")
    a(f"s_mov_b32 s{S_KC+3}, 0x20000")
    a(f"s_mov_b32 s{S_VC+3}, 0x20000")
    def set_issue(kb, vb, size, tile0):
        a(f"s_mov_b32 s{S_KC}, s{kb}")
        a(f"s_mov_b32 s{S_KC+1}, s{kb+1}")
        a(f"s_mov_b32 s{S_KC+2}, {size}")
        a(f"s_mov_b32 s{S_VC}, s{vb}")
        a(f"s_mov_b32 s{S_VC+1}, s{vb+1}")
        a(f"s_mov_b32 s{S_VC+2}, {size}")
        a(f"s_lshl_b32 s{S_OFF}, s3, 13")
        if tile0: a(f"s_add_u32 s{S_OFF}, s{S_OFF}, {tile0 * W * 8192}")
        a(f"s_add_u32 s{S_OFF2}, s{S_OFF}, 4096")
    set_issue(S_KA, S_VA, 1 << 20, 0)
    a(f"v_lshlrev_b32 v{V_KO}, 8, v3")
    a(f"v_lshl_add_u32 v{V_KO}, v2, 4, v{V_KO}")
    a(f"v_lshlrev_b32 v{V_VO}, 10, v2")
    a(f"v_lshl_add_u32 v{V_VO}, v3, 4, v{V_VO}")
    def issueK(d):
        for t in range(8):
            so = S_OFF if t < 4 else S_OFF2
            r = KR(d) + 4 * t
            a(f"buffer_load_dwordx4 v[{r}:{r+3}], v{V_KO}, s[{S_KC}:{S_KC+3}], s{so} offen offset:{(t%4)*64}{fl}")
    def issueV(d):
        for t in range(8):
            so = S_OFF if t < 4 else S_OFF2
            r = VR(d) + 4 * t
            a(f"buffer_load_dwordx4 v[{r}:{r+3}], v{V_VO}, s[{S_VC}:{S_VC+3}], s{so} offen offset:{(t%4)*256}{fl}")
    def advance():
        a(f"s_add_u32 s{S_OFF}, s{S_OFF}, {W*8192}")
        a(f"s_add_u32 s{S_OFF2}, s{S_OFF2}, {W*8192}")
    for d in range(D):
        issueK(d); issueV(d); advance()
    a(f"s_mov_b32 s{S_SCALE}, {SCALE:#x}")
    a(f"s_mov_b32 s{S_L2E}, {LOG2E:#x}")
    a(f"s_mov_b32 s{S_SELLO}, {SEL_LO:#x}")
    a(f"s_mov_b32 s{S_SELHI}, {SEL_HI:#x}")
    a(f"s_mov_b32 s{S_MASKHI}, 0xffff0000")
    a(f"s_mov_b32 s{S_M4}, 0x000f000f")
    a(f"s_mov_b32 s{S_M4+1}, 0x000f000f")
    a(f"v_and_b32 v10, 3, v3")
    a(f"s_lshl_b32 s4, s3, 11")
    a(f"v_lshlrev_b32 v{V_P}, 9, v10")
    a(f"v_lshl_add_u32 v{V_P}, v2, 4, v{V_P}")
    a(f"v_add_u32 v{V_P}, s4, v{V_P}")
    a(f"s_lshl_b32 s4, s3, 7")
    a(f"v_lshlrev_b32 v{V_ML}, 5, v10")
    a(f"v_lshl_add_u32 v{V_ML}, v2, 2, v{V_ML}")
    a(f"v_add_u32 v{V_ML}, s4, v{V_ML}")
    a(f"v_lshlrev_b32 v{V_QA}, 4, v2")
    a(f"v_lshl_add_u32 v{V_QB}, v10, 8, v{V_QA}")
    def init_state():
        for i in range(32): a(f"v_mov_b32 v{V_O+i}, 0")
        a(f"v_mov_b32 v{V_M}, {NEG_INF:#x}")
        a(f"v_mov_b32 v{V_MLG}, {NEG_INF:#x}")
        a(f"v_mov_b32 v{V_L}, 0")
    def load_q(vaddr, base):
        for s in range(4):
            a(f"ds_read_b128 v[{V_Q+4*s}:{V_Q+4*s+3}], v{vaddr} offset:{base + 64*s}")
    init_state()
    stamp(0)
    a("s_barrier")
    load_q(V_QA, L_QA)
    a(f"s_mov_b32 s{S_SEG}, 0")
    a(f"s_mov_b32 s{S_IT}, {N0 // D}")
    a("s_waitcnt lgkmcnt(0)")
    stamp(1)
    a.label("L_sloop")
    a(f"s_cmp_eq_u32 s{S_IT}, 1")
    a("s_cbranch_scc0 L_noswitch")
    a(f"s_cmp_eq_u32 s{S_SEG}, 0")
    a("s_cbranch_scc0 L_sw1")
    set_issue(S_KB, S_VB, 1 << 18, 0)
    a("s_branch L_noswitch")
    a.label("L_sw1")
    a(f"s_cmp_eq_u32 s{S_SEG}, 1")
    a("s_cbranch_scc0 L_sw2")
    set_issue(S_KA, S_VA, 1 << 20, N0)
    a("s_branch L_noswitch")
    a.label("L_sw2")
    a(f"s_mov_b32 s{S_KC+2}, 0")
    a(f"s_mov_b32 s{S_VC+2}, 0")
    a.label("L_noswitch")
    WAITN = 16 * D - 8
    T = V_T
    for d in range(D):
        a(f"; ---- tile slot {d}")
        a(f"s_waitcnt vmcnt({WAITN})")
        for s in range(4):
            for h in range(2):
                kr = KR(d) + 4 * (4 * h + s)
                c = "0" if s == 0 else f"v[{V_S+4*h}:{V_S+4*h+3}]"
                a(f"v_mfma_f32_16x16x32_bf16 v[{V_S+4*h}:{V_S+4*h+3}], v[{kr}:{kr+3}], v[{V_Q+4*s}:{V_Q+4*s+3}], {c}")
        issueK(d)
        a("s_nop 1")
        S = [V_S + i for i in range(8)]
        for i in range(4): a(f"v_cvt_pk_bf16_f32 v{T+i}, v{S[2*i]}, v{S[2*i+1]}")
        for i in range(4):
            a(f"v_lshlrev_b32 v{S[2*i]}, 16, v{T+i}")
            a(f"v_and_b32 v{S[2*i+1]}, s{S_MASKHI}, v{T+i}")
        for i in range(8): a(f"v_mul_f32 v{S[i]}, s{S_SCALE}, v{S[i]}")
        for i in range(4): a(f"v_cvt_pk_bf16_f32 v{T+i}, v{S[2*i]}, v{S[2*i+1]}")
        for i in range(4):
            a(f"v_lshlrev_b32 v{S[2*i]}, 16, v{T+i}")
            a(f"v_and_b32 v{S[2*i+1]}, s{S_MASKHI}, v{T+i}")
        a(f"v_max3_f32 v{T}, v{S[0]}, v{S[1]}, v{S[2]}")
        a(f"v_max3_f32 v{T+1}, v{S[3]}, v{S[4]}, v{S[5]}")
        a(f"v_max3_f32 v{T}, v{T}, v{S[6]}, v{S[7]}")
        a(f"v_max_f32 v{T}, v{T}, v{T+1}")
        a(f"v_mov_b32 v{T+1}, v{T}")
        a("s_nop 1")
        a(f"v_permlane32_swap_b32 v{T}, v{T+1}")
        a(f"v_max_f32 v{T}, v{T}, v{T+1}")
        a(f"v_mov_b32 v{T+1}, v{T}")
        a("s_nop 1")
        a(f"v_permlane16_swap_b32 v{T}, v{T+1}")
        a(f"v_max_f32 v{T}, v{T}, v{T+1}")
        a(f"v_max_f32 v{V_MN}, v{V_M}, v{T}")
        a(f"v_cmp_gt_f32 vcc, v{V_MN}, v{V_M}")
        lab = a.uniq("L_nors")
        a(f"s_cbranch_vccz {lab}")
        a(f"v_sub_f32 v{T+1}, v{V_M}, v{V_MN}")
        a(f"v_mul_f32 v{T+1}, s{S_L2E}, v{T+1}")
        a(f"v_exp_f32 v{V_AL}, v{T+1}")
        a(f"v_mov_b32 v{V_M}, v{V_MN}")
        a(f"v_mul_f32 v{V_MLG}, s{S_L2E}, v{V_MN}")
        a(f"v_mul_f32 v{V_L}, v{V_L}, v{V_AL}")
        for i in range(32): a(f"v_mul_f32 v{V_O+i}, v{V_O+i}, v{V_AL}")
        a.label(lab)
        for i in range(8): a(f"v_fma_f32 v{S[i]}, v{S[i]}, s{S_L2E}, -v{V_MLG}")
        for i in range(8): a(f"v_exp_f32 v{S[i]}, v{S[i]}")
        a(f"v_add_f32 v{T}, v{S[0]}, v{S[1]}")
        a(f"v_add_f32 v{T+1}, v{S[2]}, v{S[3]}")
        a(f"v_add_f32 v{T+2}, v{S[4]}, v{S[5]}")
        a(f"v_add_f32 v{T+3}, v{S[6]}, v{S[7]}")
        for i in range(4): a(f"v_cvt_pk_bf16_f32 v{V_PB+i}, v{S[2*i]}, v{S[2*i+1]}")
        a(f"v_add_f32 v{T}, v{T}, v{T+1}")
        a(f"v_add_f32 v{T+2}, v{T+2}, v{T+3}")
        a(f"v_add_f32 v{T}, v{T}, v{T+2}")
        a(f"v_add_f32 v{V_L}, v{V_L}, v{T}")
        a(f"s_waitcnt vmcnt({WAITN})")
        def perms(j):
            st = V_ST + 4 * (j & 1)
            r, hh = j >> 1, j & 1
            sel = S_SELHI if hh else S_SELLO
            for u in range(4):
                lo = VR(d) + 4 * (2 * u) + r
                hi = VR(d) + 4 * (2 * u + 1) + r
                a(f"v_perm_b32 v{st+u}, v{hi}, v{lo}, s{sel}")
        def pv(j):
            st = V_ST + 4 * (j & 1)
            a(f"v_mfma_f32_16x16x32_bf16 v[{V_O+4*j}:{V_O+4*j+3}], v[{st}:{st+3}], v[{V_PB}:{V_PB+3}], v[{V_O+4*j}:{V_O+4*j+3}]")
        perms(0); perms(1)
        for j in range(8):
            if j == 7: a("s_nop 0")
            pv(j)
            if j + 2 < 8: perms(j + 2)
        issueV(d)
        advance()
    a(f"s_sub_u32 s{S_IT}, s{S_IT}, 1")
    a(f"s_cmp_lg_u32 s{S_IT}, 0")
    a("s_cbranch_scc1 L_sloop")
    a("s_nop 7")
    a(f"s_cmp_eq_u32 s{S_SEG}, 1")
    a(f"s_cselect_b32 s4, {L_SPB - L_SPA}, 0")
    a(f"s_cselect_b32 s5, {L_MLB - L_MLA}, 0")
    a(f"v_add_u32 v{T}, s4, v{V_P}")
    a(f"v_add_u32 v{T+1}, s5, v{V_ML}")
    a(f"s_mov_b64 exec, s[{S_M4}:{S_M4+1}]")
    for j in range(8):
        a(f"ds_write_b128 v{T}, v[{V_O+4*j}:{V_O+4*j+3}] offset:{L_SPA + 64*j}")
    a(f"ds_write_b32 v{T+1}, v{V_L} offset:{L_MLA}")
    a(f"ds_write_b32 v{T+1}, v{V_M} offset:{L_MLA + 16}")
    a("s_mov_b64 exec, -1")
    a("s_waitcnt lgkmcnt(0)")
    a(f"s_cmp_eq_u32 s{S_SEG}, 0")
    a("s_cbranch_scc0 L_se1")
    stamp(2)
    a("s_barrier")
    load_q(V_QB, L_QB)
    init_state()
    a(f"s_mov_b32 s{S_SEG}, 1")
    a(f"s_mov_b32 s{S_IT}, {TB // D}")
    a("s_waitcnt lgkmcnt(0)")
    a("s_branch L_sloop")
    a.label("L_se1")
    a(f"s_cmp_eq_u32 s{S_SEG}, 1")
    a("s_cbranch_scc0 L_se2")
    stamp(3)
    a("s_barrier")
    load_q(V_QA, L_QA)
    for j in range(8):
        a(f"ds_read_b128 v[{V_O+4*j}:{V_O+4*j+3}], v{V_P} offset:{L_SPA + 64*j}")
    a(f"ds_read_b32 v{V_L}, v{V_ML} offset:{L_MLA}")
    a(f"ds_read_b32 v{V_M}, v{V_ML} offset:{L_MLA + 16}")
    a(f"s_mov_b32 s{S_SEG}, 2")
    a(f"s_mov_b32 s{S_IT}, {(TA - N0) // D}")
    a("s_waitcnt lgkmcnt(0)")
    a(f"v_mul_f32 v{V_MLG}, s{S_L2E}, v{V_M}")
    a("s_branch L_sloop")
    a.label("L_se2")
    stamp(4)
    a("s_barrier")
    a("s_waitcnt vmcnt(0)")
    a("s_endpgm")

    H_WS, H_W, H_X = 8, 12, 16
    H_T, H_HW = 20, 21
    H_G1, H_G2, H_G3 = 22, 24, 26
    H_SELLO, H_SELHI, H_L2E = 28, 29, 30
    H_SO = 31
    H_CNT = 32
    H_MHI = 33
    H_h, H_b, H_i = 34, 35, 36
    VC, VG = 3, 2
    V_L16 = 4
    V_WOFF = 5
    V_A = 6
    VX = 8
    VW = 24
    VST = 88
    VD = 96
    VWB = 128
    VT = 6

    def srd(dst, p, size):
        a(f"s_mov_b32 s{dst}, s{p}")
        a(f"s_and_b32 s{dst+1}, s{p+1}, 0xffff")
        a(f"s_mov_b32 s{dst+2}, {size}")
        a(f"s_mov_b32 s{dst+3}, 0x20000")

    def check_tags_loop(lab, tagregs, tmin, tmax):
        done = a.uniq("L_ok")
        regs = list(tagregs)
        a(f"v_min_u32 v{tmin}, v{regs[0]}, v{regs[1]}")
        a(f"v_max_u32 v{tmax}, v{regs[0]}, v{regs[1]}")
        rest = regs[2:]
        while len(rest) >= 2:
            a(f"v_min3_u32 v{tmin}, v{tmin}, v{rest[0]}, v{rest[1]}")
            a(f"v_max3_u32 v{tmax}, v{tmax}, v{rest[0]}, v{rest[1]}")
            rest = rest[2:]
        if rest:
            a(f"v_min_u32 v{tmin}, v{tmin}, v{rest[0]}")
            a(f"v_max_u32 v{tmax}, v{tmax}, v{rest[0]}")
        a(f"v_xor_b32 v{tmin}, s{H_T}, v{tmin}")
        a(f"v_xor_b32 v{tmax}, s{H_T}, v{tmax}")
        a(f"v_or_b32 v{tmin}, v{tmin}, v{tmax}")
        a(f"v_cmp_ne_u32 vcc, 0, v{tmin}")
        a(f"s_cbranch_vccz {done}")
        a(f"s_sub_u32 s{H_CNT}, s{H_CNT}, 1")
        a(f"s_cmp_eq_u32 s{H_CNT}, 0")
        a(f"s_cbranch_scc1 {done}")
        a("s_sleep 1")
        a(f"s_branch {lab}")
        a.label(done)

    def wt_tile(wbase, areg, first, stage=VST, D_=VD):
        def perms(j):
            st = stage + 4 * (j & 1)
            r, hh = j >> 1, j & 1
            sel = H_SELHI if hh else H_SELLO
            for u in range(4):
                lo = wbase + 4 * (2 * u) + r
                hi = wbase + 4 * (2 * u + 1) + r
                a(f"v_perm_b32 v{st+u}, v{hi}, v{lo}, s{sel}")
        def mm(j):
            st = stage + 4 * (j & 1)
            c = "0" if first else f"v[{D_+4*j}:{D_+4*j+3}]"
            a(f"v_mfma_f32_16x16x32_bf16 v[{D_+4*j}:{D_+4*j+3}], v[{areg}:{areg+3}], v[{st}:{st+3}], {c}")
        perms(0); perms(1)
        for j in range(8):
            if j == 7: a("s_nop 0")
            mm(j)
            if j + 2 < 8: perms(j + 2)

    def select_pair(i, q0, D_=VD):
        a(f"v_cndmask_b32 v{q0}, v{D_+0+i}, v{D_+8+i}, s[{H_G1}:{H_G1+1}]")
        a(f"v_cndmask_b32 v{q0+2}, v{D_+4+i}, v{D_+12+i}, s[{H_G1}:{H_G1+1}]")
        a(f"v_cndmask_b32 v{q0}, v{q0}, v{D_+16+i}, s[{H_G2}:{H_G2+1}]")
        a(f"v_cndmask_b32 v{q0+2}, v{q0+2}, v{D_+20+i}, s[{H_G2}:{H_G2+1}]")
        a(f"v_cndmask_b32 v{q0}, v{q0}, v{D_+24+i}, s[{H_G3}:{H_G3+1}]")
        a(f"v_cndmask_b32 v{q0+2}, v{q0+2}, v{D_+28+i}, s[{H_G3}:{H_G3+1}]")

    a.label("L_H")
    a("; ---------------- H waves ----------------")
    a("s_setprio 2")
    a(f"s_sub_u32 s{H_HW}, s3, {W}")
    srd(H_WS, P_WS, WS_USED)
    srd(H_X, P_X, 4096)
    a(f"v_mov_b32 v{VT}, {EPOCH:#x}")
    a(f"buffer_load_dword v{VT+1}, v{VT}, s[{H_WS}:{H_WS+3}], 0 offen sc1")
    a(f"s_mov_b32 s{H_G1}, 0xffff0000")
    a(f"s_mov_b32 s{H_G1+1}, 0")
    a(f"s_mov_b32 s{H_G2}, 0")
    a(f"s_mov_b32 s{H_G2+1}, 0x0000ffff")
    a(f"s_mov_b32 s{H_G3}, 0")
    a(f"s_mov_b32 s{H_G3+1}, 0xffff0000")
    a(f"s_mov_b32 s{H_SELLO}, {SEL_LO:#x}")
    a(f"s_mov_b32 s{H_SELHI}, {SEL_HI:#x}")
    a(f"s_mov_b32 s{H_L2E}, {LOG2E:#x}")
    a(f"s_mov_b32 s{H_MHI}, 0xffff0000")
    a(f"s_mov_b32 s{H_CNT}, {maxpoll}")
    a(f"s_and_b32 s{H_h}, s2, 31")
    a(f"s_lshr_b32 s{H_b}, s2, 5")
    a(f"s_and_b32 s{H_b}, s{H_b}, 3")
    a(f"s_lshr_b32 s4, s2, 7")
    a(f"s_lshl_b32 s{H_i}, s{H_h}, 1")
    a(f"s_add_u32 s{H_i}, s{H_i}, s4")
    a(f"v_lshlrev_b32 v{V_L16}, 4, v0")
    a(f"s_cmp_ge_u32 s{H_HW}, 2")
    a("s_cbranch_scc1 L_noqp")
    a(f"s_cmp_eq_u32 s{H_HW}, 0")
    a(f"s_cselect_b32 s4, s{P_AWQ}, s{P_BWQ}")
    a(f"s_cselect_b32 s5, s{P_AWQ+1}, s{P_BWQ+1}")
    a(f"s_cselect_b32 s38, {QA_G}, {QB_G}")
    srd(H_W, 4, 4 << 20)
    a(f"s_lshr_b32 s6, s2, 5")
    a(f"v_and_b32 v{VT}, 3, v{VC}")
    a(f"v_lshlrev_b32 v{VT}, 10, v{VT}")
    a(f"v_lshl_add_u32 v{V_A}, v{VG}, 4, v{VT}")
    a(f"s_lshl_b32 s7, s6, 7")
    a(f"buffer_load_dwordx4 v[{VX}:{VX+3}], v{V_A}, s[{H_X}:{H_X+3}], s7 offen")
    a(f"buffer_load_dwordx4 v[{VX+4}:{VX+7}], v{V_A}, s[{H_X}:{H_X+3}], s7 offen offset:64")
    a(f"v_lshlrev_b32 v{V_WOFF}, 16, v{VG}")
    a(f"v_lshl_add_u32 v{V_WOFF}, v{VC}, 4, v{V_WOFF}")
    a(f"s_lshl_b32 s{H_SO}, s6, 19")
    a(f"s_lshl_b32 s7, s{H_h}, 8")
    a(f"s_add_u32 s{H_SO}, s{H_SO}, s7")
    for tau in range(2):
        for t in range(8):
            r = VW + 32 * tau + 4 * t
            a(f"buffer_load_dwordx4 v[{r}:{r+3}], v{V_WOFF}, s[{H_W}:{H_W+3}], s{H_SO} offen nt")
            if not (tau == 1 and t == 7):
                step = 8192 if t < 7 else (32 - 7) * 8192
                a(f"s_add_u32 s{H_SO}, s{H_SO}, {step}")
    a("s_waitcnt vmcnt(8)")
    wt_tile(VW, VX, True)
    a("s_waitcnt vmcnt(0)")
    wt_tile(VW + 32, VX + 4, False)
    a(f"v_readfirstlane_b32 s{H_T}, v{VT+1}")
    a("s_nop 3")
    a(f"s_add_u32 s{H_T}, s{H_T}, {TAGINC:#x}")
    a("s_nop 1")
    for q0 in (VW, VW + 4):
        a(f"v_mov_b32 v{q0+1}, s{H_T}")
        a(f"v_mov_b32 v{q0+3}, s{H_T}")
    a(f"s_lshl_b32 s7, s{H_h}, 3")
    a("s_add_u32 s7, s7, s6")
    a("s_lshl_b32 s7, s7, 12")
    a("s_add_u32 s7, s7, s38")
    for i in range(4):
        q0 = VW + 4 * (i & 1)
        select_pair(i, q0)
        a(f"buffer_store_dwordx4 v[{q0}:{q0+3}], v{V_L16}, s[{H_WS}:{H_WS+3}], s7 offen offset:{i*1024} sc1")
    a("s_branch L_qp_done")
    a.label("L_noqp")
    a("s_waitcnt vmcnt(0)")
    a(f"v_readfirstlane_b32 s{H_T}, v{VT+1}")
    a("s_nop 3")
    a(f"s_add_u32 s{H_T}, s{H_T}, {TAGINC:#x}")
    a.label("L_qp_done")

    def q_gather(base_sreg, ldsaddr_off, label):
        a.label(label)
        a(f"s_mov_b32 s{H_SO}, s{base_sreg}")
        for r8 in range(8):
            r = VW + 4 * r8
            a(f"buffer_load_dwordx4 v[{r}:{r+3}], v{V_L16}, s[{H_WS}:{H_WS+3}], s{H_SO} offen sc1")
            if r8 < 7: a(f"s_add_u32 s{H_SO}, s{H_SO}, 4096")
        a("s_waitcnt vmcnt(0)")
        tags = []
        for r8 in range(8): tags += [VW + 4*r8 + 1, VW + 4*r8 + 3]
        check_tags_loop(label, tags, VST, VST + 1)
        for off in (0, 2):
            a(f"v_add_f32 v{VW+off}, v{VW+off}, v{VW+4+off}")
            a(f"v_add_f32 v{VW+8+off}, v{VW+8+off}, v{VW+12+off}")
            a(f"v_add_f32 v{VW+16+off}, v{VW+16+off}, v{VW+20+off}")
            a(f"v_add_f32 v{VW+24+off}, v{VW+24+off}, v{VW+28+off}")
            a(f"v_add_f32 v{VW+off}, v{VW+off}, v{VW+8+off}")
            a(f"v_add_f32 v{VW+16+off}, v{VW+16+off}, v{VW+24+off}")
            a(f"v_add_f32 v{VW+off}, v{VW+off}, v{VW+16+off}")
        a(f"v_cvt_pk_bf16_f32 v{VW}, v{VW}, v{VW+2}")
        a(f"v_lshlrev_b32 v{VT}, 4, v{VC}")
        a(f"v_lshl_add_u32 v{VT}, v{VG}, 2, v{VT}")
        if isinstance(ldsaddr_off, str):
            a(f"v_add_u32 v{VT}, {ldsaddr_off}, v{VT}")
            a(f"ds_write_b32 v{VT}, v{VW}")
        else:
            a(f"ds_write_b32 v{VT}, v{VW} offset:{ldsaddr_off}")
        a("s_waitcnt lgkmcnt(0)")

    a(f"s_cmp_eq_u32 s{H_HW}, 2")
    a("s_cbranch_scc0 L_noj1c")
    a(f"s_lshl_b32 s4, s{H_h}, 15")
    a(f"s_lshl_b32 s5, s{H_b}, 10")
    a("s_add_u32 s4, s4, s5")
    if QA_G: a(f"s_add_u32 s4, s4, {QA_G}")
    q_gather(4, L_QA, "L_j1c")
    a.label("L_noj1c")
    stamp(0)
    a("s_barrier")
    a(f"s_lshr_b32 s4, s2, 3")
    a("s_and_b32 s4, s4, 7")
    a("s_lshl_b32 s4, s4, 2")
    a(f"s_add_u32 s4, s4, s{H_HW}")
    a("s_lshl_b32 s4, s4, 15")
    a("s_lshr_b32 s5, s2, 6")
    a("s_lshl_b32 s5, s5, 10")
    a("s_add_u32 s4, s4, s5")
    a(f"s_add_u32 s4, s4, {QB_G}")
    a(f"s_lshl_b32 s39, s{H_HW}, 8")
    a(f"s_add_u32 s39, s39, {L_QB}")
    q_gather(4, "s39", "L_j3")
    stamp(1)
    a("s_barrier")
    a("s_barrier")
    stamp(2)
    a(f"s_cmp_eq_u32 s{H_HW}, 1")
    a("s_cbranch_scc0 L_noj4")
    a(f"v_lshlrev_b32 v{VT}, 3, v0")
    a(f"v_mov_b32 v{VT+1}, 0")
    a(f"s_lshl_b32 s4, s2, 12")
    a(f"s_add_u32 s4, s4, {GP_G}")
    a(f"s_lshl_b32 s5, s2, 6")
    a(f"s_add_u32 s5, s5, {GP_ML}")
    for r in range(4):
        for w in range(W):
            a(f"ds_read_b64 v[{VW+2*w}:{VW+2*w+1}], v{VT} offset:{L_SPB + w*2048 + r*512}")
            a(f"ds_read_b128 v[{VW+8+4*w}:{VW+8+4*w+3}], v{VT+1} offset:{L_MLB + w*128 + r*32}")
            a(f"ds_read_b32 v{VW+24+w}, v{VT+1} offset:{L_MLB + w*128 + r*32 + 16}")
        a("s_waitcnt lgkmcnt(0)")
        M = VW + 28; F = VW + 29; LL = VW + 33; O0 = VW + 36
        a(f"v_mov_b32 v{M}, v{VW+24}")
        for w in range(1, W): a(f"v_max_f32 v{M}, v{M}, v{VW+24+w}")
        for w in range(W):
            a(f"v_sub_f32 v{F+w}, v{VW+24+w}, v{M}")
            a(f"v_mul_f32 v{F+w}, s{H_L2E}, v{F+w}")
        for w in range(W): a(f"v_exp_f32 v{F+w}, v{F+w}")
        for w in range(W):
            l0 = VW + 8 + 4 * w
            a(f"v_add_f32 v{l0}, v{l0}, v{l0+1}")
            a(f"v_add_f32 v{l0+2}, v{l0+2}, v{l0+3}")
            a(f"v_add_f32 v{l0}, v{l0}, v{l0+2}")
        a(f"v_mul_f32 v{LL}, v{F}, v{VW+8}")
        a(f"v_mul_f32 v{O0}, v{F}, v{VW}")
        a(f"v_mul_f32 v{O0+2}, v{F}, v{VW+1}")
        for w in range(1, W):
            a(f"v_fmac_f32 v{LL}, v{F+w}, v{VW+8+4*w}")
            a(f"v_fmac_f32 v{O0}, v{F+w}, v{VW+2*w}")
            a(f"v_fmac_f32 v{O0+2}, v{F+w}, v{VW+2*w+1}")
        a(f"v_mov_b32 v{O0+1}, s{H_T}")
        a(f"v_mov_b32 v{O0+3}, s{H_T}")
        a(f"v_mov_b32 v{VW+40}, v{M}")
        a(f"v_mov_b32 v{VW+41}, s{H_T}")
        a(f"v_mov_b32 v{VW+42}, v{LL}")
        a(f"v_mov_b32 v{VW+43}, s{H_T}")
        a(f"buffer_store_dwordx4 v[{O0}:{O0+3}], v{V_L16}, s[{H_WS}:{H_WS+3}], s4 offen offset:{r*1024} sc1")
        a("s_mov_b64 exec, 1")
        a(f"buffer_store_dwordx4 v[{VW+40}:{VW+43}], v{V_L16}, s[{H_WS}:{H_WS+3}], s5 offen offset:{r*16} sc1")
        a("s_mov_b64 exec, -1")
        a("s_nop 1")
    a.label("L_noj4")
    a(f"s_cmp_eq_u32 s{H_HW}, 0")
    a("s_cbranch_scc0 L_noj5")
    a("s_lshr_b32 s40, s2, 3")
    a("s_lshr_b32 s41, s2, 2")
    a("s_and_b32 s41, s41, 1")
    a("s_and_b32 s42, s2, 3")
    a(f"v_and_b32 v{VT}, 3, v{VC}")
    a(f"v_lshlrev_b32 v{VT}, 6, v{VT}")
    a(f"v_lshrrev_b32 v{VT+1}, 2, v{VC}")
    a(f"v_lshl_add_u32 v{VT}, v{VT+1}, 1, v{VT}")
    a("s_lshr_b32 s4, s40, 2")
    a("s_lshl_b32 s4, s4, 3")
    a(f"v_add_u32 v{VT}, s4, v{VT}")
    a("s_and_b32 s5, s40, 3")
    a(f"v_lshlrev_b32 v{VX}, 6, v{VT}")
    a("s_lshl_b32 s6, s5, 4")
    a(f"s_add_u32 s6, s6, {GP_ML}")
    a(f"v_lshlrev_b32 v{VX+1}, 12, v{VT}")
    a(f"v_lshl_add_u32 v{VX+1}, v{VG}, 7, v{VX+1}")
    a("s_lshl_b32 s7, s5, 10")
    a("s_lshl_b32 s4, s41, 6")
    a("s_add_u32 s7, s7, s4")
    a(f"s_add_u32 s7, s7, {GP_G}")
    a("s_add_u32 s43, s7, 4096")
    ML0 = VX + 4
    a.label("L_j5a")
    a(f"buffer_load_dwordx4 v[{ML0}:{ML0+3}], v{VX}, s[{H_WS}:{H_WS+3}], s6 offen sc1")
    a(f"buffer_load_dwordx4 v[{ML0+4}:{ML0+7}], v{VX}, s[{H_WS}:{H_WS+3}], s6 offen offset:64 sc1")
    a("s_waitcnt vmcnt(0)")
    check_tags_loop("L_j5a", [ML0+1, ML0+3, ML0+5, ML0+7], VST, VST+1)
    a.label("L_j5b")
    for e in range(2):
        so = 7 if e == 0 else 43
        for tau in range(2):
            for u in range(4):
                r = VW + e * 32 + tau * 16 + u * 4
                a(f"buffer_load_dwordx4 v[{r}:{r+3}], v{VX+1}, s[{H_WS}:{H_WS+3}], s{so} offen offset:{tau*512 + u*16} sc1")
    a("s_waitcnt vmcnt(0)")
    check_tags_loop("L_j5b", [VW + 2*i + 1 for i in range(32)], VST, VST+1)
    MM, F0, F1, LS = VST, VST+1, VST+2, VST+3
    a(f"v_max_f32 v{MM}, v{ML0}, v{ML0+4}")
    a("s_nop 1")
    a(f"v_max_f32_dpp v{MM}, v{MM}, v{MM} row_ror:4 row_mask:0xf bank_mask:0xf")
    a("s_nop 1")
    a(f"v_max_f32_dpp v{MM}, v{MM}, v{MM} row_ror:8 row_mask:0xf bank_mask:0xf")
    a(f"v_sub_f32 v{F0}, v{ML0}, v{MM}")
    a(f"v_sub_f32 v{F1}, v{ML0+4}, v{MM}")
    a(f"v_mul_f32 v{F0}, s{H_L2E}, v{F0}")
    a(f"v_mul_f32 v{F1}, s{H_L2E}, v{F1}")
    a(f"v_exp_f32 v{F0}, v{F0}")
    a(f"v_exp_f32 v{F1}, v{F1}")
    a("s_nop 0")
    a(f"v_mul_f32 v{LS}, v{F0}, v{ML0+2}")
    a(f"v_fmac_f32 v{LS}, v{F1}, v{ML0+6}")
    a("s_nop 1")
    a(f"v_add_f32_dpp v{LS}, v{LS}, v{LS} row_ror:4 row_mask:0xf bank_mask:0xf")
    a("s_nop 1")
    a(f"v_add_f32_dpp v{LS}, v{LS}, v{LS} row_ror:8 row_mask:0xf bank_mask:0xf")
    a(f"v_rcp_f32 v{LS}, v{LS}")
    a("s_nop 0")
    a(f"v_mul_f32 v{F0}, v{F0}, v{LS}")
    a(f"v_mul_f32 v{F1}, v{F1}, v{LS}")
    for tau in range(2):
        for i in range(8):
            r = VW + tau * 16 + 2 * i
            a(f"v_mul_f32 v{r}, v{F0}, v{r}")
            a(f"v_fmac_f32 v{r}, v{F1}, v{r+32}")
    for rot in (4, 8):
        for tau in range(2):
            for i in range(8):
                r = VW + tau * 16 + 2 * i
                a(f"v_add_f32_dpp v{r}, v{r}, v{r} row_ror:{rot} row_mask:0xf bank_mask:0xf")
    for tau in range(2):
        for u in range(4):
            r = VW + tau * 16 + 4 * u
            a(f"v_cvt_pk_bf16_f32 v{VX + 4*tau + u}, v{r}, v{r+2}")
    srd(H_W, P_BWO, 4 << 20)
    a(f"v_lshlrev_b32 v{V_WOFF}, 10, v{VG}")
    a(f"v_lshl_add_u32 v{V_WOFF}, v{VC}, 4, v{V_WOFF}")
    a("s_lshl_b32 s4, s40, 17")
    a("s_lshl_b32 s5, s41, 16")
    a("s_add_u32 s4, s4, s5")
    a("s_lshl_b32 s5, s42, 8")
    a("s_add_u32 s4, s4, s5")
    for tau in range(2):
        for t in range(8):
            r = VW + 32 * tau + 4 * t
            a(f"s_add_u32 s{H_SO}, s4, {(8*t + 4*tau)*1024}")
            a(f"buffer_load_dwordx4 v[{r}:{r+3}], v{V_WOFF}, s[{H_W}:{H_W+3}], s{H_SO} offen nt")
    a("s_waitcnt vmcnt(8)")
    wt_tile(VW, VX, True)
    a("s_waitcnt vmcnt(0)")
    wt_tile(VW + 32, VX + 4, False)
    for q0 in (VW, VW + 4):
        a(f"v_mov_b32 v{q0+1}, s{H_T}")
        a(f"v_mov_b32 v{q0+3}, s{H_T}")
    a("s_nop 3")
    a("s_lshl_b32 s4, s42, 6")
    a("s_lshl_b32 s5, s40, 1")
    a("s_add_u32 s4, s4, s5")
    a("s_add_u32 s4, s4, s41")
    a("s_lshl_b32 s4, s4, 12")
    a(f"s_add_u32 s4, s4, {YB_G}")
    for i in range(4):
        q0 = VW + 4 * (i & 1)
        select_pair(i, q0)
        a(f"buffer_store_dwordx4 v[{q0}:{q0+3}], v{V_L16}, s[{H_WS}:{H_WS+3}], s4 offen offset:{i*1024} sc1")
    a.label("L_noj5")
    stamp(3)
    srd(H_W, P_AWO, 4 << 20)
    a(f"v_and_b32 v{VT}, 1, v{VG}")
    a(f"v_lshlrev_b32 v{VT}, 6, v{VT}")
    a(f"v_lshrrev_b32 v{VT+1}, 1, v{VG}")
    a(f"v_add_u32 v{VT}, v{VT}, v{VT+1}")
    a(f"v_lshlrev_b32 v{V_WOFF}, 10, v{VT}")
    a(f"v_lshl_add_u32 v{V_WOFF}, v{VC}, 4, v{V_WOFF}")
    a(f"s_lshl_b32 s4, s{H_h}, 17")
    a(f"s_lshl_b32 s5, s{H_HW}, 8")
    a("s_add_u32 s38, s4, s5")
    for tau in range(4):
        for u in range(4):
            for k2 in range(2):
                t = 2 * u + k2
                r = VW + 4 * k2
                a(f"s_add_u32 s{H_SO}, s38, {(8*t + 2*tau)*1024}")
                a(f"buffer_load_dwordx4 v[{r}:{r+3}], v{V_WOFF}, s[{H_W}:{H_W+3}], s{H_SO} offen")
            a("s_waitcnt vmcnt(0)")
            for j in range(8):
                r, hh = j >> 1, j & 1
                sel = H_SELHI if hh else H_SELLO
                a(f"v_perm_b32 v{VWB + 32*tau + 4*j + u}, v{VW+4+r}, v{VW+r}, s{sel}")
    stamp(4)
    R_b, R_cg, R_k = 40, 41, 42
    V_ACCB = 8
    V_G, V_OMG = 10, 11
    a("s_cmp_ge_u32 s2, 64")
    a("s_cbranch_scc1 L_noj8pre")
    a(f"s_lshr_b32 s{R_b}, s2, 4")
    a(f"s_lshr_b32 s{R_cg}, s2, 2")
    a(f"s_and_b32 s{R_cg}, s{R_cg}, 3")
    a(f"s_and_b32 s{R_k}, s2, 3")
    srd(H_W, P_GATE, 1024)
    a(f"s_lshl_b32 s4, s{R_b}, 10")
    a(f"buffer_load_dwordx4 v[{VW}:{VW+3}], v{V_L16}, s[{H_X}:{H_X+3}], s4 offen")
    a(f"buffer_load_dwordx4 v[{VW+4}:{VW+7}], v{V_L16}, s[{H_W}:{H_W+3}], 0 offen")
    a("s_waitcnt vmcnt(0)")
    for i in range(4):
        a(f"v_lshlrev_b32 v{VW+8+2*i}, 16, v{VW+i}")
        a(f"v_and_b32 v{VW+9+2*i}, s{H_MHI}, v{VW+i}")
        a(f"v_lshlrev_b32 v{VW+16+2*i}, 16, v{VW+4+i}")
        a(f"v_and_b32 v{VW+17+2*i}, s{H_MHI}, v{VW+4+i}")
    for i in range(8): a(f"v_mul_f32 v{VW+8+i}, v{VW+8+i}, v{VW+16+i}")
    for i in range(4): a(f"v_cvt_pk_bf16_f32 v{VW+i}, v{VW+8+2*i}, v{VW+9+2*i}")
    for i in range(4):
        a(f"v_lshlrev_b32 v{VW+8+2*i}, 16, v{VW+i}")
        a(f"v_and_b32 v{VW+9+2*i}, s{H_MHI}, v{VW+i}")
    for i in range(4): a(f"v_add_f32 v{VW+8+i}, v{VW+8+i}, v{VW+12+i}")
    a(f"v_add_f32 v{VW+8}, v{VW+8}, v{VW+10}")
    a(f"v_add_f32 v{VW+9}, v{VW+9}, v{VW+11}")
    a(f"v_add_f32 v{VW+8}, v{VW+8}, v{VW+9}")
    Z = VW + 8
    for rot in (8, 4, 2, 1):
        a("s_nop 1")
        a(f"v_add_f32_dpp v{Z}, v{Z}, v{Z} row_ror:{rot} row_mask:0xf bank_mask:0xf")
    for sw in ("32", "16"):
        a(f"v_mov_b32 v{Z+1}, v{Z}")
        a("s_nop 1")
        a(f"v_permlane{sw}_swap_b32 v{Z}, v{Z+1}")
        a(f"v_add_f32 v{Z}, v{Z}, v{Z+1}")
    a(f"v_cvt_pk_bf16_f32 v{Z}, v{Z}, v{Z}")
    a(f"v_lshlrev_b32 v{Z}, 16, v{Z}")
    a(f"v_mul_f32 v{Z}, s{H_L2E}, v{Z}")
    a(f"v_sub_f32 v{Z}, 0, v{Z}")
    a(f"v_exp_f32 v{Z}, v{Z}")
    a("s_nop 0")
    a(f"v_add_f32 v{Z}, 1.0, v{Z}")
    a(f"v_rcp_f32 v{Z}, v{Z}")
    a("s_nop 0")
    a(f"v_cvt_pk_bf16_f32 v{Z}, v{Z}, v{Z}")
    a(f"v_lshlrev_b32 v{V_G}, 16, v{Z}")
    a(f"v_sub_f32 v{V_OMG}, 1.0, v{V_G}")
    a(f"v_cvt_pk_bf16_f32 v{V_OMG}, v{V_OMG}, v{V_OMG}")
    a(f"v_lshlrev_b32 v{V_OMG}, 16, v{V_OMG}")
    a(f"v_lshlrev_b32 v{VT}, 12, v{VG}")
    a(f"v_lshl_add_u32 v{V_A+1}, v{VC}, 4, v{VT}")
    a(f"s_lshl_b32 s4, s{R_cg}, 6")
    a(f"s_lshl_b32 s5, s{H_HW}, 4")
    a("s_add_u32 s4, s4, s5")
    a("s_lshl_b32 s4, s4, 12")
    a(f"s_lshl_b32 s5, s{R_b}, 10")
    a("s_add_u32 s4, s4, s5")
    a(f"s_lshl_b32 s5, s{R_k}, 8")
    a("s_add_u32 s4, s4, s5")
    a(f"s_add_u32 s4, s4, {YB_G}")
    a.label("L_j8a")
    for kk in range(4):
        r = VW + 4 * kk
        a(f"s_add_u32 s{H_SO}, s4, {kk*16384}")
        a(f"buffer_load_dwordx4 v[{r}:{r+3}], v{V_A+1}, s[{H_WS}:{H_WS+3}], s{H_SO} offen sc1")
    a("s_waitcnt vmcnt(0)")
    check_tags_loop("L_j8a", [VW + 2*i + 1 for i in range(8)], VST, VST+1)
    for off, acc in ((0, V_ACCB), (2, V_ACCB + 1)):
        a(f"v_add_f32 v{acc}, v{VW+off}, v{VW+4+off}")
        a(f"v_add_f32 v{VW+8+off}, v{VW+8+off}, v{VW+12+off}")
        a(f"v_add_f32 v{acc}, v{acc}, v{VW+8+off}")
    a.label("L_noj8pre")
    stamp(5)
    a("s_barrier")
    stamp(6)
    a(f"v_lshlrev_b32 v{VT}, 3, v0")
    a(f"v_mov_b32 v{VT+1}, 0")
    for w in range(W):
        a(f"ds_read_b64 v[{VW+2*w}:{VW+2*w+1}], v{VT} offset:{L_SPA + w*2048}")
        a(f"ds_read_b128 v[{VW+8+4*w}:{VW+8+4*w+3}], v{VT+1} offset:{L_MLA + w*128}")
        a(f"ds_read_b32 v{VW+24+w}, v{VT+1} offset:{L_MLA + w*128 + 16}")
    a("s_waitcnt lgkmcnt(0)")
    M = VW + 28; F = VW + 29; LL = VW + 33; O0 = VW + 36
    a(f"v_mov_b32 v{M}, v{VW+24}")
    for w in range(1, W): a(f"v_max_f32 v{M}, v{M}, v{VW+24+w}")
    for w in range(W):
        a(f"v_sub_f32 v{F+w}, v{VW+24+w}, v{M}")
        a(f"v_mul_f32 v{F+w}, s{H_L2E}, v{F+w}")
    for w in range(W): a(f"v_exp_f32 v{F+w}, v{F+w}")
    a("s_nop 0")
    a(f"v_mul_f32 v{O0}, v{F}, v{VW}")
    a(f"v_mul_f32 v{O0+1}, v{F}, v{VW+1}")
    for w in range(1, W):
        a(f"v_fmac_f32 v{O0}, v{F+w}, v{VW+2*w}")
        a(f"v_fmac_f32 v{O0+1}, v{F+w}, v{VW+2*w+1}")
    a(f"v_cvt_pk_bf16_f32 v{O0}, v{O0}, v{O0+1}")
    a(f"s_lshl_b32 s4, s{H_HW}, 8")
    a(f"s_add_u32 s4, s4, {L_OB}")
    a(f"v_lshl_add_u32 v{VT}, v0, 2, s4")
    a(f"ds_write_b32 v{VT}, v{O0}")
    a(f"v_lshl_add_u32 v{VT}, v{VG}, 4, s4")
    for w in range(W):
        l0 = VW + 8 + 4 * w
        a(f"v_add_f32 v{l0}, v{l0}, v{l0+1}")
        a(f"v_add_f32 v{l0+2}, v{l0+2}, v{l0+3}")
        a(f"v_add_f32 v{l0}, v{l0}, v{l0+2}")
    a(f"v_mul_f32 v{LL}, v{F}, v{VW+8}")
    for w in range(1, W): a(f"v_fmac_f32 v{LL}, v{F+w}, v{VW+8+4*w}")
    a("s_waitcnt lgkmcnt(0)")
    VA7 = VW + 44
    for tau in range(4):
        a(f"ds_read_b128 v[{VA7+4*tau}:{VA7+4*tau+3}], v{VT} offset:{64*tau}")
    a(f"v_mov_b32 v{VW+40}, v{M}")
    a(f"v_mov_b32 v{VW+41}, s{H_T}")
    a(f"v_mov_b32 v{VW+42}, v{LL}")
    a(f"v_mov_b32 v{VW+43}, s{H_T}")
    a(f"v_mov_b32 v{VW+1}, s{H_T}")
    a(f"v_mov_b32 v{VW+3}, s{H_T}")
    a(f"s_lshl_b32 s4, s{H_b}, 6")
    a(f"s_add_u32 s4, s4, s{H_i}")
    a("s_lshl_b32 s5, s4, 4")
    a(f"s_add_u32 s5, s5, {YA_ML}")
    a("s_lshl_b32 s4, s4, 2")
    a(f"s_add_u32 s4, s4, s{H_HW}")
    a("s_lshl_b32 s4, s4, 10")
    a(f"s_add_u32 s4, s4, {YA_G}")
    a("s_waitcnt lgkmcnt(0)")
    for tau in range(4):
        for j in range(8):
            c = "0" if tau == 0 else f"v[{VD+4*j}:{VD+4*j+3}]"
            wr = VWB + 32 * tau + 4 * j
            a(f"v_mfma_f32_16x16x32_bf16 v[{VD+4*j}:{VD+4*j+3}], v[{VA7+4*tau}:{VA7+4*tau+3}], v[{wr}:{wr+3}], {c}")
    a(f"s_cmp_eq_u32 s{H_HW}, 0")
    a("s_cbranch_scc0 L_noml")
    a("s_mov_b64 exec, 1")
    a(f"buffer_store_dwordx4 v[{VW+40}:{VW+43}], v{V_L16}, s[{H_WS}:{H_WS+3}], s5 offen sc1")
    a("s_mov_b64 exec, -1")
    a.label("L_noml")
    a("s_nop 7")
    select_pair(0, VW)
    a(f"buffer_store_dwordx4 v[{VW}:{VW+3}], v{V_L16}, s[{H_WS}:{H_WS+3}], s4 offen sc1")
    stamp(7)
    a("s_cmp_ge_u32 s2, 64")
    a("s_cbranch_scc1 L_hend")
    a(f"v_lshlrev_b32 v{VT}, 13, v{VG}")
    a(f"v_lshl_add_u32 v{VT}, v{VC}, 4, v{VT}")
    a(f"v_lshlrev_b32 v{VT+1}, 5, v{VG}")
    a(f"s_lshl_b32 s4, s{R_b}, 6")
    a(f"s_lshl_b32 s5, s{H_HW}, 4")
    a("s_add_u32 s4, s4, s5")
    a("s_lshl_b32 s6, s4, 4")
    a(f"s_add_u32 s6, s6, {YA_ML}")
    a("s_lshl_b32 s4, s4, 2")
    a(f"s_add_u32 s4, s4, s{R_cg}")
    a("s_lshl_b32 s4, s4, 10")
    a(f"s_lshl_b32 s5, s{R_k}, 8")
    a("s_add_u32 s4, s4, s5")
    a(f"s_add_u32 s4, s4, {YA_G}")
    a("s_add_u32 s5, s4, 4096")
    a("s_add_u32 s7, s4, 32768")
    a("s_add_u32 s43, s4, 36864")
    Y = VW + 8
    a.label("L_j8b")
    for kk in range(2):
        r = Y + 16 * kk
        so0, so1 = (4, 5) if kk == 0 else (7, 43)
        a(f"buffer_load_dwordx4 v[{r}:{r+3}], v{VT}, s[{H_WS}:{H_WS+3}], s{so0} offen sc1")
        a(f"buffer_load_dwordx4 v[{r+4}:{r+7}], v{VT}, s[{H_WS}:{H_WS+3}], s{so1} offen sc1")
        a(f"buffer_load_dwordx4 v[{r+8}:{r+11}], v{VT+1}, s[{H_WS}:{H_WS+3}], s6 offen offset:{kk*128} sc1")
        a(f"buffer_load_dwordx4 v[{r+12}:{r+15}], v{VT+1}, s[{H_WS}:{H_WS+3}], s6 offen offset:{kk*128 + 16} sc1")
    a("s_waitcnt vmcnt(0)")
    check_tags_loop("L_j8b", [Y + 2*i + 1 for i in range(16)], VST, VST+1)
    ACC = VW
    C = VST
    for kk in range(2):
        r = Y + 16 * kk
        m0, l0, m1, l1 = r + 8, r + 10, r + 12, r + 14
        mm, f0, f1, ls = C + 4*kk, C + 4*kk + 1, C + 4*kk + 2, C + 4*kk + 3
        a(f"v_max_f32 v{mm}, v{m0}, v{m1}")
        a(f"v_sub_f32 v{f0}, v{m0}, v{mm}")
        a(f"v_sub_f32 v{f1}, v{m1}, v{mm}")
        a(f"v_mul_f32 v{f0}, s{H_L2E}, v{f0}")
        a(f"v_mul_f32 v{f1}, s{H_L2E}, v{f1}")
        a(f"v_exp_f32 v{f0}, v{f0}")
        a(f"v_exp_f32 v{f1}, v{f1}")
    for kk in range(2):
        r = Y + 16 * kk
        l0, l1 = r + 10, r + 14
        mm, f0, f1, ls = C + 4*kk, C + 4*kk + 1, C + 4*kk + 2, C + 4*kk + 3
        a(f"v_mul_f32 v{ls}, v{f0}, v{l0}")
        a(f"v_fmac_f32 v{ls}, v{f1}, v{l1}")
    for kk in range(2):
        a(f"v_rcp_f32 v{C + 4*kk + 3}, v{C + 4*kk + 3}")
    for kk in range(2):
        r = Y + 16 * kk
        f0, f1 = C + 4*kk + 1, C + 4*kk + 2
        a(f"v_mul_f32 v{r}, v{f0}, v{r}")
        a(f"v_mul_f32 v{r+2}, v{f0}, v{r+2}")
        a(f"v_fmac_f32 v{r}, v{f1}, v{r+4}")
        a(f"v_fmac_f32 v{r+2}, v{f1}, v{r+6}")
    a(f"v_mul_f32 v{ACC}, v{C+3}, v{Y}")
    a(f"v_mul_f32 v{ACC+1}, v{C+3}, v{Y+2}")
    a(f"v_fmac_f32 v{ACC}, v{C+7}, v{Y+16}")
    a(f"v_fmac_f32 v{ACC+1}, v{C+7}, v{Y+18}")
    a(f"v_mov_b32 v{ACC+2}, v{V_ACCB}")
    a(f"v_mov_b32 v{ACC+3}, v{V_ACCB+1}")
    for sw in ("32", "16"):
        for i in range(4): a(f"v_mov_b32 v{ACC+4+i}, v{ACC+i}")
        a("s_nop 0")
        for i in range(4): a(f"v_permlane{sw}_swap_b32 v{ACC+i}, v{ACC+4+i}")
        for i in range(4): a(f"v_add_f32 v{ACC+i}, v{ACC+i}, v{ACC+4+i}")
    a(f"s_lshl_b32 s4, s{H_HW}, 8")
    a(f"s_add_u32 s4, s4, {L_RED}")
    a(f"v_lshl_add_u32 v{VT}, v{VC}, 4, s4")
    a("s_mov_b64 exec, 0xffff")
    a(f"ds_write_b128 v{VT}, v[{ACC}:{ACC+3}]")
    a("s_mov_b64 exec, -1")
    a("s_waitcnt lgkmcnt(0)")
    a("s_barrier")
    a(f"s_cmp_eq_u32 s{H_HW}, 0")
    a("s_cbranch_scc0 L_hend")
    a(f"v_lshlrev_b32 v{VT}, 4, v{VC}")
    for w in range(4):
        a(f"ds_read_b128 v[{Y+4*w}:{Y+4*w+3}], v{VT} offset:{L_RED + 256*w}")
    a(f"s_lshl_b32 s4, s{R_b}, 10")
    a(f"s_lshl_b32 s5, s{R_cg}, 8")
    a("s_add_u32 s4, s4, s5")
    a(f"s_lshl_b32 s5, s{R_k}, 2")
    a("s_add_u32 s4, s4, s5")
    srd(H_W, P_OUT, 4096)
    a(f"v_lshlrev_b32 v{VT+1}, 4, v{VC}")
    a("s_waitcnt lgkmcnt(0)")
    for i in range(4):
        a(f"v_add_f32 v{Y+i}, v{Y+i}, v{Y+4+i}")
        a(f"v_add_f32 v{Y+8+i}, v{Y+8+i}, v{Y+12+i}")
    for i in range(4): a(f"v_add_f32 v{Y+i}, v{Y+i}, v{Y+8+i}")
    a(f"v_cvt_pk_bf16_f32 v{Y+4}, v{Y}, v{Y+1}")
    a(f"v_cvt_pk_bf16_f32 v{Y+5}, v{Y+2}, v{Y+3}")
    a(f"v_lshlrev_b32 v{Y}, 16, v{Y+4}")
    a(f"v_and_b32 v{Y+1}, s{H_MHI}, v{Y+4}")
    a(f"v_lshlrev_b32 v{Y+2}, 16, v{Y+5}")
    a(f"v_and_b32 v{Y+3}, s{H_MHI}, v{Y+5}")
    a(f"v_mul_f32 v{Y}, v{V_G}, v{Y}")
    a(f"v_mul_f32 v{Y+1}, v{V_G}, v{Y+1}")
    a(f"v_mul_f32 v{Y+2}, v{V_OMG}, v{Y+2}")
    a(f"v_mul_f32 v{Y+3}, v{V_OMG}, v{Y+3}")
    a(f"v_cvt_pk_bf16_f32 v{Y+4}, v{Y}, v{Y+1}")
    a(f"v_cvt_pk_bf16_f32 v{Y+5}, v{Y+2}, v{Y+3}")
    a(f"v_lshlrev_b32 v{Y}, 16, v{Y+4}")
    a(f"v_and_b32 v{Y+1}, s{H_MHI}, v{Y+4}")
    a(f"v_lshlrev_b32 v{Y+2}, 16, v{Y+5}")
    a(f"v_and_b32 v{Y+3}, s{H_MHI}, v{Y+5}")
    a(f"v_add_f32 v{Y}, v{Y}, v{Y+2}")
    a(f"v_add_f32 v{Y+1}, v{Y+1}, v{Y+3}")
    a(f"v_cvt_pk_bf16_f32 v{Y}, v{Y}, v{Y+1}")
    a("s_mov_b64 exec, 0xffff")
    a(f"buffer_store_dword v{Y}, v{VT+1}, s[{H_W}:{H_W+3}], s4 offen")
    a("s_cmp_eq_u32 s2, 0")
    a("s_cbranch_scc0 L_noep")
    a("s_mov_b64 exec, 1")
    a(f"v_mov_b32 v{VT}, {EPOCH:#x}")
    a(f"v_mov_b32 v{VT+1}, s{H_T}")
    a(f"buffer_store_dword v{VT+1}, v{VT}, s[{H_WS}:{H_WS+3}], 0 offen sc1")
    a.label("L_noep")
    a("s_mov_b64 exec, -1")
    a.label("L_hend")
    stamp(8)
    a("s_waitcnt vmcnt(0)")
    a.label("L_end")
    a("s_endpgm")
    a.L.append('.section .rodata,"a"')
    a.L.append(".p2align 6")
    a.L.append(f".amdhsa_kernel {NAME}_kernel")
    a.L.append("  .amdhsa_next_free_vgpr 256")
    a.L.append("  .amdhsa_next_free_sgpr 96")
    a.L.append("  .amdhsa_accum_offset 256")
    a.L.append("  .amdhsa_group_segment_fixed_size 0")
    a.L.append("  .amdhsa_kernarg_size 112")
    a.L.append("  .amdhsa_user_sgpr_count 2")
    a.L.append("  .amdhsa_user_sgpr_kernarg_segment_ptr 1")
    a.L.append("  .amdhsa_system_sgpr_workgroup_id_x 1")
    a.L.append("  .amdhsa_float_denorm_mode_32 3")
    a.L.append(".end_amdhsa_kernel")
    return a.text()

if __name__ == "__main__":
    import json
    kw = json.loads(sys.argv[2]) if len(sys.argv) > 2 else {}
    open(sys.argv[1], "w").write(gen(**kw))
```

```python
import sys

NAME = "gated_mix__mha_block_cached__gqa_block_cached__decode"

Q_G    = 0x000000
EPOCH  = 0x010000
GP_G   = 0x100000
OA_G   = 0x200000
Y_G    = 0x280000
GP_ML  = 0x380000
OA_ML  = 0x384000
DIAG   = 0x390000
WS_USED = 0x3B0000

L_SPA, L_SPB = 0, 4096
L_MLA, L_MLB = 8192, 8448
L_OBA, L_OBB = 8704, 9216
L_G = 9728
L_YB = 9792
LDS_BYTES = 12288

SCALE = 0x3db504f3
LOG2E = 0x3fb8aa3b
SEL_LO, SEL_HI = 0x05040100, 0x07060302
TAGINC = 0x9e3779b9
NEG_INF = 0xff800000

class Asm:
    def __init__(self):
        self.L = []
        self.n = 0
    def __call__(self, s):
        self.L.append("  " + s)
    def label(self, s):
        self.L.append(s + ":")
    def raw(self, s):
        self.L.append(s)
    def uniq(self, p):
        self.n += 1
        return f"{p}_{self.n}"
    def text(self):
        return "\n".join(self.L) + "\n"

P_X, P_AK, P_AV, P_AWQ, P_AWO = 44, 46, 48, 50, 52
P_BK, P_BV, P_BWQ, P_BWO, P_GATE, P_OUT, P_DBG, P_WS = 56, 58, 60, 62, 64, 66, 68, 70

def kernel_head(a, name):
    a.raw(".text")
    a.raw(f".globl {name}")
    a.raw(".p2align 8")
    a.raw(f".type {name},@function")
    a.label(name)

def kernel_desc(a, name, nvgpr, accum):
    a.raw('.section .rodata,"a"')
    a.raw(".p2align 6")
    a.raw(f".amdhsa_kernel {name}")
    a.raw(f"  .amdhsa_next_free_vgpr {nvgpr}")
    a.raw("  .amdhsa_next_free_sgpr 96")
    a.raw(f"  .amdhsa_accum_offset {accum}")
    a.raw("  .amdhsa_group_segment_fixed_size 0")
    a.raw("  .amdhsa_kernarg_size 112")
    a.raw("  .amdhsa_user_sgpr_count 2")
    a.raw("  .amdhsa_user_sgpr_kernarg_segment_ptr 1")
    a.raw("  .amdhsa_system_sgpr_workgroup_id_x 1")
    a.raw("  .amdhsa_float_denorm_mode_32 3")
    a.raw(".end_amdhsa_kernel")

def load_kernargs(a):
    a("s_load_dwordx16 s[44:59], s[0:1], 0")
    a("s_load_dwordx8 s[60:67], s[0:1], 64")
    a("s_load_dwordx4 s[68:71], s[0:1], 96")

def srd(a, dst, p, size):
    a(f"s_mov_b32 s{dst}, s{p}")
    a(f"s_and_b32 s{dst+1}, s{p+1}, 0xffff")
    a(f"s_mov_b32 s{dst+2}, {size}")
    a(f"s_mov_b32 s{dst+3}, 0x20000")

def gen_pre(a, preflags="nt", diag=False):
    K = "q_proj_kernel"
    kernel_head(a, K)
    a("s_cmp_ge_u32 s2, 256")
    a("s_cbranch_scc1 L_pre_end")
    load_kernargs(a)
    if diag: a("s_memrealtime s[72:73]")
    a("v_lshrrev_b32 v1, 6, v0")
    a("v_and_b32 v0, 63, v0")
    a("v_and_b32 v3, 15, v0")
    a("v_readfirstlane_b32 s3, v1")
    a("v_lshrrev_b32 v2, 4, v0")
    a("s_and_b32 s4, s2, 7")
    a("s_lshl_b32 s4, s4, 1")
    a("s_bfe_u32 s5, s2, 0x10003")
    a("s_add_u32 s4, s4, s5")
    a("s_bfe_u32 s5, s2, 0x30004")
    a("s_lshl_b32 s5, s5, 4")
    a("s_add_u32 s20, s4, s5")
    a("s_lshr_b32 s21, s2, 7")
    a("v_lshrrev_b32 v4, 2, v3")
    a("v_and_b32 v5, 3, v3")
    a("v_lshlrev_b32 v6, 18, v4")
    a("v_lshl_add_u32 v6, v2, 16, v6")
    a("v_lshl_add_u32 v6, v5, 4, v6")
    a("v_lshlrev_b32 v7, 10, v5")
    a("v_lshl_add_u32 v7, v4, 6, v7")
    a("v_lshl_add_u32 v7, v2, 4, v7")
    a("s_waitcnt lgkmcnt(0)")
    a("s_cmp_eq_u32 s21, 0")
    a(f"s_cselect_b32 s4, s{P_AWQ}, s{P_BWQ}")
    a(f"s_cselect_b32 s5, s{P_AWQ+1}, s{P_BWQ+1}")
    srd(a, 8, 4, 4 << 20)
    srd(a, 12, P_X, 4096)
    srd(a, 16, P_WS, WS_USED)
    a("s_lshl_b32 s22, s3, 20")
    a("s_lshl_b32 s4, s20, 6")
    a("s_add_u32 s22, s22, s4")
    a("s_lshl_b32 s23, s3, 8")
    fl = (" " + preflags) if preflags else ""
    a("buffer_load_dwordx4 v[8:11], v7, s[12:15], s23 offen")
    for t in range(8):
        a(f"buffer_load_dwordx4 v[{16+4*t}:{19+4*t}], v6, s[8:11], s22 offen{fl}")
        if t < 7: a("s_add_u32 s22, s22, 8192")
    a("s_cmp_eq_u32 s2, 0")
    a("s_cbranch_scc0 L_pre_noep")
    a("s_cmp_eq_u32 s3, 3")
    a("s_cbranch_scc0 L_pre_noep")
    a(f"v_mov_b32 v12, {EPOCH:#x}")
    a("buffer_load_dword v13, v12, s[16:19], 0 offen sc1")
    a("s_waitcnt vmcnt(0)")
    a(f"v_add_u32 v13, {TAGINC:#x}, v13")
    a("s_mov_b64 exec, 1")
    a("buffer_store_dword v13, v12, s[16:19], 0 offen sc1")
    a("s_mov_b64 exec, -1")
    a.label("L_pre_noep")
    a(f"s_mov_b32 s24, {SEL_LO:#x}")
    a(f"s_mov_b32 s25, {SEL_HI:#x}")
    a("s_lshl_b32 s4, s3, 11")
    a("v_lshlrev_b32 v12, 9, v4")
    a("v_lshl_add_u32 v12, v5, 7, v12")
    a("v_add_u32 v12, s4, v12")
    a("s_mov_b32 s26, 0x00f0000f")
    a("s_mov_b32 s27, 0xf0000f00")
    a("s_waitcnt vmcnt(0)")
    if diag: a("s_memrealtime s[74:75]")
    ST, D = 48, 56
    def perms(j):
        st = ST + 4 * (j & 1)
        r, hh = j >> 1, j & 1
        for u in range(4):
            a(f"v_perm_b32 v{st+u}, v{16 + 4*(2*u+1) + r}, v{16 + 4*(2*u) + r}, s{25 if hh else 24}")
    perms(0); perms(1)
    for j in range(8):
        if j == 7: a("s_nop 0")
        st = ST + 4 * (j & 1)
        a(f"v_mfma_f32_16x16x32_bf16 v[{D+4*j}:{D+4*j+3}], v[8:11], v[{st}:{st+3}], 0")
        if j + 2 < 8: perms(j + 2)
    a("s_nop 7")
    a("s_mov_b64 exec, s[26:27]")
    for j in range(8):
        a(f"ds_write_b128 v12, v[{D+4*j}:{D+4*j+3}] offset:{16*j}")
    a("s_mov_b64 exec, -1")
    a("s_waitcnt lgkmcnt(0)")
    a("s_barrier")
    a("s_cmp_eq_u32 s3, 0")
    a("s_cbranch_scc0 L_pre_end")
    a("v_lshrrev_b32 v4, 4, v0")
    a("v_bfe_u32 v5, v0, 2, 2")
    a("v_and_b32 v6, 3, v0")
    a("v_lshlrev_b32 v7, 7, v4")
    a("v_lshl_add_u32 v7, v5, 5, v7")
    a("v_lshl_add_u32 v7, v6, 2, v7")
    for p in range(16):
        a(f"ds_read_b32 v{8+2*p}, v7 offset:{p*512}")
        a(f"ds_read_b32 v{9+2*p}, v7 offset:{p*512+16}")
    a("v_lshlrev_b32 v40, 13, v6")
    a("v_lshl_add_u32 v40, v4, 4, v40")
    a("v_lshl_add_u32 v40, v5, 2, v40")
    a("s_lshl_b32 s4, s21, 15")
    a("s_lshl_b32 s5, s20, 6")
    a("s_add_u32 s4, s4, s5")
    if Q_G: a(f"s_add_u32 s4, s4, {Q_G}")
    a("s_waitcnt lgkmcnt(0)")
    n = 16
    while n > 1:
        h = n // 2
        for p in range(h):
            a(f"v_add_f32 v{8+2*p}, v{8+2*p}, v{8+2*(p+h)}")
            a(f"v_add_f32 v{9+2*p}, v{9+2*p}, v{9+2*(p+h)}")
        n = h
    a("v_cvt_pk_bf16_f32 v8, v8, v9")
    a("buffer_store_dword v8, v40, s[16:19], s4 offen")
    a("s_waitcnt vmcnt(0)")
    if diag:
        a("s_memrealtime s[76:77]")
        a("s_waitcnt lgkmcnt(0)")
        a("v_mov_b32 v8, s72")
        a("v_mov_b32 v9, s74")
        a("v_mov_b32 v10, s76")
        a("v_mov_b32 v11, 0")
        a("s_lshl_b32 s4, s2, 4")
        a(f"s_add_u32 s4, s4, {DIAG + 0x10000}")
        a("v_mov_b32 v12, 0")
        a("s_mov_b64 exec, 1")
        a("buffer_store_dwordx4 v[8:11], v12, s[16:19], s4 offen")
        a("s_waitcnt vmcnt(0)")
    a.label("L_pre_end")
    a("s_endpgm")
    kernel_desc(a, K, 96, 96)
    return K

def gen(D=2, diag=False, kvflags="nt", maxpoll=1 << 18, noH=False, nocomp=0, skip=(), mimic=True,
        tailsleep=1, midsleep=8, preflags="nt", hoflags="sc1", stflags="sc1"):
    a = Asm()
    W, NH = 2, 2
    NWAVES = W + NH
    TA = 128 // W
    TB = 32 // W
    assert TB % D == 0 and TA % D == 0
    MAIN = f"{NAME}_kernel"
    a.raw(f"; @launch kernel=q_proj_kernel grid=(256,1,1) block=(256,1,1) lds=8192")
    a.raw(f"; @launch kernel={MAIN} grid=(256,1,1) block=({64*NWAVES},1,1) lds={LDS_BYTES}")
    a.raw('.amdgcn_target "amdgcn-amd-amdhsa--gfx950"')
    kernel_head(a, MAIN)
    a("s_cmp_ge_u32 s2, 256")
    a("s_cbranch_scc1 L_end")
    load_kernargs(a)
    if diag:
        a("s_memrealtime s[72:73]")
        a("s_memtime s[80:81]")
    a("v_lshrrev_b32 v1, 6, v0")
    a("v_and_b32 v0, 63, v0")
    a("v_and_b32 v3, 15, v0")
    a("v_readfirstlane_b32 s3, v1")
    a("v_lshrrev_b32 v2, 4, v0")
    a("s_waitcnt lgkmcnt(0)")
    a(f"s_cmp_ge_u32 s3, {W}")
    a("s_cbranch_scc1 L_H")

    def stamp(idx, r0, start=False):
        if not diag: return
        if not start:
            a("s_memrealtime s[74:75]")
            a("s_waitcnt lgkmcnt(0)")
            a(f"v_mov_b32 v{r0}, s74")
        else:
            a(f"v_mov_b32 v{r0}, s72")
        a(f"s_lshl_b32 s76, s2, 2")
        a("s_add_u32 s76, s76, s3")
        a("s_lshl_b32 s76, s76, 6")
        a(f"s_add_u32 s76, s76, {DIAG + idx*4}")
        a(f"v_mov_b32 v{r0+1}, s76")
        a("s_mov_b64 s[78:79], exec")
        a("s_mov_b64 exec, 1")
        a(f"global_store_dword v{r0+1}, v{r0}, s[{P_WS}:{P_WS+1}]")
        a("s_mov_b64 exec, s[78:79]")

    S_KC, S_VC = 8, 12
    S_KA, S_VA = 16, 18
    S_QS = 20
    S_OFF, S_OFF2, S_IT, S_SEG = 24, 25, 26, 27
    S_SCALE, S_L2E, S_SELLO, S_SELHI, S_MASKHI = 28, 29, 30, 31, 32
    S_M4 = 36
    V_KO, V_VO = 4, 5
    V_P, V_ML = 6, 7
    V_Q = 12
    V_S = 28
    V_PB = 36
    V_ST = 40
    V_O = 48
    V_M, V_L, V_MN, V_AL, V_MLG = 80, 81, 82, 83, 84
    V_T = 86
    V_RING = 96
    V_Q2 = V_RING + 32 * D
    SST = 250
    def KR(d): return 32 * d
    def VR(d): return V_RING + 32 * d
    fl = (" " + kvflags) if kvflags else ""

    a(f"; ---------------- S waves ----------------")
    a("s_lshl_b32 s5, s2, 18")
    for (dst, p) in ((S_KC, P_BK), (S_VC, P_BV)):
        a(f"s_add_u32 s{dst}, s{p}, s5")
        a(f"s_addc_u32 s{dst+1}, s{p+1}, 0")
        a(f"s_and_b32 s{dst+1}, s{dst+1}, 0xffff")
        a(f"s_mov_b32 s{dst+2}, {1 << 18}")
        a(f"s_mov_b32 s{dst+3}, 0x20000")
    a(f"s_lshl_b32 s{S_OFF}, s3, 13")
    a(f"s_add_u32 s{S_OFF2}, s{S_OFF}, 4096")
    a(f"v_lshlrev_b32 v{V_KO}, 8, v3")
    a(f"v_lshl_add_u32 v{V_KO}, v2, 4, v{V_KO}")
    a(f"v_lshlrev_b32 v{V_VO}, 10, v2")
    a(f"v_lshl_add_u32 v{V_VO}, v3, 4, v{V_VO}")
    def issueK(d):
        for t in range(8):
            so = S_OFF if t < 4 else S_OFF2
            r = KR(d) + 4 * t
            a(f"buffer_load_dwordx4 a[{r}:{r+3}], v{V_KO}, s[{S_KC}:{S_KC+3}], s{so} offen offset:{(t%4)*64}{fl}")
    def issueV(d):
        for t in range(8):
            so = S_OFF if t < 4 else S_OFF2
            r = VR(d) + 4 * t
            a(f"buffer_load_dwordx4 v[{r}:{r+3}], v{V_VO}, s[{S_VC}:{S_VC+3}], s{so} offen offset:{(t%4)*256}{fl}")
    def advance():
        a(f"s_add_u32 s{S_OFF}, s{S_OFF}, {W*8192}")
        a(f"s_add_u32 s{S_OFF2}, s{S_OFF2}, {W*8192}")
    issueK(0)
    srd(a, S_QS, P_WS, 0x10000)
    a("v_and_b32 v10, 3, v3")
    a("v_lshlrev_b32 v8, 8, v10")
    a("v_lshl_add_u32 v8, v2, 4, v8")
    a("v_lshlrev_b32 v9, 4, v2")
    a("s_lshr_b32 s4, s2, 6")
    a("s_lshl_b32 s4, s4, 13")
    a("s_bfe_u32 s5, s2, 0x30003")
    a("s_lshl_b32 s5, s5, 10")
    a("s_add_u32 s4, s4, s5")
    a(f"s_add_u32 s4, s4, {Q_G + 32768}")
    for s in range(4):
        a(f"buffer_load_dwordx4 v[{V_Q+4*s}:{V_Q+4*s+3}], v8, s[{S_QS}:{S_QS+3}], s4 offen offset:{64*s}")
    issueV(0); advance()
    a("s_bfe_u32 s4, s2, 0x20005")
    a("s_lshl_b32 s4, s4, 13")
    a("s_and_b32 s5, s2, 31")
    a("s_lshl_b32 s5, s5, 8")
    a("s_add_u32 s4, s4, s5")
    if Q_G: a(f"s_add_u32 s4, s4, {Q_G}")
    for s in range(4):
        a(f"buffer_load_dwordx4 v[{V_Q2+4*s}:{V_Q2+4*s+3}], v9, s[{S_QS}:{S_QS+3}], s4 offen offset:{64*s}")
    for d in range(1, D):
        issueK(d); issueV(d); advance()
    a("s_and_b32 s4, s2, 127")
    a("s_lshl_b32 s4, s4, 21")
    a("s_lshr_b32 s5, s2, 7")
    a("s_lshl_b32 s5, s5, 20")
    a("s_add_u32 s4, s4, s5")
    for (dst, p) in ((S_KA, P_AK), (S_VA, P_AV)):
        a(f"s_add_u32 s{dst}, s{p}, s4")
        a(f"s_addc_u32 s{dst+1}, s{p+1}, 0")
        a(f"s_and_b32 s{dst+1}, s{dst+1}, 0xffff")
    a(f"s_mov_b32 s{S_SCALE}, {SCALE:#x}")
    a(f"s_mov_b32 s{S_L2E}, {LOG2E:#x}")
    a(f"s_mov_b32 s{S_SELLO}, {SEL_LO:#x}")
    a(f"s_mov_b32 s{S_SELHI}, {SEL_HI:#x}")
    a(f"s_mov_b32 s{S_MASKHI}, 0xffff0000")
    a(f"s_mov_b32 s{S_M4}, 0x000f000f")
    a(f"s_mov_b32 s{S_M4+1}, 0x000f000f")
    a(f"s_lshl_b32 s4, s3, 11")
    a(f"v_lshlrev_b32 v{V_P}, 9, v10")
    a(f"v_lshl_add_u32 v{V_P}, v2, 4, v{V_P}")
    a(f"v_add_u32 v{V_P}, s4, v{V_P}")
    a(f"s_lshl_b32 s4, s3, 7")
    a(f"v_lshlrev_b32 v{V_ML}, 5, v10")
    a(f"v_lshl_add_u32 v{V_ML}, v2, 2, v{V_ML}")
    a(f"v_add_u32 v{V_ML}, s4, v{V_ML}")
    def init_state():
        for i in range(32): a(f"v_mov_b32 v{V_O+i}, 0")
        a(f"v_mov_b32 v{V_M}, {NEG_INF:#x}")
        a(f"v_mov_b32 v{V_MLG}, {NEG_INF:#x}")
        a(f"v_mov_b32 v{V_L}, 0")
    init_state()
    a(f"s_mov_b32 s{S_SEG}, 0")
    a(f"s_mov_b32 s{S_IT}, {TB // D}")
    stamp(0, SST, start=True)
    a.label("L_sloop")
    a(f"s_cmp_eq_u32 s{S_IT}, 1")
    a("s_cbranch_scc0 L_noswitch")
    a(f"s_cmp_eq_u32 s{S_SEG}, 0")
    a("s_cbranch_scc0 L_sw1")
    a(f"s_mov_b32 s{S_KC}, s{S_KA}")
    a(f"s_mov_b32 s{S_KC+1}, s{S_KA+1}")
    a(f"s_mov_b32 s{S_KC+2}, {1 << 20}")
    a(f"s_mov_b32 s{S_VC}, s{S_VA}")
    a(f"s_mov_b32 s{S_VC+1}, s{S_VA+1}")
    a(f"s_mov_b32 s{S_VC+2}, {1 << 20}")
    a(f"s_lshl_b32 s{S_OFF}, s3, 13")
    a(f"s_add_u32 s{S_OFF2}, s{S_OFF}, 4096")
    a("s_branch L_noswitch")
    a.label("L_sw1")
    a(f"s_mov_b32 s{S_KC+2}, 0")
    a(f"s_mov_b32 s{S_VC+2}, 0")
    a("s_barrier")
    a.label("L_noswitch")
    WAITN = 16 * D - 8
    T = V_T
    for d in range(D):
        a(f"; ---- tile slot {d}")
        a(f"s_waitcnt vmcnt({WAITN})")
        if nocomp:
            issueK(d)
            a(f"s_waitcnt vmcnt({WAITN})")
            issueV(d)
            advance()
            continue
        for s in range(4):
            for h in range(2):
                kr = KR(d) + 4 * (4 * h + s)
                c = "0" if s == 0 else f"v[{V_S+4*h}:{V_S+4*h+3}]"
                a(f"v_mfma_f32_16x16x32_bf16 v[{V_S+4*h}:{V_S+4*h+3}], a[{kr}:{kr+3}], v[{V_Q+4*s}:{V_Q+4*s+3}], {c}")
        issueK(d)
        a("s_nop 1")
        S = [V_S + i for i in range(8)]
        if mimic:
            for i in range(4): a(f"v_cvt_pk_bf16_f32 v{T+i}, v{S[2*i]}, v{S[2*i+1]}")
            for i in range(4):
                a(f"v_lshlrev_b32 v{S[2*i]}, 16, v{T+i}")
                a(f"v_and_b32 v{S[2*i+1]}, s{S_MASKHI}, v{T+i}")
            for i in range(8): a(f"v_mul_f32 v{S[i]}, s{S_SCALE}, v{S[i]}")
            for i in range(4): a(f"v_cvt_pk_bf16_f32 v{T+i}, v{S[2*i]}, v{S[2*i+1]}")
            for i in range(4):
                a(f"v_lshlrev_b32 v{S[2*i]}, 16, v{T+i}")
                a(f"v_and_b32 v{S[2*i+1]}, s{S_MASKHI}, v{T+i}")
        else:
            for i in range(8): a(f"v_mul_f32 v{S[i]}, s{S_SCALE}, v{S[i]}")
        a(f"v_max3_f32 v{T}, v{S[0]}, v{S[1]}, v{S[2]}")
        a(f"v_max3_f32 v{T+1}, v{S[3]}, v{S[4]}, v{S[5]}")
        a(f"v_max3_f32 v{T}, v{T}, v{S[6]}, v{S[7]}")
        a(f"v_max_f32 v{T}, v{T}, v{T+1}")
        a(f"v_mov_b32 v{T+1}, v{T}")
        a("s_nop 1")
        a(f"v_permlane32_swap_b32 v{T}, v{T+1}")
        a(f"v_max_f32 v{T}, v{T}, v{T+1}")
        a(f"v_mov_b32 v{T+1}, v{T}")
        a("s_nop 1")
        a(f"v_permlane16_swap_b32 v{T}, v{T+1}")
        a(f"v_max_f32 v{T}, v{T}, v{T+1}")
        a(f"v_max_f32 v{V_MN}, v{V_M}, v{T}")
        a(f"v_cmp_gt_f32 vcc, v{V_MN}, v{V_M}")
        lab = a.uniq("L_nors")
        a(f"s_cbranch_vccz {lab}")
        a(f"v_sub_f32 v{T+1}, v{V_M}, v{V_MN}")
        a(f"v_mul_f32 v{T+1}, s{S_L2E}, v{T+1}")
        a(f"v_exp_f32 v{V_AL}, v{T+1}")
        a(f"v_mov_b32 v{V_M}, v{V_MN}")
        a(f"v_mul_f32 v{V_MLG}, s{S_L2E}, v{V_MN}")
        a(f"v_mul_f32 v{V_L}, v{V_L}, v{V_AL}")
        for i in range(32): a(f"v_mul_f32 v{V_O+i}, v{V_O+i}, v{V_AL}")
        a.label(lab)
        for i in range(8): a(f"v_fma_f32 v{S[i]}, v{S[i]}, s{S_L2E}, -v{V_MLG}")
        for i in range(8): a(f"v_exp_f32 v{S[i]}, v{S[i]}")
        a(f"v_add_f32 v{T}, v{S[0]}, v{S[1]}")
        a(f"v_add_f32 v{T+1}, v{S[2]}, v{S[3]}")
        a(f"v_add_f32 v{T+2}, v{S[4]}, v{S[5]}")
        a(f"v_add_f32 v{T+3}, v{S[6]}, v{S[7]}")
        for i in range(4): a(f"v_cvt_pk_bf16_f32 v{V_PB+i}, v{S[2*i]}, v{S[2*i+1]}")
        a(f"v_add_f32 v{T}, v{T}, v{T+1}")
        a(f"v_add_f32 v{T+2}, v{T+2}, v{T+3}")
        a(f"v_add_f32 v{T}, v{T}, v{T+2}")
        a(f"v_add_f32 v{V_L}, v{V_L}, v{T}")
        a(f"s_waitcnt vmcnt({WAITN})")
        def perms(j):
            st = V_ST + 4 * (j & 1)
            r, hh = j >> 1, j & 1
            sel = S_SELHI if hh else S_SELLO
            for u in range(4):
                lo = VR(d) + 4 * (2 * u) + r
                hi = VR(d) + 4 * (2 * u + 1) + r
                a(f"v_perm_b32 v{st+u}, v{hi}, v{lo}, s{sel}")
        def pv(j):
            st = V_ST + 4 * (j & 1)
            a(f"v_mfma_f32_16x16x32_bf16 v[{V_O+4*j}:{V_O+4*j+3}], v[{st}:{st+3}], v[{V_PB}:{V_PB+3}], v[{V_O+4*j}:{V_O+4*j+3}]")
        perms(0); perms(1)
        for j in range(8):
            if j == 7: a("s_nop 0")
            pv(j)
            if j + 2 < 8: perms(j + 2)
        issueV(d)
        advance()
    a(f"s_sub_u32 s{S_IT}, s{S_IT}, 1")
    a(f"s_cmp_lg_u32 s{S_IT}, 0")
    a("s_cbranch_scc1 L_sloop")
    a("s_nop 7")
    a(f"s_cmp_eq_u32 s{S_SEG}, 0")
    a(f"s_cselect_b32 s4, {L_SPB - L_SPA}, 0")
    a(f"s_cselect_b32 s5, {L_MLB - L_MLA}, 0")
    a(f"v_add_u32 v{T}, s4, v{V_P}")
    a(f"v_add_u32 v{T+1}, s5, v{V_ML}")
    a(f"s_mov_b64 exec, s[{S_M4}:{S_M4+1}]")
    for j in range(8):
        a(f"ds_write_b128 v{T}, v[{V_O+4*j}:{V_O+4*j+3}] offset:{L_SPA + 64*j}")
    a(f"ds_write_b32 v{T+1}, v{V_L} offset:{L_MLA}")
    a(f"ds_write_b32 v{T+1}, v{V_M} offset:{L_MLA + 16}")
    a("s_mov_b64 exec, -1")
    a("s_waitcnt lgkmcnt(0)")
    a(f"s_cmp_eq_u32 s{S_SEG}, 0")
    a("s_cbranch_scc0 L_se1")
    stamp(1, SST)
    a("s_barrier")
    for i in range(16): a(f"v_mov_b32 v{V_Q+i}, v{V_Q2+i}")
    init_state()
    a(f"s_mov_b32 s{S_SEG}, 1")
    a(f"s_mov_b32 s{S_IT}, {TA // D}")
    a("s_branch L_sloop")
    a.label("L_se1")
    if diag:
        a("s_memtime s[82:83]")
        a("s_waitcnt lgkmcnt(0)")
        a("s_sub_u32 s82, s82, s80")
        a("s_memrealtime s[74:75]")
        a("s_waitcnt lgkmcnt(0)")
        a("s_sub_u32 s74, s74, s72")
        a(f"v_mov_b32 v{SST+2}, s82")
        a(f"v_mov_b32 v{SST+3}, s74")
        a("s_lshl_b32 s76, s2, 2")
        a("s_add_u32 s76, s76, s3")
        a("s_lshl_b32 s76, s76, 6")
        a(f"s_add_u32 s76, s76, {DIAG + 5*4}")
        a(f"v_mov_b32 v{SST+4}, s76")
        a("s_mov_b64 exec, 1")
        a(f"global_store_dwordx2 v{SST+4}, v[{SST+2}:{SST+3}], s[{P_WS}:{P_WS+1}]")
        a("s_mov_b64 exec, -1")
    stamp(2, SST)
    a("s_barrier")
    a("s_waitcnt vmcnt(0)")
    a("s_endpgm")

    H_WS, H_W, H_X = 8, 12, 16
    H_T = 20
    H_G1, H_G2, H_G3 = 22, 24, 26
    H_SELLO, H_SELHI, H_L2E = 28, 29, 30
    H_SO = 31
    H_CNT = 32
    H_MHI = 33
    H_h, H_b = 34, 35
    H_dh, H_cg, H_i2 = 36, 37, 38
    VC, VG = 3, 2
    V_L16 = 4
    V_WOFF = 5
    VT = 6
    VX = 8
    VW = 24
    VST = 152
    VD = 160
    VWQ = 192
    HST = 22
    ho = hoflags; sf = stflags

    def check_tags_loop(lab, tagregs, sleep, tmin=None, tmax=None):
        tmin = VST if tmin is None else tmin
        tmax = VST + 1 if tmax is None else tmax
        done = a.uniq("L_ok")
        regs = list(tagregs)
        a(f"v_min_u32 v{tmin}, v{regs[0]}, v{regs[1]}")
        a(f"v_max_u32 v{tmax}, v{regs[0]}, v{regs[1]}")
        rest = regs[2:]
        while len(rest) >= 2:
            a(f"v_min3_u32 v{tmin}, v{tmin}, v{rest[0]}, v{rest[1]}")
            a(f"v_max3_u32 v{tmax}, v{tmax}, v{rest[0]}, v{rest[1]}")
            rest = rest[2:]
        if rest:
            a(f"v_min_u32 v{tmin}, v{tmin}, v{rest[0]}")
            a(f"v_max_u32 v{tmax}, v{tmax}, v{rest[0]}")
        a(f"v_xor_b32 v{tmin}, s{H_T}, v{tmin}")
        a(f"v_xor_b32 v{tmax}, s{H_T}, v{tmax}")
        a(f"v_or_b32 v{tmin}, v{tmin}, v{tmax}")
        a(f"v_cmp_ne_u32 vcc, 0, v{tmin}")
        a(f"s_cbranch_vccz {done}")
        a(f"s_sub_u32 s{H_CNT}, s{H_CNT}, 1")
        a(f"s_cmp_eq_u32 s{H_CNT}, 0")
        a(f"s_cbranch_scc1 {done}")
        if sleep: a(f"s_sleep {sleep}")
        a(f"s_branch {lab}")
        a.label(done)

    def select_pair(i, r0, r1):
        a(f"v_cndmask_b32 v{r0}, v{VD+0+i}, v{VD+8+i}, s[{H_G1}:{H_G1+1}]")
        a(f"v_cndmask_b32 v{r1}, v{VD+4+i}, v{VD+12+i}, s[{H_G1}:{H_G1+1}]")
        a(f"v_cndmask_b32 v{r0}, v{r0}, v{VD+16+i}, s[{H_G2}:{H_G2+1}]")
        a(f"v_cndmask_b32 v{r1}, v{r1}, v{VD+20+i}, s[{H_G2}:{H_G2+1}]")
        a(f"v_cndmask_b32 v{r0}, v{r0}, v{VD+24+i}, s[{H_G3}:{H_G3+1}]")
        a(f"v_cndmask_b32 v{r1}, v{r1}, v{VD+28+i}, s[{H_G3}:{H_G3+1}]")

    def read_tag():
        a(f"v_readfirstlane_b32 s{H_T}, v{VT+1}")
        a("s_nop 3")

    def merge(r, sp, ml, q0):
        for w in range(W):
            a(f"ds_read_b64 v[{q0+8+2*w}:{q0+8+2*w+1}], v{VT} offset:{sp + w*2048 + r*512}")
            a(f"ds_read_b128 v[{q0+12+4*w}:{q0+12+4*w+3}], v{VT+1} offset:{ml + w*128 + r*32}")
            a(f"ds_read_b32 v{q0+20+w}, v{VT+1} offset:{ml + w*128 + r*32 + 16}")
        a("s_waitcnt lgkmcnt(0)")
        M = q0 + 4; F = q0 + 22; LL = q0 + 6
        a(f"v_max_f32 v{M}, v{q0+20}, v{q0+21}")
        for w in range(W): a(f"v_sub_f32 v{F+w}, v{q0+20+w}, v{M}")
        for w in range(W): a(f"v_mul_f32 v{F+w}, s{H_L2E}, v{F+w}")
        for w in range(W): a(f"v_exp_f32 v{F+w}, v{F+w}")
        for w in range(W):
            l0 = q0 + 12 + 4 * w
            a(f"v_add_f32 v{l0}, v{l0}, v{l0+1}")
            a(f"v_add_f32 v{l0+2}, v{l0+2}, v{l0+3}")
        a(f"v_mul_f32 v{q0}, v{F}, v{q0+8}")
        a(f"v_mul_f32 v{q0+2}, v{F}, v{q0+9}")
        a(f"v_fmac_f32 v{q0}, v{F+1}, v{q0+10}")
        a(f"v_fmac_f32 v{q0+2}, v{F+1}, v{q0+11}")
        a(f"v_mov_b32 v{q0+1}, s{H_T}")
        a(f"v_mov_b32 v{q0+3}, s{H_T}")
        for w in range(W):
            l0 = q0 + 12 + 4 * w
            a(f"v_add_f32 v{l0}, v{l0}, v{l0+2}")
    def merge_ml(q0):
        M = q0 + 4; F = q0 + 22; LL = q0 + 6
        a(f"v_mul_f32 v{LL}, v{F}, v{q0+12}")
        a(f"v_mov_b32 v{M+1}, s{H_T}")
        a(f"v_fmac_f32 v{LL}, v{F+1}, v{q0+16}")
        a(f"v_mov_b32 v{M+3}, s{H_T}")
    def store_payload(q0, vperm, sdst):
        a(f"buffer_store_dwordx4 v[{q0}:{q0+3}], v{vperm}, s[{H_WS}:{H_WS+3}], s{sdst} offen {sf}")
    def store_ml(q0, smld):
        a("s_mov_b64 exec, 1")
        a(f"buffer_store_dwordx4 v[{q0+4}:{q0+7}], v{V_L16}, s[{H_WS}:{H_WS+3}], s{smld} offen {sf}")
        a("s_mov_b64 exec, -1")

    def perm_addr(reg):
        a(f"v_and_b32 v{reg}, 3, v0")
        a(f"v_lshlrev_b32 v{reg}, 4, v{reg}")
        a(f"v_bfe_u32 v{VST}, v0, 2, 1")
        a(f"v_lshl_add_u32 v{reg}, v{VST}, 9, v{reg}")
        a(f"v_lshrrev_b32 v{VST}, 3, v0")
        a(f"v_lshl_add_u32 v{reg}, v{VST}, 6, v{reg}")

    def wpre(pw):
        srd(a, H_W, pw, 4 << 20)
        a(f"v_lshlrev_b32 v{V_WOFF}, 10, v{VG}")
        a(f"v_lshl_add_u32 v{V_WOFF}, v{VC}, 4, v{V_WOFF}")
        a(f"s_lshl_b32 s4, s{H_h}, 17")
        a(f"s_lshl_b32 s5, s{H_dh}, 16")
        a("s_add_u32 s4, s4, s5")
        a(f"s_lshl_b32 s5, s{H_cg}, 8")
        a("s_add_u32 s4, s4, s5")
        for tau in range(2):
            for t in range(8):
                r = VW + 32 * tau + 4 * t
                a(f"s_add_u32 s{H_SO}, s4, {(8*t + 4*tau)*1024}")
                a(f"buffer_load_dwordx4 v[{r}:{r+3}], v{V_WOFF}, s[{H_W}:{H_W+3}], s{H_SO} offen nt")
        for tau in range(2):
            a(f"s_waitcnt vmcnt({8 * (1 - tau)})")
            for j in range(8):
                r, hh = j >> 1, j & 1
                sel = H_SELHI if hh else H_SELLO
                for u in range(4):
                    lo = VW + 32 * tau + 4 * (2 * u) + r
                    hi = VW + 32 * tau + 4 * (2 * u + 1) + r
                    a(f"v_perm_b32 v{VWQ + 32*tau + 4*j + u}, v{hi}, v{lo}, s{sel}")

    VGP, VGM = VX, VX + 1
    def st2_addr(NP, pbase, mlbase):
        a(f"v_lshrrev_b32 v{VST}, 5, v0")
        a(f"v_and_b32 v{VST+1}, 31, v0")
        a(f"v_lshlrev_b32 v{VST+1}, 4, v{VST+1}")
        a(f"s_mov_b32 s4, {32*NP*1024}")
        a(f"v_mad_u32_u24 v{VGP}, v{VST}, s4, v{VST+1}")
        a(f"v_mul_u32_u24 v{VGM}, {32*NP*16}, v{VST}")
        a(f"s_mul_i32 s42, s{H_h}, {NP*1024}")
        a(f"s_lshl_b32 s5, s{H_dh}, 9")
        a("s_add_u32 s42, s42, s5")
        a(f"s_add_u32 s42, s42, {pbase}")
        a(f"s_mul_i32 s43, s{H_h}, {NP*16}")
        a(f"s_add_u32 s43, s43, {mlbase}")

    def st2(NP, ob, name, sleep, vscale):
        Y = VW
        ML = VW + 8 * NP
        if NP > 2:
            lab = f"L_{name}_lp"
            a(f"v_bfe_u32 v{VT}, v0, 3, 2")
            a(f"v_mul_u32_u24 v{VT}, {32*NP*16}, v{VT}")
            a(f"v_and_b32 v{VT+1}, 7, v0")
            a(f"v_lshl_add_u32 v{VT}, v{VT+1}, 4, v{VT}")
            a.label(lab)
            a(f"buffer_load_dwordx4 v[{Y}:{Y+3}], v{VT}, s[{H_WS}:{H_WS+3}], s43 offen {ho}")
            a("s_waitcnt vmcnt(0)")
            check_tags_loop(lab, [Y+1, Y+3], sleep)
        lab = f"L_{name}_g"
        a.label(lab)
        for bp in range(2):
            for p in range(NP):
                r = Y + 4 * (bp * NP + p)
                a(f"s_add_u32 s{H_SO}, s42, {bp*2*32*NP*1024 + p*1024}")
                a(f"buffer_load_dwordx4 v[{r}:{r+3}], v{VGP}, s[{H_WS}:{H_WS+3}], s{H_SO} offen {ho}")
        for bp in range(2):
            a(f"s_add_u32 s{H_SO}, s43, {bp*2*32*NP*16}")
            for p in range(NP):
                r = ML + 4 * (bp * NP + p)
                a(f"buffer_load_dwordx4 v[{r}:{r+3}], v{VGM}, s[{H_WS}:{H_WS+3}], s{H_SO} offen offset:{p*16} {ho}")
        a("s_waitcnt vmcnt(0)")
        tags = []
        for k in range(4 * NP): tags += [Y + 4*k + 1, Y + 4*k + 3]
        check_tags_loop(lab, tags, sleep)
        for bp in range(2):
            m = [ML + 4 * (bp * NP + p) for p in range(NP)]
            MM = VST + 2 * bp
            a(f"v_max_f32 v{MM}, v{m[0]}, v{m[1]}")
            for p in range(2, NP, 2): a(f"v_max3_f32 v{MM}, v{MM}, v{m[p]}, v{m[p+1]}")
            for p in range(NP): a(f"v_sub_f32 v{m[p]+1}, v{m[p]}, v{MM}")
            for p in range(NP): a(f"v_mul_f32 v{m[p]+1}, s{H_L2E}, v{m[p]+1}")
            for p in range(NP): a(f"v_exp_f32 v{m[p]+1}, v{m[p]+1}")
        for bp in range(2):
            m = [ML + 4 * (bp * NP + p) for p in range(NP)]
            y = [Y + 4 * (bp * NP + p) for p in range(NP)]
            LS = VST + 2 * bp + 1
            a(f"v_mul_f32 v{LS}, v{m[0]+1}, v{m[0]+2}")
            a(f"v_mul_f32 v{y[0]}, v{m[0]+1}, v{y[0]}")
            a(f"v_mul_f32 v{y[0]+2}, v{m[0]+1}, v{y[0]+2}")
            for p in range(1, NP):
                a(f"v_fmac_f32 v{LS}, v{m[p]+1}, v{m[p]+2}")
                a(f"v_fmac_f32 v{y[0]}, v{m[p]+1}, v{y[p]}")
                a(f"v_fmac_f32 v{y[0]+2}, v{m[p]+1}, v{y[p]+2}")
        for bp in range(2): a(f"v_rcp_f32 v{VST + 2*bp + 1}, v{VST + 2*bp + 1}")
        a(f"v_lshlrev_b32 v{VT}, 2, v0")
        a(f"v_and_b32 v{VT+1}, 3, v{VC}")
        for bp in range(2):
            a(f"v_mul_f32 v{VST + 2*bp + 1}, v{vscale+bp}, v{VST + 2*bp + 1}")
        for bp in range(2):
            y0 = Y + 4 * (bp * NP)
            a(f"v_mul_f32 v{y0}, v{VST + 2*bp + 1}, v{y0}")
            a(f"v_mul_f32 v{y0+2}, v{VST + 2*bp + 1}, v{y0+2}")
            a(f"v_cvt_pk_bf16_f32 v{y0}, v{y0}, v{y0+2}")
            a(f"ds_write_b32 v{VT}, v{y0} offset:{ob + bp*256}")
        a(f"v_lshlrev_b32 v{VT+1}, 7, v{VT+1}")
        a(f"v_lshl_add_u32 v{VT+1}, v{VG}, 4, v{VT+1}")
        a("s_waitcnt lgkmcnt(0)")
        for tau in range(2):
            a(f"ds_read_b128 v[{VX+4*tau}:{VX+4*tau+3}], v{VT+1} offset:{ob + 64*tau}")
        a("s_waitcnt lgkmcnt(0)")
        for tau in range(2):
            for j in range(8):
                c = "0" if tau == 0 else f"v[{VD+4*j}:{VD+4*j+3}]"
                wr = VWQ + 32 * tau + 4 * j
                a(f"v_mfma_f32_16x16x32_bf16 v[{VD+4*j}:{VD+4*j+3}], v[{VX+4*tau}:{VX+4*tau+3}], v[{wr}:{wr+3}], {c}")

    a.label("L_H")
    a("; ---------------- H waves ----------------")
    if noH:
        for _ in range(3): a("s_barrier")
        a("s_branch L_end")
    srd(a, H_WS, P_WS, WS_USED)
    srd(a, H_X, P_X, 4096)
    a(f"v_mov_b32 v{VT}, {EPOCH:#x}")
    a(f"buffer_load_dword v{VT+1}, v{VT}, s[{H_WS}:{H_WS+3}], 0 offen sc1")
    a(f"s_and_b32 s{H_h}, s2, 31")
    a(f"s_mov_b32 s{H_SELLO}, {SEL_LO:#x}")
    a(f"s_mov_b32 s{H_SELHI}, {SEL_HI:#x}")
    a(f"s_mov_b32 s{H_G1}, 0xffff0000")
    a(f"s_mov_b32 s{H_G1+1}, 0")
    a(f"s_mov_b32 s{H_G2}, 0")
    a(f"s_mov_b32 s{H_G2+1}, 0x0000ffff")
    a(f"s_mov_b32 s{H_G3}, 0")
    a(f"s_mov_b32 s{H_G3+1}, 0xffff0000")
    a(f"s_mov_b32 s{H_L2E}, {LOG2E:#x}")
    a(f"s_mov_b32 s{H_MHI}, 0xffff0000")
    a(f"s_mov_b32 s{H_CNT}, {maxpoll}")
    a(f"s_lshr_b32 s{H_b}, s2, 5")
    a(f"s_and_b32 s{H_dh}, s{H_b}, 1")
    a(f"s_and_b32 s{H_b}, s{H_b}, 3")
    a(f"s_lshr_b32 s{H_cg}, s2, 6")
    a(f"s_lshl_b32 s{H_i2}, s{H_h}, 1")
    a(f"s_add_u32 s{H_i2}, s{H_i2}, s{H_dh}")
    a(f"v_lshlrev_b32 v{V_L16}, 4, v0")
    stamp(0, HST, start=True)
    a("s_waitcnt vmcnt(0)")
    read_tag()
    V_PERM = VX + 8
    V_GS = VX + 10
    a(f"s_cmp_eq_u32 s3, {W}")
    a("s_cbranch_scc0 L_H1")

    if "wpre" not in skip: wpre(P_AWO)
    perm_addr(V_PERM)
    st2_addr(2, OA_G, OA_ML)
    a("s_lshr_b32 s5, s2, 7")
    a(f"s_lshl_b32 s6, s{H_b}, 5")
    a(f"s_add_u32 s6, s6, s{H_h}")
    a("s_lshl_b32 s6, s6, 1")
    a("s_add_u32 s6, s6, s5")
    a("s_lshl_b32 s40, s6, 10")
    a(f"s_add_u32 s40, s40, {OA_G}")
    a("s_lshl_b32 s41, s6, 4")
    a(f"s_add_u32 s41, s41, {OA_ML}")
    stamp(1, HST)
    a("s_barrier")
    a(f"v_lshrrev_b32 v{VT}, 5, v0")
    a(f"v_lshlrev_b32 v{VT}, 3, v{VT}")
    a(f"ds_read_b32 v{V_GS}, v{VT} offset:{L_G}")
    a(f"ds_read_b32 v{V_GS+1}, v{VT} offset:{L_G + 16}")
    a(f"v_lshlrev_b32 v{VT}, 3, v0")
    a(f"v_mov_b32 v{VT+1}, 0")
    a("s_waitcnt lgkmcnt(0)")
    a("s_barrier")
    a("s_barrier")
    stamp(2, HST)
    if "tail" in skip: a("s_branch L_hend")
    merge(0, L_SPA, L_MLA, VW)
    store_payload(VW, V_PERM, 40)
    merge_ml(VW)
    store_ml(VW, 41)
    stamp(3, HST)
    st2(2, L_OBA, "st2a", tailsleep, V_GS)
    a(f"s_lshl_b32 s4, s{H_cg}, 6")
    a(f"s_add_u32 s4, s4, s{H_i2}")
    a("s_lshl_b32 s4, s4, 12")
    a(f"s_add_u32 s4, s4, {Y_G}")
    for q0 in (VW, VW + 4, VW + 8, VW + 12):
        a(f"v_mov_b32 v{q0+1}, s{H_T}")
        a(f"v_mov_b32 v{q0+3}, s{H_T}")
    a(f"v_lshlrev_b32 v{VT}, 5, v0")
    stamp(4, HST)
    a("s_barrier")
    a(f"ds_read_b128 v[{VW+16}:{VW+19}], v{VT} offset:{L_YB}")
    a(f"ds_read_b128 v[{VW+20}:{VW+23}], v{VT} offset:{L_YB + 16}")
    for i in range(4): select_pair(i, VW + 4*i, VW + 4*i + 2)
    a("s_waitcnt lgkmcnt(0)")
    for i in range(4):
        a(f"v_add_f32 v{VW+4*i}, v{VW+4*i}, v{VW+16+2*i}")
        a(f"v_add_f32 v{VW+4*i+2}, v{VW+4*i+2}, v{VW+16+2*i+1}")
        a(f"buffer_store_dwordx4 v[{VW+4*i}:{VW+4*i+3}], v{V_L16}, s[{H_WS}:{H_WS+3}], s4 offen offset:{i*1024} {sf}")
    stamp(5, HST)
    a(f"v_lshrrev_b32 v{VT}, 2, v0")
    a(f"v_lshlrev_b32 v{VT}, 12, v{VT}")
    a(f"v_and_b32 v{VT+1}, 3, v0")
    a(f"v_lshl_add_u32 v{VT}, v{VT+1}, 4, v{VT}")
    a("s_lshr_b32 s4, s2, 4")
    a("s_and_b32 s4, s4, 3")
    a("s_lshl_b32 s4, s4, 18")
    a("s_lshr_b32 s5, s2, 6")
    a("s_lshl_b32 s5, s5, 10")
    a("s_add_u32 s4, s4, s5")
    a("s_and_b32 s5, s2, 15")
    a("s_lshl_b32 s5, s5, 6")
    a("s_add_u32 s4, s4, s5")
    a(f"s_add_u32 s4, s4, {Y_G}")
    Y = VW + 32
    acc = VX + 12
    a.label("L_fin")
    for kk in range(4):
        a(f"s_add_u32 s{H_SO}, s4, {kk*65536}")
        a(f"buffer_load_dwordx4 v[{Y+4*kk}:{Y+4*kk+3}], v{VT}, s[{H_WS}:{H_WS+3}], s{H_SO} offen {ho}")
    a("s_lshr_b32 s6, s2, 6")
    a("s_lshl_b32 s6, s6, 10")
    a("s_bfe_u32 s5, s2, 0x20004")
    a("s_lshl_b32 s5, s5, 8")
    a("s_add_u32 s6, s6, s5")
    a("s_bfe_u32 s5, s2, 0x20002")
    a("s_lshl_b32 s5, s5, 2")
    a("s_add_u32 s6, s6, s5")
    a("s_and_b32 s5, s2, 3")
    a("s_lshl_b32 s5, s5, 6")
    a("s_add_u32 s6, s6, s5")
    srd(a, H_W, P_OUT, 4096)
    a("s_waitcnt vmcnt(0)")
    check_tags_loop("L_fin", [Y + 2*i + 1 for i in range(8)], tailsleep)
    for off in (0, 2):
        a(f"v_add_f32 v{Y+off}, v{Y+off}, v{Y+4+off}")
        a(f"v_add_f32 v{Y+8+off}, v{Y+8+off}, v{Y+12+off}")
    a(f"v_add_f32 v{acc}, v{Y}, v{Y+8}")
    a(f"v_add_f32 v{acc+1}, v{Y+2}, v{Y+10}")
    for rot in (4, 8):
        a("s_nop 0")
        a(f"v_add_f32_dpp v{acc}, v{acc}, v{acc} row_ror:{rot} row_mask:0xf bank_mask:0xf")
        a(f"v_add_f32_dpp v{acc+1}, v{acc+1}, v{acc+1} row_ror:{rot} row_mask:0xf bank_mask:0xf")
    for sw in ("32", "16"):
        a(f"v_mov_b32 v{Y}, v{acc}")
        a(f"v_mov_b32 v{Y+1}, v{acc+1}")
        a("s_nop 0")
        a(f"v_permlane{sw}_swap_b32 v{acc}, v{Y}")
        a(f"v_permlane{sw}_swap_b32 v{acc+1}, v{Y+1}")
        a(f"v_add_f32 v{acc}, v{acc}, v{Y}")
        a(f"v_add_f32 v{acc+1}, v{acc+1}, v{Y+1}")
    a(f"v_lshlrev_b32 v{VT}, 4, v{VT+1}")
    a(f"v_cvt_pk_bf16_f32 v{Y}, v{acc}, v{acc+1}")
    a("s_mov_b64 exec, 0xf")
    a(f"buffer_store_dword v{Y}, v{VT}, s[{H_W}:{H_W+3}], s6 offen")
    a("s_mov_b64 exec, -1")
    stamp(6, HST)
    a("s_branch L_hend")

    a.label("L_H1")
    if "wpre" not in skip: wpre(P_BWO)
    srd(a, H_W, P_GATE, 1024)
    for b in range(4):
        a(f"buffer_load_dwordx4 v[{VW+4*b}:{VW+4*b+3}], v{V_L16}, s[{H_X}:{H_X+3}], 0 offen offset:{b*1024}")
    GWR = VW + 16
    a(f"buffer_load_dwordx4 v[{GWR}:{GWR+3}], v{V_L16}, s[{H_W}:{H_W+3}], 0 offen")
    a("s_waitcnt vmcnt(0)")
    GW = VW + 20
    for i in range(4):
        a(f"v_lshlrev_b32 v{GW+2*i}, 16, v{GWR+i}")
        a(f"v_and_b32 v{GW+2*i+1}, s{H_MHI}, v{GWR+i}")
    XU = VW + 28
    Z = VW + 36
    for b in range(4):
        for i in range(4):
            a(f"v_lshlrev_b32 v{XU+2*i}, 16, v{VW+4*b+i}")
            a(f"v_and_b32 v{XU+2*i+1}, s{H_MHI}, v{VW+4*b+i}")
        for i in range(8): a(f"v_mul_f32 v{XU+i}, v{XU+i}, v{GW+i}")
        for i in range(4): a(f"v_cvt_pk_bf16_f32 v{VW+4*b+i}, v{XU+2*i}, v{XU+2*i+1}")
        for i in range(4):
            a(f"v_lshlrev_b32 v{XU+2*i}, 16, v{VW+4*b+i}")
            a(f"v_and_b32 v{XU+2*i+1}, s{H_MHI}, v{VW+4*b+i}")
        for i in range(4): a(f"v_add_f32 v{XU+i}, v{XU+i}, v{XU+4+i}")
        a(f"v_add_f32 v{XU}, v{XU}, v{XU+2}")
        a(f"v_add_f32 v{XU+1}, v{XU+1}, v{XU+3}")
        a(f"v_add_f32 v{Z+b}, v{XU}, v{XU+1}")
    for rot in (8, 4, 2, 1):
        a("s_nop 0")
        for b in range(4):
            a(f"v_add_f32_dpp v{Z+b}, v{Z+b}, v{Z+b} row_ror:{rot} row_mask:0xf bank_mask:0xf")
    for sw in ("32", "16"):
        for b in range(4): a(f"v_mov_b32 v{Z+4+b}, v{Z+b}")
        a("s_nop 0")
        for b in range(4): a(f"v_permlane{sw}_swap_b32 v{Z+b}, v{Z+4+b}")
        for b in range(4): a(f"v_add_f32 v{Z+b}, v{Z+b}, v{Z+4+b}")
    for b in range(4): a(f"v_cvt_pk_bf16_f32 v{Z+b}, v{Z+b}, v{Z+b}")
    for b in range(4): a(f"v_lshlrev_b32 v{Z+b}, 16, v{Z+b}")
    for b in range(4): a(f"v_mul_f32 v{Z+b}, s{H_L2E}, v{Z+b}")
    for b in range(4): a(f"v_sub_f32 v{Z+b}, 0, v{Z+b}")
    for b in range(4): a(f"v_exp_f32 v{Z+b}, v{Z+b}")
    a("s_nop 0")
    for b in range(4): a(f"v_add_f32 v{Z+b}, 1.0, v{Z+b}")
    for b in range(4): a(f"v_rcp_f32 v{Z+b}, v{Z+b}")
    a("s_nop 0")
    for b in range(4): a(f"v_cvt_pk_bf16_f32 v{Z+b}, v{Z+b}, v{Z+b}")
    GG = Z + 8
    for b in range(4): a(f"v_lshlrev_b32 v{GG+2*b}, 16, v{Z+b}")
    for b in range(4): a(f"v_sub_f32 v{GG+2*b+1}, 1.0, v{GG+2*b}")
    for b in range(4): a(f"v_cvt_pk_bf16_f32 v{GG+2*b+1}, v{GG+2*b+1}, v{GG+2*b+1}")
    for b in range(4): a(f"v_lshlrev_b32 v{GG+2*b+1}, 16, v{GG+2*b+1}")
    a(f"v_mov_b32 v{VT}, 0")
    a("s_mov_b64 exec, 1")
    a(f"ds_write_b128 v{VT}, v[{GG}:{GG+3}] offset:{L_G}")
    a(f"ds_write_b128 v{VT}, v[{GG+4}:{GG+7}] offset:{L_G + 16}")
    a("s_mov_b64 exec, -1")
    a("s_mov_b32 s4, 0")
    a("s_mov_b32 s5, -1")
    a(f"v_cndmask_b32 v{V_GS}, v{GG+1}, v{GG+3}, s[4:5]")
    a(f"v_cndmask_b32 v{V_GS+1}, v{GG+5}, v{GG+7}, s[4:5]")
    perm_addr(V_PERM)
    st2_addr(8, GP_G, GP_ML)
    a("s_lshr_b32 s4, s2, 6")
    a("s_lshl_b32 s4, s4, 8")
    a("s_bfe_u32 s5, s2, 0x30003")
    a("s_lshl_b32 s5, s5, 5")
    a("s_add_u32 s4, s4, s5")
    a("s_and_b32 s5, s2, 7")
    a("s_add_u32 s4, s4, s5")
    a("s_lshl_b32 s40, s4, 10")
    a(f"s_add_u32 s40, s40, {GP_G}")
    a("s_lshl_b32 s41, s4, 4")
    a(f"s_add_u32 s41, s41, {GP_ML}")
    a(f"v_lshlrev_b32 v{VT}, 3, v0")
    a(f"v_mov_b32 v{VT+1}, 0")
    a("s_waitcnt lgkmcnt(0)")
    stamp(1, HST)
    a("s_barrier")
    for r in range(4):
        merge(r, L_SPB, L_MLB, VW + 32 * r)
        merge_ml(VW + 32 * r)
    stamp(2, HST)
    a("s_barrier")
    if "gp" not in skip:
        for r in range(4):
            store_payload(VW + 32 * r, V_PERM, 40)
            store_ml(VW + 32 * r, 41)
            if r < 3:
                a("s_add_u32 s40, s40, 8192")
                a("s_add_u32 s41, s41, 128")
    stamp(3, HST)
    a("s_barrier")
    if "tail" in skip: a("s_branch L_hend")
    st2(8, L_OBB, "st2b", tailsleep, V_GS)
    a(f"v_lshlrev_b32 v{VT}, 5, v0")
    a("s_nop 6")
    for i in range(4): select_pair(i, VW + 2*i, VW + 2*i + 1)
    a(f"ds_write_b128 v{VT}, v[{VW}:{VW+3}] offset:{L_YB}")
    a(f"ds_write_b128 v{VT}, v[{VW+4}:{VW+7}] offset:{L_YB + 16}")
    a("s_waitcnt lgkmcnt(0)")
    stamp(4, HST)
    a("s_barrier")
    a.label("L_hend")
    a("s_waitcnt vmcnt(0)")
    a.label("L_end")
    a("s_endpgm")
    nagpr = 32 * D
    kernel_desc(a, MAIN, 256 + max(nagpr, 64), 256)
    gen_pre(a, preflags, diag)
    return a.text()

if __name__ == "__main__":
    import json
    kw = json.loads(sys.argv[2]) if len(sys.argv) > 2 else {}
    open(sys.argv[1], "w").write(gen(**kw))
```

```python
import sys

NAME = "gated_mix__mha_block_cached__gqa_block_cached__decode"

QA_G   = 0x000000
QBP_G  = 0x080000
QBF_G  = 0x100000
GP_G   = 0x110000
OA_G   = 0x190000
Y_G    = 0x1B0000
GP_ML  = 0x230000
OA_ML  = 0x234000
EPOCH  = 0x238000
DIAG   = 0x240000
WS_USED = 0x250000

L_QA, L_QB = 0, 256
L_SPA, L_SPB = 2048, 6144
L_MLA, L_MLB = 10240, 10496
L_OBA, L_OBB = 10752, 11264
L_G = 11776
L_YB = 11840
LDS_BYTES = 14336

SCALE = 0x3db504f3
LOG2E = 0x3fb8aa3b
SEL_LO, SEL_HI = 0x05040100, 0x07060302
TAGINC = 0x9e3779b9
NEG_INF = 0xff800000
NEG_BIG = 0xf149f2ca

class Asm:
    def __init__(self):
        self.L = []
        self.n = 0
    def __call__(self, s):
        self.L.append("  " + s)
    def label(self, s):
        self.L.append(s + ":")
    def raw(self, s):
        self.L.append(s)
    def uniq(self, p):
        self.n += 1
        return f"{p}_{self.n}"
    def text(self):
        return "\n".join(self.L) + "\n"

P_X, P_AK, P_AV, P_AWQ, P_AWO = 44, 46, 48, 50, 52
P_BK, P_BV, P_BWQ, P_BWO, P_GATE, P_OUT, P_DBG, P_WS = 56, 58, 60, 62, 64, 66, 68, 70

def gen(D=4, N0=16, diag=False, kvflags="nt", maxpoll=1 << 18, b0=True, b0b=True, batch1=None,
        noH=False, nocomp=0, skip=(), mimic=True, tailsleep=1, midsleep=8, qsleep=0,
        hoflags="sc1", stflags="sc1", qaack=False, stag=False):
    a = Asm()
    W, NH = 2, 2
    NWAVES = W + NH
    TA = 128 // W
    TB = 32 // W
    if batch1 is None: batch1 = max(1, D // 2)
    assert N0 % D == 0 and TB % D == 0 and (TA - N0) % D == 0
    a.raw(f"; @launch grid=(256,1,1) block=({64*NWAVES},1,1) lds={LDS_BYTES}")
    a.raw('.amdgcn_target "amdgcn-amd-amdhsa--gfx950"')
    a.raw(".text")
    a.raw(f".globl {NAME}_kernel")
    a.raw(".p2align 8")
    a.raw(f".type {NAME}_kernel,@function")
    a.label(f"{NAME}_kernel")
    a("s_cmp_ge_u32 s2, 256")
    a("s_cbranch_scc1 L_end")
    a("s_load_dwordx16 s[44:59], s[0:1], 0")
    a("s_load_dwordx8 s[60:67], s[0:1], 64")
    a("s_load_dwordx4 s[68:71], s[0:1], 96")
    if diag:
        a("s_memrealtime s[72:73]")
        a("s_memtime s[80:81]")
    a("v_lshrrev_b32 v1, 6, v0")
    a("v_and_b32 v0, 63, v0")
    a("v_and_b32 v3, 15, v0")
    a("v_readfirstlane_b32 s3, v1")
    a("v_lshrrev_b32 v2, 4, v0")
    a("s_waitcnt lgkmcnt(0)")
    a(f"s_cmp_ge_u32 s3, {W}")
    a("s_cbranch_scc1 L_H")

    def stamp(idx, r0, start=False):
        if not diag: return
        if not start:
            a("s_memrealtime s[74:75]")
            a("s_waitcnt lgkmcnt(0)")
            a(f"v_mov_b32 v{r0}, s74")
        else:
            a(f"v_mov_b32 v{r0}, s72")
        a(f"s_lshl_b32 s76, s2, 2")
        a("s_add_u32 s76, s76, s3")
        a("s_lshl_b32 s76, s76, 6")
        a(f"s_add_u32 s76, s76, {DIAG + idx*4}")
        a(f"v_mov_b32 v{r0+1}, s76")
        a("s_mov_b64 s[78:79], exec")
        a("s_mov_b64 exec, 1")
        a(f"global_store_dword v{r0+1}, v{r0}, s[{P_WS}:{P_WS+1}]")
        a("s_mov_b64 exec, s[78:79]")

    S_KC, S_VC = 8, 12
    S_KA, S_VA, S_KB, S_VB = 16, 18, 20, 22
    S_OFF, S_OFF2, S_IT, S_SEG = 24, 25, 26, 27
    S_SCALE, S_L2E, S_SELLO, S_SELHI, S_MASKHI = 28, 29, 30, 31, 32
    S_M4 = 36
    V_KO, V_VO = 4, 5
    V_P, V_ML, V_QA, V_QB = 6, 7, 8, 9
    V_Q = 12
    V_S = 28
    V_PB = 36
    V_ST = 40
    V_O = 48
    V_M, V_L, V_MN, V_AL, V_MLG = 80, 81, 82, 83, 84
    V_T = 86
    V_RING = 96
    SST = 250
    def KR(d): return 32 * d
    def VR(d): return V_RING + 32 * d
    fl = (" " + kvflags) if kvflags else ""

    a(f"; ---------------- S waves ----------------")
    a("s_and_b32 s4, s2, 127")
    a("s_lshl_b32 s4, s4, 21")
    a("s_lshr_b32 s5, s2, 7")
    a("s_lshl_b32 s5, s5, 20")
    a("s_add_u32 s4, s4, s5")
    for (dst, p) in ((S_KC, P_AK), (S_VC, P_AV)):
        a(f"s_add_u32 s{dst}, s{p}, s4")
        a(f"s_addc_u32 s{dst+1}, s{p+1}, 0")
        a(f"s_and_b32 s{dst+1}, s{dst+1}, 0xffff")
        a(f"s_mov_b32 s{dst+2}, {1 << 20}")
        a(f"s_mov_b32 s{dst+3}, 0x20000")
    a(f"s_lshl_b32 s{S_OFF}, s3, 13")
    a(f"s_add_u32 s{S_OFF2}, s{S_OFF}, 4096")
    a(f"v_lshlrev_b32 v{V_KO}, 8, v3")
    a(f"v_lshl_add_u32 v{V_KO}, v2, 4, v{V_KO}")
    a(f"v_lshlrev_b32 v{V_VO}, 10, v2")
    a(f"v_lshl_add_u32 v{V_VO}, v3, 4, v{V_VO}")
    def issueK(d):
        for t in range(8):
            so = S_OFF if t < 4 else S_OFF2
            r = KR(d) + 4 * t
            a(f"buffer_load_dwordx4 a[{r}:{r+3}], v{V_KO}, s[{S_KC}:{S_KC+3}], s{so} offen offset:{(t%4)*64}{fl}")
    def issueV(d):
        for t in range(8):
            so = S_OFF if t < 4 else S_OFF2
            r = VR(d) + 4 * t
            a(f"buffer_load_dwordx4 v[{r}:{r+3}], v{V_VO}, s[{S_VC}:{S_VC+3}], s{so} offen offset:{(t%4)*256}{fl}")
    def advance():
        a(f"s_add_u32 s{S_OFF}, s{S_OFF}, {W*8192}")
        a(f"s_add_u32 s{S_OFF2}, s{S_OFF2}, {W*8192}")
    if b0: a("s_barrier")
    for d in range(batch1):
        issueK(d); issueV(d); advance()
    a(f"s_mov_b32 s{S_KA}, s{S_KC}")
    a(f"s_mov_b32 s{S_KA+1}, s{S_KC+1}")
    a(f"s_mov_b32 s{S_VA}, s{S_VC}")
    a(f"s_mov_b32 s{S_VA+1}, s{S_VC+1}")
    a("s_lshl_b32 s5, s2, 18")
    for (dst, p) in ((S_KB, P_BK), (S_VB, P_BV)):
        a(f"s_add_u32 s{dst}, s{p}, s5")
        a(f"s_addc_u32 s{dst+1}, s{p+1}, 0")
        a(f"s_and_b32 s{dst+1}, s{dst+1}, 0xffff")
    def set_issue(kb, vb, size, tile0):
        a(f"s_mov_b32 s{S_KC}, s{kb}")
        a(f"s_mov_b32 s{S_KC+1}, s{kb+1}")
        a(f"s_mov_b32 s{S_KC+2}, {size}")
        a(f"s_mov_b32 s{S_VC}, s{vb}")
        a(f"s_mov_b32 s{S_VC+1}, s{vb+1}")
        a(f"s_mov_b32 s{S_VC+2}, {size}")
        a(f"s_lshl_b32 s{S_OFF}, s3, 13")
        if tile0: a(f"s_add_u32 s{S_OFF}, s{S_OFF}, {tile0 * W * 8192}")
        a(f"s_add_u32 s{S_OFF2}, s{S_OFF}, 4096")
    a(f"s_mov_b32 s{S_SCALE}, {SCALE:#x}")
    a(f"s_mov_b32 s{S_L2E}, {LOG2E:#x}")
    a(f"s_mov_b32 s{S_SELLO}, {SEL_LO:#x}")
    a(f"s_mov_b32 s{S_SELHI}, {SEL_HI:#x}")
    a(f"s_mov_b32 s{S_MASKHI}, 0xffff0000")
    a(f"s_mov_b32 s{S_M4}, 0x000f000f")
    a(f"s_mov_b32 s{S_M4+1}, 0x000f000f")
    a(f"v_and_b32 v10, 3, v3")
    a(f"s_lshl_b32 s4, s3, 11")
    a(f"v_lshlrev_b32 v{V_P}, 9, v10")
    a(f"v_lshl_add_u32 v{V_P}, v2, 4, v{V_P}")
    a(f"v_add_u32 v{V_P}, s4, v{V_P}")
    a(f"s_lshl_b32 s4, s3, 7")
    a(f"v_lshlrev_b32 v{V_ML}, 5, v10")
    a(f"v_lshl_add_u32 v{V_ML}, v2, 2, v{V_ML}")
    a(f"v_add_u32 v{V_ML}, s4, v{V_ML}")
    a(f"v_lshlrev_b32 v{V_QA}, 4, v2")
    a(f"v_lshl_add_u32 v{V_QB}, v10, 8, v{V_QA}")
    def init_state():
        for i in range(32): a(f"v_mov_b32 v{V_O+i}, 0")
        a(f"v_mov_b32 v{V_M}, {NEG_INF:#x}")
        a(f"v_mov_b32 v{V_MLG}, {NEG_INF:#x}")
        a(f"v_mov_b32 v{V_L}, 0")
    def load_q(vaddr, base):
        for s in range(4):
            a(f"ds_read_b128 v[{V_Q+4*s}:{V_Q+4*s+3}], v{vaddr} offset:{base + 64*s}")
    init_state()
    if b0b: a("s_barrier")
    for d in range(batch1, D):
        if stag:
            a(f"s_waitcnt vmcnt({16 * batch1 - 8})")
        issueK(d)
        if stag:
            a(f"s_waitcnt vmcnt({16 * batch1 - 8})")
        issueV(d); advance()
    stamp(0, SST, start=True)
    a("s_barrier")
    load_q(V_QA, L_QA)
    a(f"s_mov_b32 s{S_SEG}, 0")
    a(f"s_mov_b32 s{S_IT}, {N0 // D}")
    a("s_waitcnt lgkmcnt(0)")
    stamp(1, SST)
    a.label("L_sloop")
    a(f"s_cmp_eq_u32 s{S_IT}, 1")
    a("s_cbranch_scc0 L_noswitch")
    a(f"s_cmp_eq_u32 s{S_SEG}, 0")
    a("s_cbranch_scc0 L_sw1")
    set_issue(S_KB, S_VB, 1 << 18, 0)
    a("s_branch L_noswitch")
    a.label("L_sw1")
    a(f"s_cmp_eq_u32 s{S_SEG}, 1")
    a("s_cbranch_scc0 L_sw2")
    set_issue(S_KA, S_VA, 1 << 20, N0)
    a("s_branch L_noswitch")
    a.label("L_sw2")
    a(f"s_mov_b32 s{S_KC+2}, 0")
    a(f"s_mov_b32 s{S_VC+2}, 0")
    a("s_barrier")
    a.label("L_noswitch")
    WAITN = 16 * D - 8
    T = V_T
    for d in range(D):
        a(f"; ---- tile slot {d}")
        a(f"s_waitcnt vmcnt({WAITN})")
        if nocomp:
            issueK(d)
            a(f"s_waitcnt vmcnt({WAITN})")
            issueV(d)
            advance()
            continue
        for s in range(4):
            for h in range(2):
                kr = KR(d) + 4 * (4 * h + s)
                c = "0" if s == 0 else f"v[{V_S+4*h}:{V_S+4*h+3}]"
                a(f"v_mfma_f32_16x16x32_bf16 v[{V_S+4*h}:{V_S+4*h+3}], a[{kr}:{kr+3}], v[{V_Q+4*s}:{V_Q+4*s+3}], {c}")
        issueK(d)
        a("s_nop 1")
        S = [V_S + i for i in range(8)]
        if mimic:
            for i in range(4): a(f"v_cvt_pk_bf16_f32 v{T+i}, v{S[2*i]}, v{S[2*i+1]}")
            for i in range(4):
                a(f"v_lshlrev_b32 v{S[2*i]}, 16, v{T+i}")
                a(f"v_and_b32 v{S[2*i+1]}, s{S_MASKHI}, v{T+i}")
            for i in range(8): a(f"v_mul_f32 v{S[i]}, s{S_SCALE}, v{S[i]}")
            for i in range(4): a(f"v_cvt_pk_bf16_f32 v{T+i}, v{S[2*i]}, v{S[2*i+1]}")
            for i in range(4):
                a(f"v_lshlrev_b32 v{S[2*i]}, 16, v{T+i}")
                a(f"v_and_b32 v{S[2*i+1]}, s{S_MASKHI}, v{T+i}")
        else:
            for i in range(8): a(f"v_mul_f32 v{S[i]}, s{S_SCALE}, v{S[i]}")
        a(f"v_max3_f32 v{T}, v{S[0]}, v{S[1]}, v{S[2]}")
        a(f"v_max3_f32 v{T+1}, v{S[3]}, v{S[4]}, v{S[5]}")
        a(f"v_max3_f32 v{T}, v{T}, v{S[6]}, v{S[7]}")
        a(f"v_max_f32 v{T}, v{T}, v{T+1}")
        a(f"v_mov_b32 v{T+1}, v{T}")
        a("s_nop 1")
        a(f"v_permlane32_swap_b32 v{T}, v{T+1}")
        a(f"v_max_f32 v{T}, v{T}, v{T+1}")
        a(f"v_mov_b32 v{T+1}, v{T}")
        a("s_nop 1")
        a(f"v_permlane16_swap_b32 v{T}, v{T+1}")
        a(f"v_max_f32 v{T}, v{T}, v{T+1}")
        a(f"v_max_f32 v{V_MN}, v{V_M}, v{T}")
        a(f"v_cmp_gt_f32 vcc, v{V_MN}, v{V_M}")
        lab = a.uniq("L_nors")
        a(f"s_cbranch_vccz {lab}")
        a(f"v_sub_f32 v{T+1}, v{V_M}, v{V_MN}")
        a(f"v_mul_f32 v{T+1}, s{S_L2E}, v{T+1}")
        a(f"v_exp_f32 v{V_AL}, v{T+1}")
        a(f"v_mov_b32 v{V_M}, v{V_MN}")
        a(f"v_mul_f32 v{V_MLG}, s{S_L2E}, v{V_MN}")
        a(f"v_mul_f32 v{V_L}, v{V_L}, v{V_AL}")
        for i in range(32): a(f"v_mul_f32 v{V_O+i}, v{V_O+i}, v{V_AL}")
        a.label(lab)
        for i in range(8): a(f"v_fma_f32 v{S[i]}, v{S[i]}, s{S_L2E}, -v{V_MLG}")
        for i in range(8): a(f"v_exp_f32 v{S[i]}, v{S[i]}")
        a(f"v_add_f32 v{T}, v{S[0]}, v{S[1]}")
        a(f"v_add_f32 v{T+1}, v{S[2]}, v{S[3]}")
        a(f"v_add_f32 v{T+2}, v{S[4]}, v{S[5]}")
        a(f"v_add_f32 v{T+3}, v{S[6]}, v{S[7]}")
        for i in range(4): a(f"v_cvt_pk_bf16_f32 v{V_PB+i}, v{S[2*i]}, v{S[2*i+1]}")
        a(f"v_add_f32 v{T}, v{T}, v{T+1}")
        a(f"v_add_f32 v{T+2}, v{T+2}, v{T+3}")
        a(f"v_add_f32 v{T}, v{T}, v{T+2}")
        a(f"v_add_f32 v{V_L}, v{V_L}, v{T}")
        a(f"s_waitcnt vmcnt({WAITN})")
        def perms(j):
            st = V_ST + 4 * (j & 1)
            r, hh = j >> 1, j & 1
            sel = S_SELHI if hh else S_SELLO
            for u in range(4):
                lo = VR(d) + 4 * (2 * u) + r
                hi = VR(d) + 4 * (2 * u + 1) + r
                a(f"v_perm_b32 v{st+u}, v{hi}, v{lo}, s{sel}")
        def pv(j):
            st = V_ST + 4 * (j & 1)
            a(f"v_mfma_f32_16x16x32_bf16 v[{V_O+4*j}:{V_O+4*j+3}], v[{st}:{st+3}], v[{V_PB}:{V_PB+3}], v[{V_O+4*j}:{V_O+4*j+3}]")
        perms(0); perms(1)
        for j in range(8):
            if j == 7: a("s_nop 0")
            pv(j)
            if j + 2 < 8: perms(j + 2)
        issueV(d)
        advance()
    a(f"s_sub_u32 s{S_IT}, s{S_IT}, 1")
    a(f"s_cmp_lg_u32 s{S_IT}, 0")
    a("s_cbranch_scc1 L_sloop")
    a("s_nop 7")
    a(f"s_cmp_eq_u32 s{S_SEG}, 1")
    a(f"s_cselect_b32 s4, {L_SPB - L_SPA}, 0")
    a(f"s_cselect_b32 s5, {L_MLB - L_MLA}, 0")
    a(f"v_add_u32 v{T}, s4, v{V_P}")
    a(f"v_add_u32 v{T+1}, s5, v{V_ML}")
    a(f"s_mov_b64 exec, s[{S_M4}:{S_M4+1}]")
    for j in range(8):
        a(f"ds_write_b128 v{T}, v[{V_O+4*j}:{V_O+4*j+3}] offset:{L_SPA + 64*j}")
    a(f"ds_write_b32 v{T+1}, v{V_L} offset:{L_MLA}")
    a(f"ds_write_b32 v{T+1}, v{V_M} offset:{L_MLA + 16}")
    a("s_mov_b64 exec, -1")
    a("s_waitcnt lgkmcnt(0)")
    a(f"s_cmp_eq_u32 s{S_SEG}, 0")
    a("s_cbranch_scc0 L_se1")
    stamp(2, SST)
    a("s_barrier")
    load_q(V_QB, L_QB)
    init_state()
    a(f"s_mov_b32 s{S_SEG}, 1")
    a(f"s_mov_b32 s{S_IT}, {TB // D}")
    a("s_waitcnt lgkmcnt(0)")
    a("s_branch L_sloop")
    a.label("L_se1")
    a(f"s_cmp_eq_u32 s{S_SEG}, 1")
    a("s_cbranch_scc0 L_se2")
    stamp(3, SST)
    a("s_barrier")
    load_q(V_QA, L_QA)
    for j in range(8):
        a(f"ds_read_b128 v[{V_O+4*j}:{V_O+4*j+3}], v{V_P} offset:{L_SPA + 64*j}")
    a(f"ds_read_b32 v{V_L}, v{V_ML} offset:{L_MLA}")
    a(f"ds_read_b32 v{V_M}, v{V_ML} offset:{L_MLA + 16}")
    a(f"s_mov_b32 s{S_SEG}, 2")
    a(f"s_mov_b32 s{S_IT}, {(TA - N0) // D}")
    a("s_waitcnt lgkmcnt(0)")
    a(f"v_mul_f32 v{V_MLG}, s{S_L2E}, v{V_M}")
    a("s_branch L_sloop")
    a.label("L_se2")
    if diag:
        a("s_memtime s[82:83]")
        a("s_waitcnt lgkmcnt(0)")
        a("s_sub_u32 s82, s82, s80")
        a("s_memrealtime s[74:75]")
        a("s_waitcnt lgkmcnt(0)")
        a("s_sub_u32 s74, s74, s72")
        a(f"v_mov_b32 v{SST+2}, s82")
        a(f"v_mov_b32 v{SST+3}, s74")
        a("s_lshl_b32 s76, s2, 2")
        a("s_add_u32 s76, s76, s3")
        a("s_lshl_b32 s76, s76, 6")
        a(f"s_add_u32 s76, s76, {DIAG + 5*4}")
        a(f"v_mov_b32 v{SST+4}, s76")
        a("s_mov_b64 exec, 1")
        a(f"global_store_dwordx2 v{SST+4}, v[{SST+2}:{SST+3}], s[{P_WS}:{P_WS+1}]")
        a("s_mov_b64 exec, -1")
    stamp(4, SST)
    a("s_barrier")
    a("s_waitcnt vmcnt(0)")
    a("s_endpgm")

    H_WS, H_W, H_X = 8, 12, 16
    H_T = 20
    H_G1, H_G2, H_G3 = 22, 24, 26
    H_SELLO, H_SELHI, H_L2E = 28, 29, 30
    H_SO = 31
    H_CNT = 32
    H_h, H_b = 34, 35
    H_dh, H_cg, H_i2 = 36, 37, 38
    H_MHI = 39
    H_TB = 84
    H_ST = 88
    VC, VG = 3, 2
    V_L16 = 4
    V_WOFF = 5
    VT = 6
    VX = 8
    V_TV = 16
    V_PERM = 17
    V_GS = 18
    V_B512 = 19
    V_MR = 20
    V_MM = 21
    HST = 22
    VW = 24
    VST = 152
    VD = 160
    VWQ = 192
    ho = hoflags; sf = stflags

    def srd(dst, p, size):
        a(f"s_mov_b32 s{dst}, s{p}")
        a(f"s_and_b32 s{dst+1}, s{p+1}, 0xffff")
        a(f"s_mov_b32 s{dst+2}, {size}")
        a(f"s_mov_b32 s{dst+3}, 0x20000")

    def check(lab, quads=(), fulltags=(), sleep=0):
        acc, accf = VST, VST + 1
        done = a.uniq("L_ok")
        first = True
        for q in quads:
            for i in range(4):
                if first: a(f"v_xor_b32 v{acc}, s{H_TB+i}, v{q+i}"); first = False
                else: a(f"v_bitop3_b32 v{acc}, v{acc}, v{q+i}, s{H_TB+i} bitop3:0xf6")
        if quads: a(f"v_and_b32 v{acc}, 0xff, v{acc}")
        for r in fulltags:
            if first: a(f"v_xor_b32 v{acc}, s{H_T}, v{r}"); first = False
            else: a(f"v_bitop3_b32 v{acc}, v{acc}, v{r}, s{H_T} bitop3:0xf6")
        a(f"v_cmp_ne_u32 vcc, 0, v{acc}")
        a(f"s_cbranch_vccz {done}")
        a(f"s_sub_u32 s{H_CNT}, s{H_CNT}, 1")
        a(f"s_cmp_eq_u32 s{H_CNT}, 0")
        a(f"s_cbranch_scc1 {done}")
        if sleep: a(f"s_sleep {sleep}")
        a(f"s_branch {lab}")
        a.label(done)

    def tag4(dst, src=None):
        src = [dst + i for i in range(4)] if src is None else src
        for i in range(4):
            a(f"v_perm_b32 v{dst+i}, v{src[i]}, v{V_TV}, s{H_ST+i}")

    def wt_tile(wbase, areg, first):
        def perms(j):
            st = VST + 4 * (j & 1)
            r, hh = j >> 1, j & 1
            sel = H_SELHI if hh else H_SELLO
            for u in range(4):
                lo = wbase + 4 * (2 * u) + r
                hi = wbase + 4 * (2 * u + 1) + r
                a(f"v_perm_b32 v{st+u}, v{hi}, v{lo}, s{sel}")
        def mm(j):
            st = VST + 4 * (j & 1)
            c = "0" if first else f"v[{VD+4*j}:{VD+4*j+3}]"
            a(f"v_mfma_f32_16x16x32_bf16 v[{VD+4*j}:{VD+4*j+3}], v[{areg}:{areg+3}], v[{st}:{st+3}], {c}")
        perms(0); perms(1)
        for j in range(8):
            if j == 7: a("s_nop 0")
            mm(j)
            if j + 2 < 8: perms(j + 2)

    def select_batch(dst):
        for j in range(8): a(f"v_cndmask_b32 v{dst+j}, v{VD+4*j}, v{VD+4*j+1}, s[{H_G1}:{H_G1+1}]")
        for j in range(8): a(f"v_cndmask_b32 v{dst+j}, v{dst+j}, v{VD+4*j+2}, s[{H_G2}:{H_G2+1}]")
        for j in range(8): a(f"v_cndmask_b32 v{dst+j}, v{dst+j}, v{VD+4*j+3}, s[{H_G3}:{H_G3+1}]")

    def xsum(regs, tmp, sw):
        for i, r in enumerate(regs): a(f"v_mov_b32 v{tmp+i}, v{r}")
        if len(regs) < 3: a("s_nop 1")
        for i, r in enumerate(regs): a(f"v_permlane{sw}_swap_b32 v{r}, v{tmp+i}")
        for i, r in enumerate(regs): a(f"v_add_f32 v{r}, v{r}, v{tmp+i}")

    def read_tag():
        a(f"v_readfirstlane_b32 s{H_T}, v{VT+1}")
        a("s_nop 3")
        a(f"s_add_u32 s{H_T}, s{H_T}, {TAGINC:#x}")
        for i in range(4): a(f"s_bfe_u32 s{H_TB+i}, s{H_T}, {0x80000 + 8*i:#x}")
        a(f"v_mov_b32 v{V_TV}, s{H_T}")

    def qproj_loads(pw):
        srd(H_W, pw, 4 << 20)
        a(f"s_lshr_b32 s6, s2, 5")
        a(f"v_and_b32 v{VT}, 3, v{VC}")
        a(f"v_lshlrev_b32 v{VT}, 10, v{VT}")
        a(f"v_lshl_add_u32 v{VT}, v{VG}, 4, v{VT}")
        a(f"v_lshlrev_b32 v{V_WOFF}, 16, v{VG}")
        a(f"v_lshl_add_u32 v{V_WOFF}, v{VC}, 4, v{V_WOFF}")
        a(f"s_lshl_b32 s7, s6, 7")
        a(f"s_lshl_b32 s{H_SO}, s6, 19")
        a(f"s_lshl_b32 s4, s{H_h}, 8")
        a(f"s_add_u32 s{H_SO}, s{H_SO}, s4")
        a(f"buffer_load_dwordx4 v[{VX}:{VX+3}], v{VT}, s[{H_X}:{H_X+3}], s7 offen nt")
        a(f"buffer_load_dwordx4 v[{VX+4}:{VX+7}], v{VT}, s[{H_X}:{H_X+3}], s7 offen offset:64 nt")
        for tau in range(2):
            for t in range(8):
                r = VW + 32 * tau + 4 * t
                a(f"buffer_load_dwordx4 v[{r}:{r+3}], v{V_WOFF}, s[{H_W}:{H_W+3}], s{H_SO} offen nt")
                if not (tau == 1 and t == 7):
                    step = 8192 if t < 7 else (32 - 7) * 8192
                    a(f"s_add_u32 s{H_SO}, s{H_SO}, {step}")
    def qproj_rest(dst, first):
        a(f"s_lshl_b32 s7, s{H_h}, 3")
        a("s_add_u32 s7, s7, s6")
        a("s_lshl_b32 s7, s7, 11")
        if dst: a(f"s_add_u32 s7, s7, {dst}")
        a("s_waitcnt vmcnt(8)")
        wt_tile(VW, VX, True)
        a("s_waitcnt vmcnt(0)")
        wt_tile(VW + 32, VX + 4, False)
        if first: read_tag()
        else: a("s_nop 7")
        select_batch(VW)
        for u in range(2):
            tag4(VW + 4*u)
            a(f"buffer_store_dwordx4 v[{VW+4*u}:{VW+4*u+3}], v{V_B512}, s[{H_WS}:{H_WS+3}], s7 offen offset:{u*256} {sf}")

    def merge(q0, sp, ml, r0):
        for w in range(W):
            a(f"ds_read_b128 v[{q0+8+4*w}:{q0+8+4*w+3}], v{V_MR} offset:{sp + w*2048 + r0*512}")
            a(f"ds_read_b128 v[{q0+16+4*w}:{q0+16+4*w+3}], v{V_MM} offset:{ml + w*128 + r0*32}")
            a(f"ds_read_b32 v{q0+24+w}, v{V_MM} offset:{ml + w*128 + r0*32 + 16}")
        a("s_waitcnt lgkmcnt(0)")
        M = q0 + 4; F = q0 + 26; LL = q0 + 6
        a(f"v_max_f32 v{M}, v{q0+24}, v{q0+25}")
        a(f"v_max_f32 v{M}, {NEG_BIG:#x}, v{M}")
        for w in range(W): a(f"v_sub_f32 v{F+w}, v{q0+24+w}, v{M}")
        for w in range(W): a(f"v_mul_f32 v{F+w}, s{H_L2E}, v{F+w}")
        for w in range(W): a(f"v_exp_f32 v{F+w}, v{F+w}")
        for w in range(W):
            l0 = q0 + 16 + 4 * w
            a(f"v_add_f32 v{l0}, v{l0}, v{l0+1}")
            a(f"v_add_f32 v{l0+2}, v{l0+2}, v{l0+3}")
        for i in range(4): a(f"v_mul_f32 v{q0+i}, v{F}, v{q0+8+i}")
        for i in range(4): a(f"v_fmac_f32 v{q0+i}, v{F+1}, v{q0+12+i}")
        tag4(q0)
    def merge_ml(q0):
        M = q0 + 4; F = q0 + 26; LL = q0 + 6
        for w in range(W):
            l0 = q0 + 16 + 4 * w
            a(f"v_add_f32 v{l0}, v{l0}, v{l0+2}")
        a(f"v_mov_b32 v{M+1}, s{H_T}")
        a(f"v_mul_f32 v{LL}, v{F}, v{q0+16}")
        a(f"v_mov_b32 v{M+3}, s{H_T}")
        a(f"v_fmac_f32 v{LL}, v{F+1}, v{q0+20}")

    def perm_addr(headstep):
        a(f"v_bfe_u32 v{VST}, v0, 1, 1")
        a(f"v_lshlrev_b32 v{V_PERM}, 8, v{VST}")
        a(f"v_bfe_u32 v{VST}, v0, 2, 3")
        a(f"v_lshl_add_u32 v{V_PERM}, v{VST}, 5, v{V_PERM}")
        a(f"v_and_b32 v{VST}, 1, v0")
        a(f"v_lshl_add_u32 v{V_PERM}, v{VST}, 4, v{V_PERM}")
        a(f"v_lshrrev_b32 v{VST}, 5, v0")
        a(f"v_and_b32 v{VST+1}, 31, v0")
        a(f"v_lshlrev_b32 v{V_MR}, 4, v{VST+1}")
        if headstep:
            a(f"v_mul_u32_u24 v{VST+1}, {headstep}, v{VST}")
            a(f"v_add_u32 v{V_PERM}, v{V_PERM}, v{VST+1}")
            a(f"v_lshl_add_u32 v{V_MR}, v{VST}, 9, v{V_MR}")
            a(f"v_lshlrev_b32 v{V_MM}, 5, v{VST}")
        else:
            a(f"v_mov_b32 v{V_MM}, 0")

    def wpre(pw):
        srd(H_W, pw, 4 << 20)
        a(f"v_lshlrev_b32 v{V_WOFF}, 10, v{VG}")
        a(f"v_lshl_add_u32 v{V_WOFF}, v{VC}, 4, v{V_WOFF}")
        a(f"s_lshl_b32 s4, s{H_h}, 17")
        a(f"s_lshl_b32 s5, s{H_dh}, 16")
        a("s_add_u32 s4, s4, s5")
        a(f"s_lshl_b32 s5, s{H_cg}, 8")
        a("s_add_u32 s4, s4, s5")
        for tau in range(2):
            for t in range(8):
                r = VW + 32 * tau + 4 * t
                a(f"s_add_u32 s{H_SO}, s4, {(8*t + 4*tau)*1024}")
                a(f"buffer_load_dwordx4 v[{r}:{r+3}], v{V_WOFF}, s[{H_W}:{H_W+3}], s{H_SO} offen nt")
        for tau in range(2):
            a(f"s_waitcnt vmcnt({8 * (1 - tau)})")
            for j in range(8):
                r, hh = j >> 1, j & 1
                sel = H_SELHI if hh else H_SELLO
                for u in range(4):
                    lo = VW + 32 * tau + 4 * (2 * u) + r
                    hi = VW + 32 * tau + 4 * (2 * u + 1) + r
                    a(f"v_perm_b32 v{VWQ + 32*tau + 4*j + u}, v{hi}, v{lo}, s{sel}")

    VGP, VGM = VX, VX + 1
    def st2_addr(NP, pbase, mlbase):
        a(f"v_mul_u32_u24 v{VGP}, {32*NP*512}, v{VG}")
        a(f"v_lshl_add_u32 v{VGP}, v{VC}, 4, v{VGP}")
        a(f"v_mul_u32_u24 v{VGM}, {32*NP*16}, v{VG}")
        a(f"v_and_b32 v{VST}, {NP-1}, v{VC}")
        a(f"v_lshl_add_u32 v{VGM}, v{VST}, 4, v{VGM}")
        a(f"s_mul_i32 s42, s{H_h}, {NP*512}")
        a(f"s_lshl_b32 s5, s{H_dh}, 8")
        a("s_add_u32 s42, s42, s5")
        a(f"s_add_u32 s42, s42, {pbase}")
        a(f"s_mul_i32 s43, s{H_h}, {NP*16}")
        a(f"s_add_u32 s43, s43, {mlbase}")

    def st2(NP, ob, name, sleep, light):
        Y = VW
        ML = VW + 4 * NP
        if light:
            lab = f"L_{name}_lp"
            a.label(lab)
            a(f"buffer_load_dwordx4 v[{ML}:{ML+3}], v{VGM}, s[{H_WS}:{H_WS+3}], s43 offen {ho}")
            a("s_waitcnt vmcnt(0)")
            check(lab, fulltags=[ML+1, ML+3], sleep=sleep)
        lab = f"L_{name}_g"
        a.label(lab)
        if not light:
            a(f"buffer_load_dwordx4 v[{ML}:{ML+3}], v{VGM}, s[{H_WS}:{H_WS+3}], s43 offen {ho}")
        for p in range(NP):
            a(f"buffer_load_dwordx4 v[{Y+4*p}:{Y+4*p+3}], v{VGP}, s[{H_WS}:{H_WS+3}], s42 offen offset:{p*512} {ho}")
        a("s_waitcnt vmcnt(0)")
        check(lab, quads=[Y + 4*p for p in range(NP)], fulltags=([] if light else [ML+1, ML+3]), sleep=sleep)
        MM, F, LS = VST + 2, VST + 3, VST + 4
        steps = ["quad_perm:[1,0,3,2]"] + (["quad_perm:[2,3,0,1]", "row_half_mirror"] if NP == 8 else [])
        a(f"v_mov_b32 v{MM}, v{ML}")
        for st in steps:
            a("s_nop 1")
            a(f"v_max_f32_dpp v{MM}, v{MM}, v{MM} {st} row_mask:0xf bank_mask:0xf")
        a(f"v_sub_f32 v{F}, v{ML}, v{MM}")
        a(f"v_mul_f32 v{F}, s{H_L2E}, v{F}")
        a(f"v_exp_f32 v{F}, v{F}")
        a(f"v_lshlrev_b32 v{VT}, 3, v0")
        a(f"v_mul_f32 v{LS}, v{F}, v{ML+2}")
        for st in steps:
            a("s_nop 1")
            a(f"v_add_f32_dpp v{LS}, v{LS}, v{LS} {st} row_mask:0xf bank_mask:0xf")
        a(f"v_rcp_f32 v{LS}, v{LS}")
        a(f"v_mul_f32 v{F}, v{V_GS}, v{F}")
        a(f"v_and_b32 v{VT+1}, 3, v{VC}")
        a(f"v_mul_f32 v{F}, v{F}, v{LS}")
        a(f"v_lshlrev_b32 v{VT+1}, 7, v{VT+1}")
        a(f"v_lshl_add_u32 v{VT+1}, v{VG}, 4, v{VT+1}")
        O = VST + 4
        for i in range(4):
            a(f"v_mul_f32_dpp v{O+i}, v{F}, v{Y+i} row_newbcast:0 row_mask:0xf bank_mask:0xf")
        for p in range(1, NP):
            for i in range(4):
                a(f"v_fmac_f32_dpp v{O+i}, v{F}, v{Y+4*p+i} row_newbcast:{p} row_mask:0xf bank_mask:0xf")
        a(f"v_cvt_pk_bf16_f32 v{O}, v{O}, v{O+1}")
        a(f"v_cvt_pk_bf16_f32 v{O+1}, v{O+2}, v{O+3}")
        a(f"ds_write_b64 v{VT}, v[{O}:{O+1}] offset:{ob}")
        a("s_waitcnt lgkmcnt(0)")
        for tau in range(2):
            a(f"ds_read_b128 v[{VX+4*tau}:{VX+4*tau+3}], v{VT+1} offset:{ob + 64*tau}")
        a("s_waitcnt lgkmcnt(0)")
        for tau in range(2):
            for j in range(8):
                c = "0" if tau == 0 else f"v[{VD+4*j}:{VD+4*j+3}]"
                wr = VWQ + 32 * tau + 4 * j
                a(f"v_mfma_f32_16x16x32_bf16 v[{VD+4*j}:{VD+4*j+3}], v[{VX+4*tau}:{VX+4*tau+3}], v[{wr}:{wr+3}], {c}")

    NB = 4 + (1 if b0 else 0) + (1 if b0b else 0) + 1
    a.label("L_H")
    a("; ---------------- H waves ----------------")
    if noH:
        for _ in range(NB): a("s_barrier")
        a("s_branch L_end")
    srd(H_WS, P_WS, WS_USED)
    srd(H_X, P_X, 4096)
    a(f"v_mov_b32 v{VT}, {EPOCH:#x}")
    a(f"buffer_load_dword v{VT+1}, v{VT}, s[{H_WS}:{H_WS+3}], 0 offen sc1")
    a(f"s_and_b32 s{H_h}, s2, 31")
    a(f"s_mov_b32 s{H_SELLO}, {SEL_LO:#x}")
    a(f"s_mov_b32 s{H_SELHI}, {SEL_HI:#x}")
    def h_consts():
        a(f"s_mov_b32 s{H_G1}, 0xffff0000")
        a(f"s_mov_b32 s{H_G1+1}, 0")
        a(f"s_mov_b32 s{H_G2}, 0")
        a(f"s_mov_b32 s{H_G2+1}, 0x0000ffff")
        a(f"s_mov_b32 s{H_G3}, 0")
        a(f"s_mov_b32 s{H_G3+1}, 0xffff0000")
        a(f"s_mov_b32 s{H_L2E}, {LOG2E:#x}")
        a(f"s_mov_b32 s{H_MHI}, 0xffff0000")
        a(f"s_mov_b32 s{H_CNT}, {maxpoll}")
        for i in range(4): a(f"s_mov_b32 s{H_ST+i}, {0x07060500 + i:#x}")
        a(f"s_lshr_b32 s{H_b}, s2, 5")
        a(f"s_and_b32 s{H_dh}, s{H_b}, 1")
        a(f"s_and_b32 s{H_b}, s{H_b}, 3")
        a(f"s_lshr_b32 s{H_cg}, s2, 6")
        a(f"s_lshl_b32 s{H_i2}, s{H_h}, 1")
        a(f"s_add_u32 s{H_i2}, s{H_i2}, s{H_dh}")
        a(f"v_lshlrev_b32 v{V_L16}, 4, v0")
        a(f"v_lshlrev_b32 v{V_B512}, 9, v{VG}")
        a(f"v_lshl_add_u32 v{V_B512}, v{VC}, 4, v{V_B512}")
    a(f"s_cmp_eq_u32 s3, {W}")
    a("s_cbranch_scc0 L_H1")

    qproj_loads(P_AWQ)
    if b0: a("s_barrier")
    stamp(0, HST, start=True)
    h_consts()
    qproj_rest(QA_G, True)
    stamp(1, HST)
    a(f"v_lshrrev_b32 v{VT}, 5, v0")
    a(f"v_lshlrev_b32 v{VT}, 11, v{VT}")
    a(f"v_and_b32 v{VT+1}, 31, v0")
    a(f"v_lshl_add_u32 v{VT}, v{VT+1}, 4, v{VT}")
    a(f"s_lshl_b32 s4, s{H_h}, 14")
    a(f"s_lshl_b32 s5, s{H_b}, 9")
    a("s_add_u32 s4, s4, s5")
    if QA_G: a(f"s_add_u32 s4, s4, {QA_G}")
    a("s_add_u32 s5, s4, 4096")
    a("s_add_u32 s6, s4, 8192")
    a("s_add_u32 s7, s4, 12288")
    if qaack: a("s_waitcnt vmcnt(0)")
    def qa_loads():
        for k in range(4):
            a(f"buffer_load_dwordx4 v[{VW+4*k}:{VW+4*k+3}], v{VT}, s[{H_WS}:{H_WS+3}], s{4+k} offen {ho}")
    qa_loads()
    if b0b: a("s_barrier")
    a("s_branch L_qa_first")
    a.label("L_qa_retry")
    qa_loads()
    a.label("L_qa_first")
    a("s_waitcnt vmcnt(0)")
    check("L_qa_retry", quads=[VW + 4*k for k in range(4)], sleep=qsleep)
    for i in range(4):
        a(f"v_add_f32 v{VW+i}, v{VW+i}, v{VW+4+i}")
        a(f"v_add_f32 v{VW+8+i}, v{VW+8+i}, v{VW+12+i}")
    for i in range(4): a(f"v_add_f32 v{VW+i}, v{VW+i}, v{VW+8+i}")
    xsum([VW + i for i in range(4)], VW + 4, "32")
    a(f"v_lshlrev_b32 v{VT}, 4, v{VC}")
    a(f"v_bfe_u32 v{VT+1}, v0, 4, 1")
    a(f"v_lshl_add_u32 v{VT}, v{VT+1}, 3, v{VT}")
    a(f"v_cvt_pk_bf16_f32 v{VW}, v{VW}, v{VW+1}")
    a(f"v_cvt_pk_bf16_f32 v{VW+1}, v{VW+2}, v{VW+3}")
    a(f"ds_write_b64 v{VT}, v[{VW}:{VW+1}] offset:{L_QA}")
    a("s_waitcnt lgkmcnt(0)")
    stamp(2, HST)
    a("s_barrier")
    if "wpre" not in skip: wpre(P_AWO)
    perm_addr(0)
    st2_addr(2, OA_G, OA_ML)
    a("s_lshr_b32 s5, s2, 7")
    a(f"s_lshl_b32 s6, s{H_b}, 5")
    a(f"s_add_u32 s6, s6, s{H_h}")
    a("s_lshl_b32 s6, s6, 1")
    a("s_add_u32 s6, s6, s5")
    a("s_lshl_b32 s40, s6, 9")
    a(f"s_add_u32 s40, s40, {OA_G}")
    a("s_lshl_b32 s41, s6, 4")
    a(f"s_add_u32 s41, s41, {OA_ML}")
    stamp(3, HST)
    a("s_barrier")
    a(f"v_lshlrev_b32 v{VT}, 3, v{VG}")
    a(f"ds_read_b32 v{V_GS}, v{VT} offset:{L_G}")
    a("s_waitcnt lgkmcnt(0)")
    a("s_barrier")
    a("s_barrier")
    a("s_barrier")
    stamp(4, HST)
    if "tail" in skip: a("s_branch L_hend")
    merge(VW, L_SPA, L_MLA, 0)
    a("s_mov_b32 exec_hi, 0")
    a(f"buffer_store_dwordx4 v[{VW}:{VW+3}], v{V_PERM}, s[{H_WS}:{H_WS+3}], s40 offen {sf}")
    a("s_mov_b64 exec, -1")
    merge_ml(VW)
    a("s_mov_b64 exec, 1")
    a(f"buffer_store_dwordx4 v[{VW+4}:{VW+7}], v{V_MM}, s[{H_WS}:{H_WS+3}], s41 offen {sf}")
    a("s_mov_b64 exec, -1")
    stamp(5, HST)
    st2(2, L_OBA, "st2a", tailsleep, False)
    a(f"s_lshl_b32 s4, s{H_cg}, 6")
    a(f"s_add_u32 s4, s4, s{H_i2}")
    a("s_lshl_b32 s4, s4, 11")
    a(f"s_add_u32 s4, s4, {Y_G}")
    a(f"v_lshlrev_b32 v{VT}, 5, v0")
    stamp(6, HST)
    a("s_barrier")
    a(f"ds_read_b128 v[{VW+8}:{VW+11}], v{VT} offset:{L_YB}")
    a(f"ds_read_b128 v[{VW+12}:{VW+15}], v{VT} offset:{L_YB + 16}")
    a("s_nop 3")
    select_batch(VW)
    a("s_waitcnt lgkmcnt(0)")
    for u in range(2):
        for i in range(4): a(f"v_add_f32 v{VW+4*u+i}, v{VW+4*u+i}, v{VW+8+4*u+i}")
        tag4(VW + 4*u)
        a(f"buffer_store_dwordx4 v[{VW+4*u}:{VW+4*u+3}], v{V_B512}, s[{H_WS}:{H_WS+3}], s4 offen offset:{u*256} {sf}")
    stamp(7, HST)
    a(f"v_lshrrev_b32 v{VT}, 1, v0")
    a(f"v_lshlrev_b32 v{VT}, 11, v{VT}")
    a(f"v_and_b32 v{VT+1}, 1, v0")
    a(f"v_lshl_add_u32 v{VT}, v{VT+1}, 4, v{VT}")
    a("s_bfe_u32 s4, s2, 0x20004")
    a("s_lshl_b32 s4, s4, 17")
    a("s_lshr_b32 s5, s2, 6")
    a("s_lshl_b32 s5, s5, 9")
    a("s_add_u32 s4, s4, s5")
    a("s_bfe_u32 s5, s2, 0x10003")
    a("s_lshl_b32 s5, s5, 8")
    a("s_add_u32 s4, s4, s5")
    a("s_and_b32 s5, s2, 7")
    a("s_lshl_b32 s5, s5, 5")
    a("s_add_u32 s4, s4, s5")
    a(f"s_add_u32 s4, s4, {Y_G}")
    a("s_add_u32 s5, s4, 65536")
    Y = VW + 16
    a.label("L_fin")
    a(f"buffer_load_dwordx4 v[{Y}:{Y+3}], v{VT}, s[{H_WS}:{H_WS+3}], s4 offen {ho}")
    a(f"buffer_load_dwordx4 v[{Y+4}:{Y+7}], v{VT}, s[{H_WS}:{H_WS+3}], s5 offen {ho}")
    a("s_lshr_b32 s6, s2, 6")
    a("s_lshl_b32 s6, s6, 10")
    a("s_bfe_u32 s7, s2, 0x20004")
    a("s_lshl_b32 s7, s7, 8")
    a("s_add_u32 s6, s6, s7")
    a("s_and_b32 s7, s2, 7")
    a("s_lshl_b32 s7, s7, 5")
    a("s_add_u32 s6, s6, s7")
    a("s_bfe_u32 s7, s2, 0x10003")
    a("s_lshl_b32 s7, s7, 3")
    a("s_add_u32 s6, s6, s7")
    srd(H_W, P_OUT, 4096)
    a("s_waitcnt vmcnt(0)")
    check("L_fin", quads=[Y, Y + 4], sleep=tailsleep)
    for i in range(4): a(f"v_add_f32 v{Y+i}, v{Y+i}, v{Y+4+i}")
    for st in ("quad_perm:[2,3,0,1]", "row_ror:4", "row_ror:8"):
        for i in range(4): a(f"v_add_f32_dpp v{Y+i}, v{Y+i}, v{Y+i} {st} row_mask:0xf bank_mask:0xf")
    xsum([Y + i for i in range(4)], Y + 4, "16")
    xsum([Y + i for i in range(4)], Y + 4, "32")
    a(f"v_lshlrev_b32 v{VT}, 4, v{VT+1}")
    a(f"v_cvt_pk_bf16_f32 v{Y}, v{Y}, v{Y+1}")
    a(f"v_cvt_pk_bf16_f32 v{Y+1}, v{Y+2}, v{Y+3}")
    a("s_mov_b64 exec, 3")
    a(f"buffer_store_dwordx2 v[{Y}:{Y+1}], v{VT}, s[{H_W}:{H_W+3}], s6 offen")
    a("s_cmp_eq_u32 s2, 0")
    a("s_cbranch_scc0 L_noep")
    a("s_mov_b64 exec, 1")
    a(f"v_mov_b32 v{VT}, {EPOCH:#x}")
    a(f"buffer_store_dword v{V_TV}, v{VT}, s[{H_WS}:{H_WS+3}], 0 offen sc1")
    a.label("L_noep")
    a("s_mov_b64 exec, -1")
    stamp(8, HST)
    a("s_branch L_hend")

    a.label("L_H1")
    if b0: a("s_barrier")
    stamp(0, HST, start=True)
    h_consts()
    a("s_waitcnt vmcnt(0)")
    read_tag()
    if b0b: a("s_barrier")
    a("s_barrier")
    if "j2" not in skip:
        qproj_loads(P_BWQ)
        qproj_rest(QBP_G, False)
    stamp(1, HST)
    if "wpre" not in skip: wpre(P_BWO)
    srd(H_W, P_GATE, 1024)
    for b in range(4):
        a(f"buffer_load_dwordx4 v[{VW+4*b}:{VW+4*b+3}], v{V_L16}, s[{H_X}:{H_X+3}], 0 offen offset:{b*1024} nt")
    GWR = VW + 16
    a(f"buffer_load_dwordx4 v[{GWR}:{GWR+3}], v{V_L16}, s[{H_W}:{H_W+3}], 0 offen nt")
    a("s_waitcnt vmcnt(0)")
    GW = VW + 20
    for i in range(4):
        a(f"v_lshlrev_b32 v{GW+2*i}, 16, v{GWR+i}")
        a(f"v_and_b32 v{GW+2*i+1}, s{H_MHI}, v{GWR+i}")
    XU = VW + 28
    Z = VW + 36
    for b in range(4):
        for i in range(4):
            a(f"v_lshlrev_b32 v{XU+2*i}, 16, v{VW+4*b+i}")
            a(f"v_and_b32 v{XU+2*i+1}, s{H_MHI}, v{VW+4*b+i}")
        for i in range(8): a(f"v_mul_f32 v{XU+i}, v{XU+i}, v{GW+i}")
        for i in range(4): a(f"v_cvt_pk_bf16_f32 v{VW+4*b+i}, v{XU+2*i}, v{XU+2*i+1}")
        for i in range(4):
            a(f"v_lshlrev_b32 v{XU+2*i}, 16, v{VW+4*b+i}")
            a(f"v_and_b32 v{XU+2*i+1}, s{H_MHI}, v{VW+4*b+i}")
        for i in range(4): a(f"v_add_f32 v{XU+i}, v{XU+i}, v{XU+4+i}")
        a(f"v_add_f32 v{XU}, v{XU}, v{XU+2}")
        a(f"v_add_f32 v{XU+1}, v{XU+1}, v{XU+3}")
        a(f"v_add_f32 v{Z+b}, v{XU}, v{XU+1}")
    for rot in (8, 4, 2, 1):
        a("s_nop 0")
        for b in range(4):
            a(f"v_add_f32_dpp v{Z+b}, v{Z+b}, v{Z+b} row_ror:{rot} row_mask:0xf bank_mask:0xf")
    xsum([Z + b for b in range(4)], Z + 4, "32")
    xsum([Z + b for b in range(4)], Z + 4, "16")
    for b in range(4): a(f"v_cvt_pk_bf16_f32 v{Z+b}, v{Z+b}, v{Z+b}")
    for b in range(4): a(f"v_lshlrev_b32 v{Z+b}, 16, v{Z+b}")
    for b in range(4): a(f"v_mul_f32 v{Z+b}, s{H_L2E}, v{Z+b}")
    for b in range(4): a(f"v_sub_f32 v{Z+b}, 0, v{Z+b}")
    for b in range(4): a(f"v_exp_f32 v{Z+b}, v{Z+b}")
    a("s_nop 0")
    for b in range(4): a(f"v_add_f32 v{Z+b}, 1.0, v{Z+b}")
    for b in range(4): a(f"v_rcp_f32 v{Z+b}, v{Z+b}")
    a("s_nop 0")
    for b in range(4): a(f"v_cvt_pk_bf16_f32 v{Z+b}, v{Z+b}, v{Z+b}")
    GG = Z + 8
    for b in range(4): a(f"v_lshlrev_b32 v{GG+2*b}, 16, v{Z+b}")
    for b in range(4): a(f"v_sub_f32 v{GG+2*b+1}, 1.0, v{GG+2*b}")
    for b in range(4): a(f"v_cvt_pk_bf16_f32 v{GG+2*b+1}, v{GG+2*b+1}, v{GG+2*b+1}")
    for b in range(4): a(f"v_lshlrev_b32 v{GG+2*b+1}, 16, v{GG+2*b+1}")
    a(f"v_mov_b32 v{VT}, 0")
    a("s_mov_b64 exec, 1")
    a(f"ds_write_b128 v{VT}, v[{GG}:{GG+3}] offset:{L_G}")
    a(f"ds_write_b128 v{VT}, v[{GG+4}:{GG+7}] offset:{L_G + 16}")
    a("s_mov_b64 exec, -1")
    a("s_waitcnt lgkmcnt(0)")
    a(f"v_lshlrev_b32 v{VT}, 3, v{VG}")
    a(f"ds_read_b32 v{V_GS}, v{VT} offset:{L_G + 4}")
    stamp(2, HST)
    if "j3" not in skip:
        a(f"v_lshlrev_b32 v{VT}, 11, v{VG}")
        a(f"v_lshl_add_u32 v{VT}, v{VC}, 4, v{VT}")
        a(f"s_lshl_b32 s4, s{H_h}, 14")
        a(f"s_lshl_b32 s5, s{H_b}, 9")
        a("s_add_u32 s4, s4, s5")
        a("s_lshr_b32 s6, s2, 7")
        a("s_lshl_b32 s5, s6, 8")
        a("s_add_u32 s4, s4, s5")
        a(f"s_add_u32 s4, s4, {QBP_G}")
        a("s_add_u32 s5, s4, 8192")
        a.label("L_qbc")
        a(f"buffer_load_dwordx4 v[{VW}:{VW+3}], v{VT}, s[{H_WS}:{H_WS+3}], s4 offen {ho}")
        a(f"buffer_load_dwordx4 v[{VW+4}:{VW+7}], v{VT}, s[{H_WS}:{H_WS+3}], s5 offen {ho}")
        a("s_waitcnt vmcnt(0)")
        check("L_qbc", quads=[VW, VW + 4], sleep=midsleep)
        for i in range(4): a(f"v_add_f32 v{VW+i}, v{VW+i}, v{VW+4+i}")
        xsum([VW + i for i in range(4)], VW + 4, "32")
        xsum([VW + i for i in range(4)], VW + 4, "16")
        a(f"v_cvt_pk_bf16_f32 v{VW}, v{VW}, v{VW+1}")
        a(f"v_cvt_pk_bf16_f32 v{VW+2}, v{VW+2}, v{VW+3}")
        a(f"v_mov_b32 v{VW+1}, s{H_T}")
        a(f"v_mov_b32 v{VW+3}, s{H_T}")
        a(f"s_lshl_b32 s4, s{H_h}, 11")
        a(f"s_lshl_b32 s5, s{H_b}, 9")
        a("s_add_u32 s4, s4, s5")
        a("s_lshl_b32 s5, s6, 8")
        a("s_add_u32 s4, s4, s5")
        a(f"s_add_u32 s4, s4, {QBF_G}")
        a("s_mov_b64 exec, 0xffff")
        a(f"buffer_store_dwordx4 v[{VW}:{VW+3}], v{V_L16}, s[{H_WS}:{H_WS+3}], s4 offen {sf}")
        a("s_mov_b64 exec, -1")
        stamp(3, HST)
        a(f"v_lshlrev_b32 v{VT}, 11, v{VG}")
        a(f"v_lshl_add_u32 v{VT}, v{VC}, 4, v{VT}")
        a("s_bfe_u32 s4, s2, 0x30003")
        a("s_lshl_b32 s4, s4, 13")
        a("s_lshr_b32 s5, s2, 6")
        a("s_lshl_b32 s5, s5, 9")
        a("s_add_u32 s4, s4, s5")
        a(f"s_add_u32 s4, s4, {QBF_G}")
        a.label("L_qbg")
        for u in range(2):
            a(f"buffer_load_dwordx4 v[{VW+8+4*u}:{VW+8+4*u+3}], v{VT}, s[{H_WS}:{H_WS+3}], s4 offen offset:{u*256} {ho}")
        a("s_waitcnt vmcnt(0)")
        check("L_qbg", fulltags=[VW+9, VW+11, VW+13, VW+15], sleep=midsleep)
        a(f"v_lshlrev_b32 v{VT}, 8, v{VG}")
        a(f"v_lshl_add_u32 v{VT}, v{VC}, 4, v{VT}")
        for u in range(2):
            a(f"v_mov_b32 v{VW+8+4*u+1}, v{VW+8+4*u+2}")
            a(f"ds_write_b64 v{VT}, v[{VW+8+4*u}:{VW+8+4*u+1}] offset:{L_QB + 8*u}")
    a("s_waitcnt lgkmcnt(0)")
    perm_addr(4096)
    st2_addr(8, GP_G, GP_ML)
    a("s_lshr_b32 s4, s2, 6")
    a("s_lshl_b32 s4, s4, 8")
    a("s_bfe_u32 s5, s2, 0x30003")
    a("s_lshl_b32 s5, s5, 5")
    a("s_add_u32 s4, s4, s5")
    a("s_and_b32 s5, s2, 7")
    a("s_add_u32 s4, s4, s5")
    a("s_lshl_b32 s40, s4, 9")
    a(f"s_add_u32 s40, s40, {GP_G}")
    a("s_lshl_b32 s41, s4, 4")
    a(f"s_add_u32 s41, s41, {GP_ML}")
    stamp(4, HST)
    a("s_barrier")
    a("s_barrier")
    for rr in range(2):
        merge(VW + 32 * rr, L_SPB, L_MLB, 2 * rr)
        merge_ml(VW + 32 * rr)
    a(f"v_lshrrev_b32 v{VT}, 5, v0")
    a(f"v_lshlrev_b32 v{VT}, 7, v{VT}")
    stamp(5, HST)
    a("s_barrier")
    if "gp" not in skip:
        for rr in range(2):
            q0 = VW + 32 * rr
            a(f"buffer_store_dwordx4 v[{q0}:{q0+3}], v{V_PERM}, s[{H_WS}:{H_WS+3}], s40 offen {sf}")
            a("s_mov_b32 exec_lo, 1")
            a("s_mov_b32 exec_hi, 1")
            a(f"buffer_store_dwordx4 v[{q0+4}:{q0+7}], v{VT}, s[{H_WS}:{H_WS+3}], s41 offen {sf}")
            a("s_mov_b64 exec, -1")
            if rr == 0:
                a("s_add_u32 s40, s40, 8192")
                a("s_add_u32 s41, s41, 256")
    stamp(6, HST)
    a("s_barrier")
    if "tail" in skip: a("s_branch L_hend")
    st2(8, L_OBB, "st2b", tailsleep, True)
    a(f"v_lshlrev_b32 v{VT}, 5, v0")
    a("s_nop 6")
    select_batch(VW)
    a(f"ds_write_b128 v{VT}, v[{VW}:{VW+3}] offset:{L_YB}")
    a(f"ds_write_b128 v{VT}, v[{VW+4}:{VW+7}] offset:{L_YB + 16}")
    a("s_waitcnt lgkmcnt(0)")
    stamp(7, HST)
    a("s_barrier")
    a.label("L_hend")
    a("s_waitcnt vmcnt(0)")
    a.label("L_end")
    a("s_endpgm")
    nagpr = 32 * D
    a.raw('.section .rodata,"a"')
    a.raw(".p2align 6")
    a.raw(f".amdhsa_kernel {NAME}_kernel")
    a.raw(f"  .amdhsa_next_free_vgpr {256 + max(nagpr, 64)}")
    a.raw("  .amdhsa_next_free_sgpr 96")
    a.raw("  .amdhsa_accum_offset 256")
    a.raw("  .amdhsa_group_segment_fixed_size 0")
    a.raw("  .amdhsa_kernarg_size 112")
    a.raw("  .amdhsa_user_sgpr_count 2")
    a.raw("  .amdhsa_user_sgpr_kernarg_segment_ptr 1")
    a.raw("  .amdhsa_system_sgpr_workgroup_id_x 1")
    a.raw("  .amdhsa_float_denorm_mode_32 3")
    a.raw(".end_amdhsa_kernel")
    return a.text()

if __name__ == "__main__":
    import json
    kw = json.loads(sys.argv[2]) if len(sys.argv) > 2 else {}
    open(sys.argv[1], "w").write(gen(**kw))
```

```python
import sys

NAME = "gated_mix__mha_block_cached__gqa_block_cached__decode"

EPOCH  = 0x000000
GP_ML  = 0x001000
OA_ML  = 0x009000
QA_G   = 0x011000
QBP_G  = 0x091000
QBF_G  = 0x111000
OA_G   = 0x121000
GP_G   = 0x141000
Y_G    = 0x1C1000
DIAG   = 0x250000
WS_USED = 0x280000

L_QA, L_QB = 0, 256
L_SPA, L_SPB = 2048, 6144
L_MLA, L_MLB = 10240, 10496
L_OBA, L_OBB = 10752, 11264
L_G = 11776
L_YB = 11840
LDS_BYTES = 14336

SCALE = 0x3db504f3
LOG2E = 0x3fb8aa3b
SEL_LO, SEL_HI = 0x05040100, 0x07060302
TAGINC = 0x9e3779b9
NEG_INF = 0xff800000
NEG_BIG = 0xf149f2ca

class Asm:
    def __init__(self):
        self.L = []
        self.n = 0
    def __call__(self, s):
        self.L.append("  " + s)
    def label(self, s):
        self.L.append(s + ":")
    def raw(self, s):
        self.L.append(s)
    def uniq(self, p):
        self.n += 1
        return f"{p}_{self.n}"
    def text(self):
        return "\n".join(self.L) + "\n"

P_X, P_AK, P_AV, P_AWQ, P_AWO = 44, 46, 48, 50, 52
P_BK, P_BV, P_BWQ, P_BWO, P_GATE, P_OUT, P_DBG, P_WS = 56, 58, 60, 62, 64, 66, 68, 70

def gen(D=4, N0=16, diag=False, kvflags="nt", maxpoll=1 << 18, b0=True, b0b=True, batch1=None,
        noH=False, nocomp=0, skip=(), mimic=True, tailsleep=1, midsleep=8, qsleep=0,
        hoflags="sc1", stflags="sc1", qaack=False, stag=False, G2=False, touch=False, b0pos=0, early=True, bm=None, itstamp=False, fl_qa=None, fl_qbc=None, fl_qbg=None, fl_st2a=None, fl_st2b=None, fl_fin=None, sf_qa=None, sf_qbp=None, sf_qbf=None, sf_gp=None, sf_oa=None, sf_y=None):
    a = Asm()
    W, NH = 2, 2
    NWAVES = W + NH
    TA = 128 // W
    TB = 32 // W
    if batch1 is None: batch1 = max(1, D // 2)
    assert N0 % D == 0 and TB % D == 0 and (TA - N0) % D == 0
    a.raw(f"; @launch grid=(256,1,1) block=({64*NWAVES},1,1) lds={LDS_BYTES}")
    a.raw('.amdgcn_target "amdgcn-amd-amdhsa--gfx950"')
    a.raw(".text")
    a.raw(f".globl {NAME}_kernel")
    a.raw(".p2align 8")
    a.raw(f".type {NAME}_kernel,@function")
    a.label(f"{NAME}_kernel")
    a("s_cmp_ge_u32 s2, 256")
    a("s_cbranch_scc1 L_end")
    a("s_load_dwordx16 s[44:59], s[0:1], 0")
    a("s_load_dwordx8 s[60:67], s[0:1], 64")
    a("s_load_dwordx4 s[68:71], s[0:1], 96")
    if diag:
        a("s_memrealtime s[72:73]")
        a("s_memtime s[80:81]")
    a("v_lshrrev_b32 v1, 6, v0")
    a("v_and_b32 v0, 63, v0")
    a("v_and_b32 v3, 15, v0")
    a("v_readfirstlane_b32 s3, v1")
    a("v_lshrrev_b32 v2, 4, v0")
    a("s_waitcnt lgkmcnt(0)")
    a(f"s_cmp_ge_u32 s3, {W}")
    a("s_cbranch_scc1 L_H")

    def stamp(idx, r0, start=False):
        if not diag: return
        if not start:
            a("s_memrealtime s[74:75]")
            a("s_waitcnt lgkmcnt(0)")
            a(f"v_mov_b32 v{r0}, s74")
        else:
            a(f"v_mov_b32 v{r0}, s72")
        a(f"s_lshl_b32 s76, s2, 2")
        a("s_add_u32 s76, s76, s3")
        a("s_lshl_b32 s76, s76, 6")
        a(f"s_add_u32 s76, s76, {DIAG + idx*4}")
        a(f"v_mov_b32 v{r0+1}, s76")
        a("s_mov_b64 s[78:79], exec")
        a("s_mov_b64 exec, 1")
        a(f"global_store_dword v{r0+1}, v{r0}, s[{P_WS}:{P_WS+1}]")
        a("s_mov_b64 exec, s[78:79]")

    S_KC, S_VC = 8, 12
    S_KA, S_VA, S_KB, S_VB = 16, 18, 20, 22
    S_OFF, S_OFF2, S_IT, S_SEG = 24, 25, 26, 27
    S_SCALE, S_L2E, S_SELLO, S_SELHI, S_MASKHI = 28, 29, 30, 31, 32
    S_M4 = 36
    V_KO, V_VO = 4, 5
    V_P, V_ML, V_QA, V_QB = 6, 7, 8, 9
    V_Q = 12
    V_S = 28
    V_PB = 36
    V_ST = 40
    V_O = 48
    V_M, V_L, V_MN, V_AL, V_MLG = 80, 81, 82, 83, 84
    V_T = 86
    V_RING = 96
    SST = 250
    def KR(d): return 32 * d
    def VR(d): return V_RING + 32 * d
    fl = (" " + kvflags) if kvflags else ""

    a(f"; ---------------- S waves ----------------")
    GM = 2 if G2 else 1
    STEP = GM * W * 8192
    S_W0A, S_W0B = 33, 34
    a("s_and_b32 s4, s2, 127")
    a("s_lshl_b32 s4, s4, 21")
    a("s_lshr_b32 s5, s2, 7")
    if G2:
        a(f"s_lshl_b32 s{S_W0A}, s5, 1")
        a(f"s_add_u32 s{S_W0A}, s{S_W0A}, s3")
        a(f"s_lshl_b32 s{S_W0A}, s{S_W0A}, 13")
    else:
        a("s_lshl_b32 s5, s5, 20")
        a("s_add_u32 s4, s4, s5")
        a(f"s_lshl_b32 s{S_W0A}, s3, 13")
    for (dst, p) in ((S_KC, P_AK), (S_VC, P_AV)):
        a(f"s_add_u32 s{dst}, s{p}, s4")
        a(f"s_addc_u32 s{dst+1}, s{p+1}, 0")
        a(f"s_and_b32 s{dst+1}, s{dst+1}, 0xffff")
        a(f"s_mov_b32 s{dst+2}, {GM << 20}")
        a(f"s_mov_b32 s{dst+3}, 0x20000")
    a(f"s_mov_b32 s{S_OFF}, s{S_W0A}")
    a(f"s_add_u32 s{S_OFF2}, s{S_OFF}, 4096")
    a(f"v_lshlrev_b32 v{V_KO}, 8, v3")
    a(f"v_lshl_add_u32 v{V_KO}, v2, 4, v{V_KO}")
    a(f"v_lshlrev_b32 v{V_VO}, 10, v2")
    a(f"v_lshl_add_u32 v{V_VO}, v3, 4, v{V_VO}")
    def issueK(d):
        for t in range(8):
            so = S_OFF if t < 4 else S_OFF2
            r = KR(d) + 4 * t
            a(f"buffer_load_dwordx4 a[{r}:{r+3}], v{V_KO}, s[{S_KC}:{S_KC+3}], s{so} offen offset:{(t%4)*64}{fl}")
    def issueV(d):
        for t in range(8):
            so = S_OFF if t < 4 else S_OFF2
            r = VR(d) + 4 * t
            a(f"buffer_load_dwordx4 v[{r}:{r+3}], v{V_VO}, s[{S_VC}:{S_VC+3}], s{so} offen offset:{(t%4)*256}{fl}")
    def advance():
        a(f"s_add_u32 s{S_OFF}, s{S_OFF}, {STEP}")
        a(f"s_add_u32 s{S_OFF2}, s{S_OFF2}, {STEP}")
    if b0: a("s_barrier")
    for d in range(batch1):
        issueK(d); issueV(d); advance()
    a(f"s_mov_b32 s{S_KA}, s{S_KC}")
    a(f"s_mov_b32 s{S_KA+1}, s{S_KC+1}")
    a(f"s_mov_b32 s{S_VA}, s{S_VC}")
    a(f"s_mov_b32 s{S_VA+1}, s{S_VC+1}")
    if G2:
        a("s_lshr_b32 s5, s2, 1")
        a("s_lshl_b32 s5, s5, 19")
        a(f"s_and_b32 s{S_W0B}, s2, 1")
        a(f"s_lshl_b32 s{S_W0B}, s{S_W0B}, 1")
        a(f"s_add_u32 s{S_W0B}, s{S_W0B}, s3")
        a(f"s_lshl_b32 s{S_W0B}, s{S_W0B}, 13")
    else:
        a("s_lshl_b32 s5, s2, 18")
        a(f"s_lshl_b32 s{S_W0B}, s3, 13")
    for (dst, p) in ((S_KB, P_BK), (S_VB, P_BV)):
        a(f"s_add_u32 s{dst}, s{p}, s5")
        a(f"s_addc_u32 s{dst+1}, s{p+1}, 0")
        a(f"s_and_b32 s{dst+1}, s{dst+1}, 0xffff")
    def set_issue(kb, vb, size, tile0, w0):
        a(f"s_mov_b32 s{S_KC}, s{kb}")
        a(f"s_mov_b32 s{S_KC+1}, s{kb+1}")
        a(f"s_mov_b32 s{S_KC+2}, {size}")
        a(f"s_mov_b32 s{S_VC}, s{vb}")
        a(f"s_mov_b32 s{S_VC+1}, s{vb+1}")
        a(f"s_mov_b32 s{S_VC+2}, {size}")
        a(f"s_add_u32 s{S_OFF}, s{w0}, {tile0 * STEP}")
        a(f"s_add_u32 s{S_OFF2}, s{S_OFF}, 4096")
    a(f"s_mov_b32 s{S_SCALE}, {SCALE:#x}")
    a(f"s_mov_b32 s{S_L2E}, {LOG2E:#x}")
    a(f"s_mov_b32 s{S_SELLO}, {SEL_LO:#x}")
    a(f"s_mov_b32 s{S_SELHI}, {SEL_HI:#x}")
    a(f"s_mov_b32 s{S_MASKHI}, 0xffff0000")
    a(f"s_mov_b32 s{S_M4}, 0x000f000f")
    a(f"s_mov_b32 s{S_M4+1}, 0x000f000f")
    a(f"v_and_b32 v10, 3, v3")
    a(f"s_lshl_b32 s4, s3, 11")
    a(f"v_lshlrev_b32 v{V_P}, 9, v10")
    a(f"v_lshl_add_u32 v{V_P}, v2, 4, v{V_P}")
    a(f"v_add_u32 v{V_P}, s4, v{V_P}")
    a(f"s_lshl_b32 s4, s3, 7")
    a(f"v_lshlrev_b32 v{V_ML}, 5, v10")
    a(f"v_lshl_add_u32 v{V_ML}, v2, 2, v{V_ML}")
    a(f"v_add_u32 v{V_ML}, s4, v{V_ML}")
    a(f"v_lshlrev_b32 v{V_QA}, 4, v2")
    a(f"v_lshl_add_u32 v{V_QB}, v10, 8, v{V_QA}")
    def init_state():
        for i in range(32): a(f"v_mov_b32 v{V_O+i}, 0")
        a(f"v_mov_b32 v{V_M}, {NEG_INF:#x}")
        a(f"v_mov_b32 v{V_MLG}, {NEG_INF:#x}")
        a(f"v_mov_b32 v{V_L}, 0")
    def load_q(vaddr, base):
        for s in range(4):
            a(f"ds_read_b128 v[{V_Q+4*s}:{V_Q+4*s+3}], v{vaddr} offset:{base + 64*s}")
    init_state()
    if b0b: a("s_barrier")
    for d in range(batch1, D):
        if stag:
            a(f"s_waitcnt vmcnt({16 * batch1 - 8})")
        issueK(d)
        if stag:
            a(f"s_waitcnt vmcnt({16 * batch1 - 8})")
        issueV(d); advance()
    stamp(0, SST, start=True)
    a("s_barrier")
    load_q(V_QA, L_QA)
    a(f"s_mov_b32 s{S_SEG}, 0")
    a(f"s_mov_b32 s{S_IT}, {N0 // D}")
    a("s_waitcnt lgkmcnt(0)")
    stamp(1, SST)
    if itstamp:
        a("s_mov_b32 s35, 0")
        a("v_mov_b32 v249, 0")
    a.label("L_sloop")
    if itstamp:
        a("s_memrealtime s[84:85]")
        a("s_waitcnt lgkmcnt(0)")
        a("s_mov_b32 m0, s35")
        a("s_nop 0")
        a("v_writelane_b32 v249, s84, m0")
        a("s_add_u32 s35, s35, 1")
    if bm is not None:
        a(f"s_cmp_eq_u32 s{S_SEG}, 0")
        a("s_cbranch_scc0 L_nobm")
        a(f"s_cmp_eq_u32 s{S_IT}, {bm}")
        a("s_cbranch_scc0 L_nobm")
        a("s_barrier")
        a.label("L_nobm")
    a(f"s_cmp_eq_u32 s{S_IT}, 1")
    a("s_cbranch_scc0 L_noswitch")
    a(f"s_cmp_eq_u32 s{S_SEG}, 0")
    a("s_cbranch_scc0 L_sw1")
    set_issue(S_KB, S_VB, GM << 18, 0, S_W0B)
    a("s_branch L_noswitch")
    a.label("L_sw1")
    a(f"s_cmp_eq_u32 s{S_SEG}, 1")
    a("s_cbranch_scc0 L_sw2")
    set_issue(S_KA, S_VA, GM << 20, N0, S_W0A)
    a("s_branch L_noswitch")
    a.label("L_sw2")
    a(f"s_mov_b32 s{S_KC+2}, 0")
    a(f"s_mov_b32 s{S_VC+2}, 0")
    a("s_barrier")
    a.label("L_noswitch")
    WAITN = 16 * D - 8
    T = V_T
    for d in range(D):
        a(f"; ---- tile slot {d}")
        a(f"s_waitcnt vmcnt({WAITN})")
        if nocomp:
            issueK(d)
            a(f"s_waitcnt vmcnt({WAITN})")
            issueV(d)
            advance()
            continue
        for s in range(4):
            for h in range(2):
                kr = KR(d) + 4 * (4 * h + s)
                c = "0" if s == 0 else f"v[{V_S+4*h}:{V_S+4*h+3}]"
                a(f"v_mfma_f32_16x16x32_bf16 v[{V_S+4*h}:{V_S+4*h+3}], a[{kr}:{kr+3}], v[{V_Q+4*s}:{V_Q+4*s+3}], {c}")
        issueK(d)
        a("s_nop 1")
        S = [V_S + i for i in range(8)]
        if mimic:
            for i in range(4): a(f"v_cvt_pk_bf16_f32 v{T+i}, v{S[2*i]}, v{S[2*i+1]}")
            for i in range(4):
                a(f"v_lshlrev_b32 v{S[2*i]}, 16, v{T+i}")
                a(f"v_and_b32 v{S[2*i+1]}, s{S_MASKHI}, v{T+i}")
            for i in range(8): a(f"v_mul_f32 v{S[i]}, s{S_SCALE}, v{S[i]}")
            for i in range(4): a(f"v_cvt_pk_bf16_f32 v{T+i}, v{S[2*i]}, v{S[2*i+1]}")
            for i in range(4):
                a(f"v_lshlrev_b32 v{S[2*i]}, 16, v{T+i}")
                a(f"v_and_b32 v{S[2*i+1]}, s{S_MASKHI}, v{T+i}")
        else:
            for i in range(8): a(f"v_mul_f32 v{S[i]}, s{S_SCALE}, v{S[i]}")
        a(f"v_max3_f32 v{T}, v{S[0]}, v{S[1]}, v{S[2]}")
        a(f"v_max3_f32 v{T+1}, v{S[3]}, v{S[4]}, v{S[5]}")
        a(f"v_max3_f32 v{T}, v{T}, v{S[6]}, v{S[7]}")
        a(f"v_max_f32 v{T}, v{T}, v{T+1}")
        a(f"v_mov_b32 v{T+1}, v{T}")
        a("s_nop 1")
        a(f"v_permlane32_swap_b32 v{T}, v{T+1}")
        a(f"v_max_f32 v{T}, v{T}, v{T+1}")
        a(f"v_mov_b32 v{T+1}, v{T}")
        a("s_nop 1")
        a(f"v_permlane16_swap_b32 v{T}, v{T+1}")
        a(f"v_max_f32 v{T}, v{T}, v{T+1}")
        a(f"v_max_f32 v{V_MN}, v{V_M}, v{T}")
        a(f"v_cmp_gt_f32 vcc, v{V_MN}, v{V_M}")
        lab = a.uniq("L_nors")
        a(f"s_cbranch_vccz {lab}")
        a(f"v_sub_f32 v{T+1}, v{V_M}, v{V_MN}")
        a(f"v_mul_f32 v{T+1}, s{S_L2E}, v{T+1}")
        a(f"v_exp_f32 v{V_AL}, v{T+1}")
        a(f"v_mov_b32 v{V_M}, v{V_MN}")
        a(f"v_mul_f32 v{V_MLG}, s{S_L2E}, v{V_MN}")
        a(f"v_mul_f32 v{V_L}, v{V_L}, v{V_AL}")
        for i in range(32): a(f"v_mul_f32 v{V_O+i}, v{V_O+i}, v{V_AL}")
        a.label(lab)
        for i in range(8): a(f"v_fma_f32 v{S[i]}, v{S[i]}, s{S_L2E}, -v{V_MLG}")
        for i in range(8): a(f"v_exp_f32 v{S[i]}, v{S[i]}")
        a(f"v_add_f32 v{T}, v{S[0]}, v{S[1]}")
        a(f"v_add_f32 v{T+1}, v{S[2]}, v{S[3]}")
        a(f"v_add_f32 v{T+2}, v{S[4]}, v{S[5]}")
        a(f"v_add_f32 v{T+3}, v{S[6]}, v{S[7]}")
        for i in range(4): a(f"v_cvt_pk_bf16_f32 v{V_PB+i}, v{S[2*i]}, v{S[2*i+1]}")
        a(f"v_add_f32 v{T}, v{T}, v{T+1}")
        a(f"v_add_f32 v{T+2}, v{T+2}, v{T+3}")
        a(f"v_add_f32 v{T}, v{T}, v{T+2}")
        a(f"v_add_f32 v{V_L}, v{V_L}, v{T}")
        a(f"s_waitcnt vmcnt({WAITN})")
        def perms(j):
            st = V_ST + 4 * (j & 1)
            r, hh = j >> 1, j & 1
            sel = S_SELHI if hh else S_SELLO
            for u in range(4):
                lo = VR(d) + 4 * (2 * u) + r
                hi = VR(d) + 4 * (2 * u + 1) + r
                a(f"v_perm_b32 v{st+u}, v{hi}, v{lo}, s{sel}")
        def pv(j):
            st = V_ST + 4 * (j & 1)
            a(f"v_mfma_f32_16x16x32_bf16 v[{V_O+4*j}:{V_O+4*j+3}], v[{st}:{st+3}], v[{V_PB}:{V_PB+3}], v[{V_O+4*j}:{V_O+4*j+3}]")
        perms(0); perms(1)
        for j in range(8):
            if j == 7: a("s_nop 0")
            pv(j)
            if j + 2 < 8: perms(j + 2)
        issueV(d)
        advance()
    a(f"s_sub_u32 s{S_IT}, s{S_IT}, 1")
    a(f"s_cmp_lg_u32 s{S_IT}, 0")
    a("s_cbranch_scc1 L_sloop")
    a("s_nop 7")
    a(f"s_cmp_eq_u32 s{S_SEG}, 1")
    a(f"s_cselect_b32 s4, {L_SPB - L_SPA}, 0")
    a(f"s_cselect_b32 s5, {L_MLB - L_MLA}, 0")
    a(f"v_add_u32 v{T}, s4, v{V_P}")
    a(f"v_add_u32 v{T+1}, s5, v{V_ML}")
    a(f"s_mov_b64 exec, s[{S_M4}:{S_M4+1}]")
    for j in range(8):
        a(f"ds_write_b128 v{T}, v[{V_O+4*j}:{V_O+4*j+3}] offset:{L_SPA + 64*j}")
    a(f"ds_write_b32 v{T+1}, v{V_L} offset:{L_MLA}")
    a(f"ds_write_b32 v{T+1}, v{V_M} offset:{L_MLA + 16}")
    a("s_mov_b64 exec, -1")
    a("s_waitcnt lgkmcnt(0)")
    a(f"s_cmp_eq_u32 s{S_SEG}, 0")
    a("s_cbranch_scc0 L_se1")
    stamp(2, SST)
    a("s_barrier")
    load_q(V_QB, L_QB)
    init_state()
    a(f"s_mov_b32 s{S_SEG}, 1")
    a(f"s_mov_b32 s{S_IT}, {TB // D}")
    a("s_waitcnt lgkmcnt(0)")
    a("s_branch L_sloop")
    a.label("L_se1")
    a(f"s_cmp_eq_u32 s{S_SEG}, 1")
    a("s_cbranch_scc0 L_se2")
    stamp(3, SST)
    a("s_barrier")
    load_q(V_QA, L_QA)
    for j in range(8):
        a(f"ds_read_b128 v[{V_O+4*j}:{V_O+4*j+3}], v{V_P} offset:{L_SPA + 64*j}")
    a(f"ds_read_b32 v{V_L}, v{V_ML} offset:{L_MLA}")
    a(f"ds_read_b32 v{V_M}, v{V_ML} offset:{L_MLA + 16}")
    a(f"s_mov_b32 s{S_SEG}, 2")
    a(f"s_mov_b32 s{S_IT}, {(TA - N0) // D}")
    a("s_waitcnt lgkmcnt(0)")
    a(f"v_mul_f32 v{V_MLG}, s{S_L2E}, v{V_M}")
    a("s_branch L_sloop")
    a.label("L_se2")
    if diag:
        a("s_memtime s[82:83]")
        a("s_waitcnt lgkmcnt(0)")
        a("s_sub_u32 s82, s82, s80")
        a("s_memrealtime s[74:75]")
        a("s_waitcnt lgkmcnt(0)")
        a("s_sub_u32 s74, s74, s72")
        a(f"v_mov_b32 v{SST+2}, s82")
        a(f"v_mov_b32 v{SST+3}, s74")
        a("s_lshl_b32 s76, s2, 2")
        a("s_add_u32 s76, s76, s3")
        a("s_lshl_b32 s76, s76, 6")
        a(f"s_add_u32 s76, s76, {DIAG + 5*4}")
        a(f"v_mov_b32 v{SST+4}, s76")
        a("s_mov_b64 exec, 1")
        a(f"global_store_dwordx2 v{SST+4}, v[{SST+2}:{SST+3}], s[{P_WS}:{P_WS+1}]")
        a("s_mov_b64 exec, -1")
    if itstamp:
        a("s_lshl_b32 s76, s2, 1")
        a("s_add_u32 s76, s76, s3")
        a("s_lshl_b32 s76, s76, 8")
        a(f"s_add_u32 s76, s76, {DIAG + 0x10000}")
        a(f"v_lshl_add_u32 v248, v0, 2, s76")
        a(f"global_store_dword v248, v249, s[{P_WS}:{P_WS+1}]")
    stamp(4, SST)
    a("s_barrier")
    a("s_waitcnt vmcnt(0)")
    a("s_endpgm")

    H_WS, H_W, H_X = 8, 12, 16
    H_T = 20
    H_G1, H_G2, H_G3 = 22, 24, 26
    H_SELLO, H_SELHI, H_L2E = 28, 29, 30
    H_SO = 31
    H_CNT = 32
    H_h, H_b = 34, 35
    H_dh, H_cg, H_i2 = 36, 37, 38
    H_MHI = 39
    H_TB = 84
    H_ST = 88
    VC, VG = 3, 2
    V_L16 = 4
    V_WOFF = 5
    VT = 6
    VX = 8
    V_TV = 16
    V_PERM = 17
    V_GS = 18
    V_B512 = 19
    V_MR = 20
    V_MM = 21
    HST = 22
    VW = 24
    VST = 152
    VD = 160
    VWQ = 192
    ho = hoflags; sf = stflags
    fl_qa = fl_qa or ho; fl_qbc = fl_qbc or ho; fl_qbg = fl_qbg or ho; fl_st2a = fl_st2a or ho; fl_st2b = fl_st2b or ho; fl_fin = fl_fin or ho
    sf_qa = sf_qa or sf; sf_qbp = sf_qbp or sf; sf_qbf = sf_qbf or sf; sf_gp = sf_gp or sf; sf_oa = sf_oa or sf; sf_y = sf_y or sf

    def srd(dst, p, size):
        a(f"s_mov_b32 s{dst}, s{p}")
        a(f"s_and_b32 s{dst+1}, s{p+1}, 0xffff")
        a(f"s_mov_b32 s{dst+2}, {size}")
        a(f"s_mov_b32 s{dst+3}, 0x20000")

    def check(lab, quads=(), fulltags=(), sleep=0):
        acc, accf = VST, VST + 1
        done = a.uniq("L_ok")
        first = True
        for q in quads:
            for i in range(4):
                if first: a(f"v_xor_b32 v{acc}, s{H_TB+i}, v{q+i}"); first = False
                else: a(f"v_bitop3_b32 v{acc}, v{acc}, v{q+i}, s{H_TB+i} bitop3:0xf6")
        if quads: a(f"v_and_b32 v{acc}, 0xff, v{acc}")
        for r in fulltags:
            if first: a(f"v_xor_b32 v{acc}, s{H_T}, v{r}"); first = False
            else: a(f"v_bitop3_b32 v{acc}, v{acc}, v{r}, s{H_T} bitop3:0xf6")
        a(f"v_cmp_ne_u32 vcc, 0, v{acc}")
        a(f"s_cbranch_vccz {done}")
        a(f"s_sub_u32 s{H_CNT}, s{H_CNT}, 1")
        a(f"s_cmp_eq_u32 s{H_CNT}, 0")
        a(f"s_cbranch_scc1 {done}")
        if sleep: a(f"s_sleep {sleep}")
        a(f"s_branch {lab}")
        a.label(done)

    def tag4(dst, src=None):
        src = [dst + i for i in range(4)] if src is None else src
        for i in range(4):
            a(f"v_perm_b32 v{dst+i}, v{src[i]}, v{V_TV}, s{H_ST+i}")

    def wt_tile(wbase, areg, first):
        def perms(j):
            st = VST + 4 * (j & 1)
            r, hh = j >> 1, j & 1
            sel = H_SELHI if hh else H_SELLO
            for u in range(4):
                lo = wbase + 4 * (2 * u) + r
                hi = wbase + 4 * (2 * u + 1) + r
                a(f"v_perm_b32 v{st+u}, v{hi}, v{lo}, s{sel}")
        def mm(j):
            st = VST + 4 * (j & 1)
            c = "0" if first else f"v[{VD+4*j}:{VD+4*j+3}]"
            a(f"v_mfma_f32_16x16x32_bf16 v[{VD+4*j}:{VD+4*j+3}], v[{areg}:{areg+3}], v[{st}:{st+3}], {c}")
        perms(0); perms(1)
        for j in range(8):
            if j == 7: a("s_nop 0")
            mm(j)
            if j + 2 < 8: perms(j + 2)

    def select_batch(dst):
        for j in range(8): a(f"v_cndmask_b32 v{dst+j}, v{VD+4*j}, v{VD+4*j+1}, s[{H_G1}:{H_G1+1}]")
        for j in range(8): a(f"v_cndmask_b32 v{dst+j}, v{dst+j}, v{VD+4*j+2}, s[{H_G2}:{H_G2+1}]")
        for j in range(8): a(f"v_cndmask_b32 v{dst+j}, v{dst+j}, v{VD+4*j+3}, s[{H_G3}:{H_G3+1}]")

    def xsum(regs, tmp, sw):
        for i, r in enumerate(regs): a(f"v_mov_b32 v{tmp+i}, v{r}")
        if len(regs) < 3: a("s_nop 1")
        for i, r in enumerate(regs): a(f"v_permlane{sw}_swap_b32 v{r}, v{tmp+i}")
        for i, r in enumerate(regs): a(f"v_add_f32 v{r}, v{r}, v{tmp+i}")

    def read_tag():
        a(f"v_readfirstlane_b32 s{H_T}, v{VT+1}")
        a("s_nop 3")
        a(f"s_add_u32 s{H_T}, s{H_T}, {TAGINC:#x}")
        for i in range(4): a(f"s_bfe_u32 s{H_TB+i}, s{H_T}, {0x80000 + 8*i:#x}")
        a(f"v_mov_b32 v{V_TV}, s{H_T}")

    def qproj_loads(pw):
        srd(H_W, pw, 4 << 20)
        a(f"s_lshr_b32 s6, s2, 5")
        a(f"v_and_b32 v{VT}, 3, v{VC}")
        a(f"v_lshlrev_b32 v{VT}, 10, v{VT}")
        a(f"v_lshl_add_u32 v{VT}, v{VG}, 4, v{VT}")
        a(f"v_lshlrev_b32 v{V_WOFF}, 16, v{VG}")
        a(f"v_lshl_add_u32 v{V_WOFF}, v{VC}, 4, v{V_WOFF}")
        a(f"s_lshl_b32 s7, s6, 7")
        a(f"s_lshl_b32 s{H_SO}, s6, 19")
        a(f"s_lshl_b32 s4, s{H_h}, 8")
        a(f"s_add_u32 s{H_SO}, s{H_SO}, s4")
        a(f"buffer_load_dwordx4 v[{VX}:{VX+3}], v{VT}, s[{H_X}:{H_X+3}], s7 offen nt")
        a(f"buffer_load_dwordx4 v[{VX+4}:{VX+7}], v{VT}, s[{H_X}:{H_X+3}], s7 offen offset:64 nt")
        for tau in range(2):
            for t in range(8):
                r = VW + 32 * tau + 4 * t
                a(f"buffer_load_dwordx4 v[{r}:{r+3}], v{V_WOFF}, s[{H_W}:{H_W+3}], s{H_SO} offen nt")
                if not (tau == 1 and t == 7):
                    step = 8192 if t < 7 else (32 - 7) * 8192
                    a(f"s_add_u32 s{H_SO}, s{H_SO}, {step}")
    def qproj_rest(dst, first, publish=True):
        a(f"s_lshl_b32 s7, s{H_h}, 3")
        a("s_add_u32 s7, s7, s6")
        a("s_lshl_b32 s7, s7, 11")
        if dst: a(f"s_add_u32 s7, s7, {dst}")
        a("s_waitcnt vmcnt(8)")
        wt_tile(VW, VX, True)
        a("s_waitcnt vmcnt(0)")
        wt_tile(VW + 32, VX + 4, False)
        if first: read_tag()
        else: a("s_nop 7")
        select_batch(VW)
        for u in range(2):
            tag4(VW + 4*u)
            if publish:
                a(f"buffer_store_dwordx4 v[{VW+4*u}:{VW+4*u+3}], v{V_B512}, s[{H_WS}:{H_WS+3}], s7 offen offset:{u*256} {sf_qa if dst == QA_G else sf_qbp}")
    def qproj_publish():
        for u in range(2):
            a(f"buffer_store_dwordx4 v[{VW+4*u}:{VW+4*u+3}], v{V_B512}, s[{H_WS}:{H_WS+3}], s7 offen offset:{u*256} {sf_qbp}")

    def merge(q0, sp, ml, r0):
        for w in range(W):
            a(f"ds_read_b128 v[{q0+8+4*w}:{q0+8+4*w+3}], v{V_MR} offset:{sp + w*2048 + r0*512}")
            a(f"ds_read_b128 v[{q0+16+4*w}:{q0+16+4*w+3}], v{V_MM} offset:{ml + w*128 + r0*32}")
            a(f"ds_read_b32 v{q0+24+w}, v{V_MM} offset:{ml + w*128 + r0*32 + 16}")
        a("s_waitcnt lgkmcnt(0)")
        M = q0 + 4; F = q0 + 26; LL = q0 + 6
        a(f"v_max_f32 v{M}, v{q0+24}, v{q0+25}")
        a(f"v_max_f32 v{M}, {NEG_BIG:#x}, v{M}")
        for w in range(W): a(f"v_sub_f32 v{F+w}, v{q0+24+w}, v{M}")
        for w in range(W): a(f"v_mul_f32 v{F+w}, s{H_L2E}, v{F+w}")
        for w in range(W): a(f"v_exp_f32 v{F+w}, v{F+w}")
        for w in range(W):
            l0 = q0 + 16 + 4 * w
            a(f"v_add_f32 v{l0}, v{l0}, v{l0+1}")
            a(f"v_add_f32 v{l0+2}, v{l0+2}, v{l0+3}")
        for i in range(4): a(f"v_mul_f32 v{q0+i}, v{F}, v{q0+8+i}")
        for i in range(4): a(f"v_fmac_f32 v{q0+i}, v{F+1}, v{q0+12+i}")
        tag4(q0)
    def merge_ml(q0):
        M = q0 + 4; F = q0 + 26; LL = q0 + 6
        for w in range(W):
            l0 = q0 + 16 + 4 * w
            a(f"v_add_f32 v{l0}, v{l0}, v{l0+2}")
        a(f"v_mov_b32 v{M+1}, s{H_T}")
        a(f"v_mul_f32 v{LL}, v{F}, v{q0+16}")
        a(f"v_mov_b32 v{M+3}, s{H_T}")
        a(f"v_fmac_f32 v{LL}, v{F+1}, v{q0+20}")

    def perm_addr(headstep):
        a(f"v_bfe_u32 v{VST}, v0, 1, 1")
        a(f"v_lshlrev_b32 v{V_PERM}, 8, v{VST}")
        a(f"v_bfe_u32 v{VST}, v0, 2, 3")
        a(f"v_lshl_add_u32 v{V_PERM}, v{VST}, 5, v{V_PERM}")
        a(f"v_and_b32 v{VST}, 1, v0")
        a(f"v_lshl_add_u32 v{V_PERM}, v{VST}, 4, v{V_PERM}")
        a(f"v_lshrrev_b32 v{VST}, 5, v0")
        a(f"v_and_b32 v{VST+1}, 31, v0")
        a(f"v_lshlrev_b32 v{V_MR}, 4, v{VST+1}")
        if headstep:
            a(f"v_mul_u32_u24 v{VST+1}, {headstep}, v{VST}")
            a(f"v_add_u32 v{V_PERM}, v{V_PERM}, v{VST+1}")
            a(f"v_lshl_add_u32 v{V_MR}, v{VST}, 9, v{V_MR}")
            a(f"v_lshlrev_b32 v{V_MM}, 5, v{VST}")
        else:
            a(f"v_mov_b32 v{V_MM}, 0")

    def wpre_loads(pw, stage):
        srd(H_W, pw, 4 << 20)
        a(f"v_lshlrev_b32 v{V_WOFF}, 10, v{VG}")
        a(f"v_lshl_add_u32 v{V_WOFF}, v{VC}, 4, v{V_WOFF}")
        a(f"s_lshl_b32 s92, s{H_h}, 17")
        a(f"s_lshl_b32 s93, s{H_dh}, 16")
        a("s_add_u32 s92, s92, s93")
        a(f"s_lshl_b32 s93, s{H_cg}, 8")
        a("s_add_u32 s92, s92, s93")
        for tau in range(2):
            for t in range(8):
                r = stage + 32 * tau + 4 * t
                a(f"s_add_u32 s{H_SO}, s92, {(8*t + 4*tau)*1024}")
                a(f"buffer_load_dwordx4 v[{r}:{r+3}], v{V_WOFF}, s[{H_W}:{H_W+3}], s{H_SO} offen nt")
    def wpre_perms(stage, waits=True):
        for tau in range(2):
            if waits: a(f"s_waitcnt vmcnt({8 * (1 - tau)})")
            for j in range(8):
                r, hh = j >> 1, j & 1
                sel = H_SELHI if hh else H_SELLO
                for u in range(4):
                    lo = stage + 32 * tau + 4 * (2 * u) + r
                    hi = stage + 32 * tau + 4 * (2 * u + 1) + r
                    a(f"v_perm_b32 v{VWQ + 32*tau + 4*j + u}, v{hi}, v{lo}, s{sel}")
    def wpre(pw):
        wpre_loads(pw, VW)
        wpre_perms(VW)

    VGP, VGM = VX, VX + 1
    def st2_addr(NP, pbase, mlbase):
        a(f"v_mul_u32_u24 v{VGP}, {32*NP*512}, v{VG}")
        a(f"v_lshl_add_u32 v{VGP}, v{VC}, 4, v{VGP}")
        a(f"v_lshlrev_b32 v{VGM}, 13, v{VG}")
        a(f"v_and_b32 v{VST}, {NP-1}, v{VC}")
        a(f"v_lshl_add_u32 v{VGM}, v{VST}, 7, v{VGM}")
        a(f"s_mul_i32 s42, s{H_h}, {NP*512}")
        a(f"s_lshl_b32 s5, s{H_dh}, 8")
        a("s_add_u32 s42, s42, s5")
        a(f"s_add_u32 s42, s42, {pbase}")
        if NP == 2:
            a(f"s_lshl_b32 s43, s{H_h}, 8")
        else:
            a(f"s_lshr_b32 s43, s{H_h}, 2")
            a("s_lshl_b32 s43, s43, 10")
            a(f"s_and_b32 s5, s{H_h}, 3")
            a("s_lshl_b32 s5, s5, 4")
            a("s_add_u32 s43, s43, s5")
        a(f"s_add_u32 s43, s43, {mlbase}")

    def st2(NP, ob, name, sleep, light):
        Y = VW
        ML = VW + 4 * NP
        ho = fl_st2a if NP == 2 else fl_st2b
        if light:
            lab = f"L_{name}_lp"
            a.label(lab)
            a(f"buffer_load_dwordx4 v[{ML}:{ML+3}], v{VGM}, s[{H_WS}:{H_WS+3}], s43 offen {ho}")
            a("s_waitcnt vmcnt(0)")
            check(lab, fulltags=[ML+1, ML+3], sleep=sleep)
        lab = f"L_{name}_g"
        a.label(lab)
        if not light:
            a(f"buffer_load_dwordx4 v[{ML}:{ML+3}], v{VGM}, s[{H_WS}:{H_WS+3}], s43 offen {ho}")
        for p in range(NP):
            a(f"buffer_load_dwordx4 v[{Y+4*p}:{Y+4*p+3}], v{VGP}, s[{H_WS}:{H_WS+3}], s42 offen offset:{p*512} {ho}")
        a("s_waitcnt vmcnt(0)")
        check(lab, quads=[Y + 4*p for p in range(NP)], fulltags=([] if light else [ML+1, ML+3]), sleep=sleep)
        MM, F, LS = VST + 2, VST + 3, VST + 4
        steps = ["quad_perm:[1,0,3,2]"] + (["quad_perm:[2,3,0,1]", "row_half_mirror"] if NP == 8 else [])
        a(f"v_mov_b32 v{MM}, v{ML}")
        for st in steps:
            a("s_nop 1")
            a(f"v_max_f32_dpp v{MM}, v{MM}, v{MM} {st} row_mask:0xf bank_mask:0xf")
        a(f"v_sub_f32 v{F}, v{ML}, v{MM}")
        a(f"v_mul_f32 v{F}, s{H_L2E}, v{F}")
        a(f"v_exp_f32 v{F}, v{F}")
        a(f"v_lshlrev_b32 v{VT}, 3, v0")
        a(f"v_mul_f32 v{LS}, v{F}, v{ML+2}")
        for st in steps:
            a("s_nop 1")
            a(f"v_add_f32_dpp v{LS}, v{LS}, v{LS} {st} row_mask:0xf bank_mask:0xf")
        a(f"v_rcp_f32 v{LS}, v{LS}")
        a(f"v_mul_f32 v{F}, v{V_GS}, v{F}")
        a(f"v_and_b32 v{VT+1}, 3, v{VC}")
        a(f"v_mul_f32 v{F}, v{F}, v{LS}")
        a(f"v_lshlrev_b32 v{VT+1}, 7, v{VT+1}")
        a(f"v_lshl_add_u32 v{VT+1}, v{VG}, 4, v{VT+1}")
        O = VST + 4
        for i in range(4):
            a(f"v_mul_f32_dpp v{O+i}, v{F}, v{Y+i} row_newbcast:0 row_mask:0xf bank_mask:0xf")
        for p in range(1, NP):
            for i in range(4):
                a(f"v_fmac_f32_dpp v{O+i}, v{F}, v{Y+4*p+i} row_newbcast:{p} row_mask:0xf bank_mask:0xf")
        a(f"v_cvt_pk_bf16_f32 v{O}, v{O}, v{O+1}")
        a(f"v_cvt_pk_bf16_f32 v{O+1}, v{O+2}, v{O+3}")
        a(f"ds_write_b64 v{VT}, v[{O}:{O+1}] offset:{ob}")
        a("s_waitcnt lgkmcnt(0)")
        for tau in range(2):
            a(f"ds_read_b128 v[{VX+4*tau}:{VX+4*tau+3}], v{VT+1} offset:{ob + 64*tau}")
        a("s_waitcnt lgkmcnt(0)")
        for tau in range(2):
            for j in range(8):
                c = "0" if tau == 0 else f"v[{VD+4*j}:{VD+4*j+3}]"
                wr = VWQ + 32 * tau + 4 * j
                a(f"v_mfma_f32_16x16x32_bf16 v[{VD+4*j}:{VD+4*j+3}], v[{VX+4*tau}:{VX+4*tau+3}], v[{wr}:{wr+3}], {c}")

    NB = 4 + (1 if b0 else 0) + (1 if b0b else 0) + 1 + (1 if bm is not None else 0)
    a.label("L_H")
    a("; ---------------- H waves ----------------")
    if noH:
        for _ in range(NB): a("s_barrier")
        a("s_branch L_end")
    srd(H_WS, P_WS, WS_USED)
    srd(H_X, P_X, 4096)
    a(f"v_mov_b32 v{VT}, {EPOCH:#x}")
    a(f"buffer_load_dword v{VT+1}, v{VT}, s[{H_WS}:{H_WS+3}], 0 offen sc1")
    a(f"s_and_b32 s{H_h}, s2, 31")
    a(f"s_mov_b32 s{H_SELLO}, {SEL_LO:#x}")
    a(f"s_mov_b32 s{H_SELHI}, {SEL_HI:#x}")
    def h_consts():
        a(f"s_mov_b32 s{H_G1}, 0xffff0000")
        a(f"s_mov_b32 s{H_G1+1}, 0")
        a(f"s_mov_b32 s{H_G2}, 0")
        a(f"s_mov_b32 s{H_G2+1}, 0x0000ffff")
        a(f"s_mov_b32 s{H_G3}, 0")
        a(f"s_mov_b32 s{H_G3+1}, 0xffff0000")
        a(f"s_mov_b32 s{H_L2E}, {LOG2E:#x}")
        a(f"s_mov_b32 s{H_MHI}, 0xffff0000")
        a(f"s_mov_b32 s{H_CNT}, {maxpoll}")
        for i in range(4): a(f"s_mov_b32 s{H_ST+i}, {0x07060500 + i:#x}")
        a(f"s_lshr_b32 s{H_b}, s2, 5")
        a(f"s_and_b32 s{H_dh}, s{H_b}, 1")
        a(f"s_and_b32 s{H_b}, s{H_b}, 3")
        a(f"s_lshr_b32 s{H_cg}, s2, 6")
        a(f"s_lshl_b32 s{H_i2}, s{H_h}, 1")
        a(f"s_add_u32 s{H_i2}, s{H_i2}, s{H_dh}")
        a(f"v_lshlrev_b32 v{V_L16}, 4, v0")
        a(f"v_lshlrev_b32 v{V_B512}, 9, v{VG}")
        a(f"v_lshl_add_u32 v{V_B512}, v{VC}, 4, v{V_B512}")
    a(f"s_cmp_eq_u32 s3, {W}")
    a("s_cbranch_scc0 L_H1")

    qproj_loads(P_AWQ)
    if b0 and b0pos == 0: a("s_barrier")
    stamp(0, HST, start=True)
    h_consts()
    if b0 and b0pos == 1:
        a("s_waitcnt vmcnt(16)")
        a("s_barrier")
    if b0 and b0pos == 2:
        a("s_waitcnt vmcnt(8)")
        a("s_barrier")
    qproj_rest(QA_G, True)
    stamp(1, HST)
    a(f"v_lshrrev_b32 v{VT}, 5, v0")
    a(f"v_lshlrev_b32 v{VT}, 11, v{VT}")
    a(f"v_and_b32 v{VT+1}, 31, v0")
    a(f"v_lshl_add_u32 v{VT}, v{VT+1}, 4, v{VT}")
    a(f"s_lshl_b32 s4, s{H_h}, 14")
    a(f"s_lshl_b32 s5, s{H_b}, 9")
    a("s_add_u32 s4, s4, s5")
    if QA_G: a(f"s_add_u32 s4, s4, {QA_G}")
    a("s_add_u32 s5, s4, 4096")
    a("s_add_u32 s6, s4, 8192")
    a("s_add_u32 s7, s4, 12288")
    if qaack: a("s_waitcnt vmcnt(0)")
    def qa_loads():
        for k in range(4):
            a(f"buffer_load_dwordx4 v[{VW+4*k}:{VW+4*k+3}], v{VT}, s[{H_WS}:{H_WS+3}], s{4+k} offen {fl_qa}")
    qa_loads()
    EARLY = early and "wpre" not in skip
    if EARLY:
        a("s_mov_b32 s94, s4")
        wpre_loads(P_AWO, VW + 32)
    if b0b: a("s_barrier")
    if EARLY: a("s_waitcnt vmcnt(16)")
    else: a("s_waitcnt vmcnt(0)")
    a("s_branch L_qa_first")
    a.label("L_qa_retry")
    qa_loads()
    a("s_waitcnt vmcnt(0)")
    a.label("L_qa_first")
    check("L_qa_retry", quads=[VW + 4*k for k in range(4)], sleep=qsleep)
    for i in range(4):
        a(f"v_add_f32 v{VW+i}, v{VW+i}, v{VW+4+i}")
        a(f"v_add_f32 v{VW+8+i}, v{VW+8+i}, v{VW+12+i}")
    for i in range(4): a(f"v_add_f32 v{VW+i}, v{VW+i}, v{VW+8+i}")
    xsum([VW + i for i in range(4)], VW + 4, "32")
    a(f"v_lshlrev_b32 v{VT}, 4, v{VC}")
    a(f"v_bfe_u32 v{VT+1}, v0, 4, 1")
    a(f"v_lshl_add_u32 v{VT}, v{VT+1}, 3, v{VT}")
    a(f"v_cvt_pk_bf16_f32 v{VW}, v{VW}, v{VW+1}")
    a(f"v_cvt_pk_bf16_f32 v{VW+1}, v{VW+2}, v{VW+3}")
    a(f"ds_write_b64 v{VT}, v[{VW}:{VW+1}] offset:{L_QA}")
    a("s_waitcnt lgkmcnt(0)")
    stamp(2, HST)
    a("s_barrier")
    if EARLY: wpre_perms(VW + 32)
    elif "wpre" not in skip: wpre(P_AWO)
    perm_addr(0)
    st2_addr(2, OA_G, OA_ML)
    a("s_lshr_b32 s5, s2, 7")
    a(f"s_lshl_b32 s6, s{H_b}, 5")
    a(f"s_add_u32 s6, s6, s{H_h}")
    a("s_lshl_b32 s6, s6, 1")
    a("s_add_u32 s6, s6, s5")
    a("s_lshl_b32 s40, s6, 9")
    a(f"s_add_u32 s40, s40, {OA_G}")
    a("s_lshl_b32 s41, s6, 7")
    a(f"s_add_u32 s41, s41, {OA_ML}")
    stamp(3, HST)
    if bm is not None: a("s_barrier")
    a("s_barrier")
    a(f"v_lshlrev_b32 v{VT}, 3, v{VG}")
    a(f"ds_read_b32 v{V_GS}, v{VT} offset:{L_G}")
    a("s_waitcnt lgkmcnt(0)")
    a("s_barrier")
    a("s_barrier")
    a("s_barrier")
    stamp(4, HST)
    if "tail" in skip: a("s_branch L_hend")
    merge(VW, L_SPA, L_MLA, 0)
    a("s_mov_b32 exec_hi, 0")
    a(f"buffer_store_dwordx4 v[{VW}:{VW+3}], v{V_PERM}, s[{H_WS}:{H_WS+3}], s40 offen {sf_oa}")
    a("s_mov_b64 exec, -1")
    merge_ml(VW)
    a("s_mov_b64 exec, 0xff")
    a(f"buffer_store_dwordx4 v[{VW+4}:{VW+7}], v{V_L16}, s[{H_WS}:{H_WS+3}], s41 offen {sf_oa}")
    a("s_mov_b64 exec, -1")
    stamp(5, HST)
    st2(2, L_OBA, "st2a", tailsleep, False)
    a(f"s_lshl_b32 s4, s{H_cg}, 6")
    a(f"s_add_u32 s4, s4, s{H_i2}")
    a("s_lshl_b32 s4, s4, 11")
    a(f"s_add_u32 s4, s4, {Y_G}")
    a(f"v_lshlrev_b32 v{VT}, 5, v0")
    stamp(6, HST)
    a("s_barrier")
    a(f"ds_read_b128 v[{VW+8}:{VW+11}], v{VT} offset:{L_YB}")
    a(f"ds_read_b128 v[{VW+12}:{VW+15}], v{VT} offset:{L_YB + 16}")
    a("s_nop 3")
    select_batch(VW)
    a("s_waitcnt lgkmcnt(0)")
    for u in range(2):
        for i in range(4): a(f"v_add_f32 v{VW+4*u+i}, v{VW+4*u+i}, v{VW+8+4*u+i}")
        tag4(VW + 4*u)
        a(f"buffer_store_dwordx4 v[{VW+4*u}:{VW+4*u+3}], v{V_B512}, s[{H_WS}:{H_WS+3}], s4 offen offset:{u*256} {sf_y}")
    stamp(7, HST)
    a(f"v_lshrrev_b32 v{VT}, 1, v0")
    a(f"v_lshlrev_b32 v{VT}, 11, v{VT}")
    a(f"v_and_b32 v{VT+1}, 1, v0")
    a(f"v_lshl_add_u32 v{VT}, v{VT+1}, 4, v{VT}")
    a("s_bfe_u32 s4, s2, 0x20004")
    a("s_lshl_b32 s4, s4, 17")
    a("s_lshr_b32 s5, s2, 6")
    a("s_lshl_b32 s5, s5, 9")
    a("s_add_u32 s4, s4, s5")
    a("s_bfe_u32 s5, s2, 0x10003")
    a("s_lshl_b32 s5, s5, 8")
    a("s_add_u32 s4, s4, s5")
    a("s_and_b32 s5, s2, 7")
    a("s_lshl_b32 s5, s5, 5")
    a("s_add_u32 s4, s4, s5")
    a(f"s_add_u32 s4, s4, {Y_G}")
    a("s_add_u32 s5, s4, 65536")
    Y = VW + 16
    a.label("L_fin")
    a(f"buffer_load_dwordx4 v[{Y}:{Y+3}], v{VT}, s[{H_WS}:{H_WS+3}], s4 offen {fl_fin}")
    a(f"buffer_load_dwordx4 v[{Y+4}:{Y+7}], v{VT}, s[{H_WS}:{H_WS+3}], s5 offen {fl_fin}")
    a("s_lshr_b32 s6, s2, 6")
    a("s_lshl_b32 s6, s6, 10")
    a("s_bfe_u32 s7, s2, 0x20004")
    a("s_lshl_b32 s7, s7, 8")
    a("s_add_u32 s6, s6, s7")
    a("s_and_b32 s7, s2, 7")
    a("s_lshl_b32 s7, s7, 5")
    a("s_add_u32 s6, s6, s7")
    a("s_bfe_u32 s7, s2, 0x10003")
    a("s_lshl_b32 s7, s7, 3")
    a("s_add_u32 s6, s6, s7")
    srd(H_W, P_OUT, 4096)
    a("s_waitcnt vmcnt(0)")
    check("L_fin", quads=[Y, Y + 4], sleep=tailsleep)
    for i in range(4): a(f"v_add_f32 v{Y+i}, v{Y+i}, v{Y+4+i}")
    for st in ("quad_perm:[2,3,0,1]", "row_ror:4", "row_ror:8"):
        for i in range(4): a(f"v_add_f32_dpp v{Y+i}, v{Y+i}, v{Y+i} {st} row_mask:0xf bank_mask:0xf")
    xsum([Y + i for i in range(4)], Y + 4, "16")
    xsum([Y + i for i in range(4)], Y + 4, "32")
    a(f"v_lshlrev_b32 v{VT}, 4, v{VT+1}")
    a(f"v_cvt_pk_bf16_f32 v{Y}, v{Y}, v{Y+1}")
    a(f"v_cvt_pk_bf16_f32 v{Y+1}, v{Y+2}, v{Y+3}")
    a("s_mov_b64 exec, 3")
    a(f"buffer_store_dwordx2 v[{Y}:{Y+1}], v{VT}, s[{H_W}:{H_W+3}], s6 offen")
    a("s_cmp_eq_u32 s2, 0")
    a("s_cbranch_scc0 L_noep")
    a("s_mov_b64 exec, 1")
    a(f"v_mov_b32 v{VT}, {EPOCH:#x}")
    a(f"buffer_store_dword v{V_TV}, v{VT}, s[{H_WS}:{H_WS+3}], 0 offen sc1")
    a.label("L_noep")
    a("s_mov_b64 exec, -1")
    stamp(8, HST)
    a("s_branch L_hend")

    a.label("L_H1")
    if touch:
        a(f"v_mov_b32 v{VX}, {Y_G + 0x70000:#x}")
        a(f"buffer_load_dword v{VX+1}, v{VX}, s[{H_WS}:{H_WS+3}], 0 offen nt")
    if early and "j2" not in skip:
        qproj_loads(P_BWQ)
        if b0: a("s_barrier")
        stamp(0, HST, start=True)
        h_consts()
        qproj_rest(QBP_G, True, publish=False)
        if "wpre" not in skip: wpre_loads(P_BWO, VW + 32)
        if b0b: a("s_barrier")
        a("s_barrier")
        qproj_publish()
        stamp(1, HST)
        if "wpre" not in skip:
            a("s_waitcnt vmcnt(2)") if not diag else a("s_waitcnt vmcnt(0)")
            wpre_perms(VW + 32, waits=False)
    else:
        if b0: a("s_barrier")
        stamp(0, HST, start=True)
        h_consts()
        a("s_waitcnt vmcnt(0)")
        read_tag()
        if b0b: a("s_barrier")
        a("s_barrier")
        if "j2" not in skip:
            qproj_loads(P_BWQ)
            qproj_rest(QBP_G, False)
        stamp(1, HST)
        if "wpre" not in skip: wpre(P_BWO)
    srd(H_W, P_GATE, 1024)
    for b in range(4):
        a(f"buffer_load_dwordx4 v[{VW+4*b}:{VW+4*b+3}], v{V_L16}, s[{H_X}:{H_X+3}], 0 offen offset:{b*1024} nt")
    GWR = VW + 16
    a(f"buffer_load_dwordx4 v[{GWR}:{GWR+3}], v{V_L16}, s[{H_W}:{H_W+3}], 0 offen nt")
    a("s_waitcnt vmcnt(0)")
    GW = VW + 20
    for i in range(4):
        a(f"v_lshlrev_b32 v{GW+2*i}, 16, v{GWR+i}")
        a(f"v_and_b32 v{GW+2*i+1}, s{H_MHI}, v{GWR+i}")
    XU = VW + 28
    Z = VW + 36
    for b in range(4):
        for i in range(4):
            a(f"v_lshlrev_b32 v{XU+2*i}, 16, v{VW+4*b+i}")
            a(f"v_and_b32 v{XU+2*i+1}, s{H_MHI}, v{VW+4*b+i}")
        for i in range(8): a(f"v_mul_f32 v{XU+i}, v{XU+i}, v{GW+i}")
        for i in range(4): a(f"v_cvt_pk_bf16_f32 v{VW+4*b+i}, v{XU+2*i}, v{XU+2*i+1}")
        for i in range(4):
            a(f"v_lshlrev_b32 v{XU+2*i}, 16, v{VW+4*b+i}")
            a(f"v_and_b32 v{XU+2*i+1}, s{H_MHI}, v{VW+4*b+i}")
        for i in range(4): a(f"v_add_f32 v{XU+i}, v{XU+i}, v{XU+4+i}")
        a(f"v_add_f32 v{XU}, v{XU}, v{XU+2}")
        a(f"v_add_f32 v{XU+1}, v{XU+1}, v{XU+3}")
        a(f"v_add_f32 v{Z+b}, v{XU}, v{XU+1}")
    for rot in (8, 4, 2, 1):
        a("s_nop 0")
        for b in range(4):
            a(f"v_add_f32_dpp v{Z+b}, v{Z+b}, v{Z+b} row_ror:{rot} row_mask:0xf bank_mask:0xf")
    xsum([Z + b for b in range(4)], Z + 4, "32")
    xsum([Z + b for b in range(4)], Z + 4, "16")
    for b in range(4): a(f"v_cvt_pk_bf16_f32 v{Z+b}, v{Z+b}, v{Z+b}")
    for b in range(4): a(f"v_lshlrev_b32 v{Z+b}, 16, v{Z+b}")
    for b in range(4): a(f"v_mul_f32 v{Z+b}, s{H_L2E}, v{Z+b}")
    for b in range(4): a(f"v_sub_f32 v{Z+b}, 0, v{Z+b}")
    for b in range(4): a(f"v_exp_f32 v{Z+b}, v{Z+b}")
    a("s_nop 0")
    for b in range(4): a(f"v_add_f32 v{Z+b}, 1.0, v{Z+b}")
    for b in range(4): a(f"v_rcp_f32 v{Z+b}, v{Z+b}")
    a("s_nop 0")
    for b in range(4): a(f"v_cvt_pk_bf16_f32 v{Z+b}, v{Z+b}, v{Z+b}")
    GG = Z + 8
    for b in range(4): a(f"v_lshlrev_b32 v{GG+2*b}, 16, v{Z+b}")
    for b in range(4): a(f"v_sub_f32 v{GG+2*b+1}, 1.0, v{GG+2*b}")
    for b in range(4): a(f"v_cvt_pk_bf16_f32 v{GG+2*b+1}, v{GG+2*b+1}, v{GG+2*b+1}")
    for b in range(4): a(f"v_lshlrev_b32 v{GG+2*b+1}, 16, v{GG+2*b+1}")
    a(f"v_mov_b32 v{VT}, 0")
    a("s_mov_b64 exec, 1")
    a(f"ds_write_b128 v{VT}, v[{GG}:{GG+3}] offset:{L_G}")
    a(f"ds_write_b128 v{VT}, v[{GG+4}:{GG+7}] offset:{L_G + 16}")
    a("s_mov_b64 exec, -1")
    a("s_waitcnt lgkmcnt(0)")
    a(f"v_lshlrev_b32 v{VT}, 3, v{VG}")
    a(f"ds_read_b32 v{V_GS}, v{VT} offset:{L_G + 4}")
    stamp(2, HST)
    if "j3" not in skip:
        a(f"v_lshlrev_b32 v{VT}, 11, v{VG}")
        a(f"v_lshl_add_u32 v{VT}, v{VC}, 4, v{VT}")
        a(f"s_lshl_b32 s4, s{H_h}, 14")
        a(f"s_lshl_b32 s5, s{H_b}, 9")
        a("s_add_u32 s4, s4, s5")
        a("s_lshr_b32 s6, s2, 7")
        a("s_lshl_b32 s5, s6, 8")
        a("s_add_u32 s4, s4, s5")
        a(f"s_add_u32 s4, s4, {QBP_G}")
        a("s_add_u32 s5, s4, 8192")
        a.label("L_qbc")
        a(f"buffer_load_dwordx4 v[{VW}:{VW+3}], v{VT}, s[{H_WS}:{H_WS+3}], s4 offen {fl_qbc}")
        a(f"buffer_load_dwordx4 v[{VW+4}:{VW+7}], v{VT}, s[{H_WS}:{H_WS+3}], s5 offen {fl_qbc}")
        a("s_waitcnt vmcnt(0)")
        check("L_qbc", quads=[VW, VW + 4], sleep=midsleep)
        for i in range(4): a(f"v_add_f32 v{VW+i}, v{VW+i}, v{VW+4+i}")
        xsum([VW + i for i in range(4)], VW + 4, "32")
        xsum([VW + i for i in range(4)], VW + 4, "16")
        a(f"v_cvt_pk_bf16_f32 v{VW}, v{VW}, v{VW+1}")
        a(f"v_cvt_pk_bf16_f32 v{VW+2}, v{VW+2}, v{VW+3}")
        a(f"v_mov_b32 v{VW+1}, s{H_T}")
        a(f"v_mov_b32 v{VW+3}, s{H_T}")
        a(f"s_lshl_b32 s4, s{H_h}, 11")
        a(f"s_lshl_b32 s5, s{H_b}, 9")
        a("s_add_u32 s4, s4, s5")
        a("s_lshl_b32 s5, s6, 8")
        a("s_add_u32 s4, s4, s5")
        a(f"s_add_u32 s4, s4, {QBF_G}")
        a("s_mov_b64 exec, 0xffff")
        a(f"buffer_store_dwordx4 v[{VW}:{VW+3}], v{V_L16}, s[{H_WS}:{H_WS+3}], s4 offen {sf_qbf}")
        a("s_mov_b64 exec, -1")
        stamp(3, HST)
        if bm is not None: a("s_barrier")
        a(f"v_lshlrev_b32 v{VT}, 11, v{VG}")
        a(f"v_lshl_add_u32 v{VT}, v{VC}, 4, v{VT}")
        a("s_bfe_u32 s4, s2, 0x30003")
        a("s_lshl_b32 s4, s4, 13")
        a("s_lshr_b32 s5, s2, 6")
        a("s_lshl_b32 s5, s5, 9")
        a("s_add_u32 s4, s4, s5")
        a(f"s_add_u32 s4, s4, {QBF_G}")
        a.label("L_qbg")
        for u in range(2):
            a(f"buffer_load_dwordx4 v[{VW+8+4*u}:{VW+8+4*u+3}], v{VT}, s[{H_WS}:{H_WS+3}], s4 offen offset:{u*256} {fl_qbg}")
        a("s_waitcnt vmcnt(0)")
        check("L_qbg", fulltags=[VW+9, VW+11, VW+13, VW+15], sleep=midsleep)
        a(f"v_lshlrev_b32 v{VT}, 8, v{VG}")
        a(f"v_lshl_add_u32 v{VT}, v{VC}, 4, v{VT}")
        for u in range(2):
            a(f"v_mov_b32 v{VW+8+4*u+1}, v{VW+8+4*u+2}")
            a(f"ds_write_b64 v{VT}, v[{VW+8+4*u}:{VW+8+4*u+1}] offset:{L_QB + 8*u}")
    elif bm is not None: a("s_barrier")
    a("s_waitcnt lgkmcnt(0)")
    perm_addr(4096)
    st2_addr(8, GP_G, GP_ML)
    a("s_lshr_b32 s4, s2, 6")
    a("s_lshl_b32 s4, s4, 8")
    a("s_bfe_u32 s5, s2, 0x30003")
    a("s_lshl_b32 s5, s5, 5")
    a("s_add_u32 s4, s4, s5")
    a("s_and_b32 s5, s2, 7")
    a("s_add_u32 s4, s4, s5")
    a("s_lshl_b32 s40, s4, 9")
    a(f"s_add_u32 s40, s40, {GP_G}")
    a("s_lshl_b32 s41, s2, 7")
    a(f"s_add_u32 s41, s41, {GP_ML}")
    stamp(4, HST)
    a("s_barrier")
    a("s_barrier")
    for rr in range(2):
        merge(VW + 32 * rr, L_SPB, L_MLB, 2 * rr)
        merge_ml(VW + 32 * rr)
    a("s_mov_b32 s4, 0xaaaaaaaa")
    a("s_mov_b32 s5, 0xaaaaaaaa")
    for i in range(4): a(f"v_cndmask_b32 v{VW+4+i}, v{VW+4+i}, v{VW+32+4+i}, s[4:5]")
    a(f"v_lshrrev_b32 v{VT}, 5, v0")
    a(f"v_and_b32 v{VT+1}, 1, v0")
    a(f"v_lshl_add_u32 v{VT}, v{VT+1}, 1, v{VT}")
    a(f"v_bfe_u32 v{VT+1}, v0, 1, 1")
    a(f"v_lshl_add_u32 v{VT}, v{VT+1}, 2, v{VT}")
    a(f"v_lshlrev_b32 v{VT}, 4, v{VT}")
    stamp(5, HST)
    a("s_barrier")
    if "gp" not in skip:
        for rr in range(2):
            q0 = VW + 32 * rr
            a(f"buffer_store_dwordx4 v[{q0}:{q0+3}], v{V_PERM}, s[{H_WS}:{H_WS+3}], s40 offen {sf_gp}")
            if rr == 0: a("s_add_u32 s40, s40, 8192")
        a("s_mov_b32 exec_lo, 0xf")
        a("s_mov_b32 exec_hi, 0xf")
        a(f"buffer_store_dwordx4 v[{VW+4}:{VW+7}], v{VT}, s[{H_WS}:{H_WS+3}], s41 offen {sf_gp}")
        a("s_mov_b64 exec, -1")
    stamp(6, HST)
    a("s_barrier")
    if "tail" in skip: a("s_branch L_hend")
    st2(8, L_OBB, "st2b", tailsleep, True)
    a(f"v_lshlrev_b32 v{VT}, 5, v0")
    a("s_nop 6")
    select_batch(VW)
    a(f"ds_write_b128 v{VT}, v[{VW}:{VW+3}] offset:{L_YB}")
    a(f"ds_write_b128 v{VT}, v[{VW+4}:{VW+7}] offset:{L_YB + 16}")
    a("s_waitcnt lgkmcnt(0)")
    stamp(7, HST)
    a("s_barrier")
    a.label("L_hend")
    a("s_waitcnt vmcnt(0)")
    a.label("L_end")
    a("s_endpgm")
    nagpr = 32 * D
    a.raw('.section .rodata,"a"')
    a.raw(".p2align 6")
    a.raw(f".amdhsa_kernel {NAME}_kernel")
    a.raw(f"  .amdhsa_next_free_vgpr {256 + max(nagpr, 64)}")
    a.raw("  .amdhsa_next_free_sgpr 96")
    a.raw("  .amdhsa_accum_offset 256")
    a.raw("  .amdhsa_group_segment_fixed_size 0")
    a.raw("  .amdhsa_kernarg_size 112")
    a.raw("  .amdhsa_user_sgpr_count 2")
    a.raw("  .amdhsa_user_sgpr_kernarg_segment_ptr 1")
    a.raw("  .amdhsa_system_sgpr_workgroup_id_x 1")
    a.raw("  .amdhsa_float_denorm_mode_32 3")
    a.raw(".end_amdhsa_kernel")
    return a.text()

if __name__ == "__main__":
    import json
    kw = json.loads(sys.argv[2]) if len(sys.argv) > 2 else {}
    open(sys.argv[1], "w").write(gen(**kw))
```

```python
import sys

NAME = "gated_mix__mha_block_cached__gqa_block_cached__decode"

EPOCH  = 0x000000
GP_ML  = 0x001000
OA_ML  = 0x009000
QA_G   = 0x011000
QBP_G  = 0x091000
QBF_G  = 0x111000
OA_G   = 0x121000
GP_G   = 0x141000
Y_G    = 0x1C1000
DIAG   = 0x250000
WS_USED = 0x280000

L_QA, L_QB = 0, 256
L_SPA, L_SPB = 2048, 6144
L_MLA, L_MLB = 10240, 10496
L_OBA, L_OBB = 10752, 11264
L_G = 11776
L_YB = 11840
LDS_BYTES = 14336

SCALE = 0x3db504f3
LOG2E = 0x3fb8aa3b
SEL_LO, SEL_HI = 0x05040100, 0x07060302
TAGINC = 0x9e3779b9
NEG_INF = 0xff800000
NEG_BIG = 0xf149f2ca

class Asm:
    def __init__(self):
        self.L = []
        self.n = 0
    def __call__(self, s):
        self.L.append("  " + s)
    def label(self, s):
        self.L.append(s + ":")
    def raw(self, s):
        self.L.append(s)
    def uniq(self, p):
        self.n += 1
        return f"{p}_{self.n}"
    def text(self):
        return "\n".join(self.L) + "\n"

P_X, P_AK, P_AV, P_AWQ, P_AWO = 44, 46, 48, 50, 52
P_BK, P_BV, P_BWQ, P_BWO, P_GATE, P_OUT, P_DBG, P_WS = 56, 58, 60, 62, 64, 66, 68, 70

def gen(D=4, N0=16, diag=False, kvflags="nt", maxpoll=1 << 18, b0=True, b0b=True, batch1=None,
        noH=False, nocomp=0, skip=(), mimic=True, tailsleep=1, midsleep=8, qsleep=0,
        hoflags="sc1", stflags="sc1", qaack=False, stag=False, G2=False, touch=False, b0pos=0, early=True, bm=None, itstamp=False, GB=None, fl_qa=None, fl_qbc=None, fl_qbg=None, fl_st2a=None, fl_st2b=None, fl_fin=None, sf_qa=None, sf_qbp=None, sf_qbf=None, sf_gp=None, sf_oa=None, sf_y=None):
    a = Asm()
    W, NH = 2, 2
    NWAVES = W + NH
    TA = 128 // W
    TB = 32 // W
    if batch1 is None: batch1 = max(1, D // 2)
    assert N0 % D == 0 and TB % D == 0 and (TA - N0) % D == 0
    a.raw(f"; @launch grid=(256,1,1) block=({64*NWAVES},1,1) lds={LDS_BYTES}")
    a.raw('.amdgcn_target "amdgcn-amd-amdhsa--gfx950"')
    a.raw(".text")
    a.raw(f".globl {NAME}_kernel")
    a.raw(".p2align 8")
    a.raw(f".type {NAME}_kernel,@function")
    a.label(f"{NAME}_kernel")
    a("s_cmp_ge_u32 s2, 256")
    a("s_cbranch_scc1 L_end")
    a("s_load_dwordx16 s[44:59], s[0:1], 0")
    a("s_load_dwordx8 s[60:67], s[0:1], 64")
    a("s_load_dwordx4 s[68:71], s[0:1], 96")
    if diag:
        a("s_memrealtime s[72:73]")
        a("s_memtime s[80:81]")
    a("v_lshrrev_b32 v1, 6, v0")
    a("v_and_b32 v0, 63, v0")
    a("v_and_b32 v3, 15, v0")
    a("v_readfirstlane_b32 s3, v1")
    a("v_lshrrev_b32 v2, 4, v0")
    a("s_waitcnt lgkmcnt(0)")
    a(f"s_cmp_ge_u32 s3, {W}")
    a("s_cbranch_scc1 L_H")

    def stamp(idx, r0, start=False):
        if not diag: return
        if not start:
            a("s_memrealtime s[74:75]")
            a("s_waitcnt lgkmcnt(0)")
            a(f"v_mov_b32 v{r0}, s74")
        else:
            a(f"v_mov_b32 v{r0}, s72")
        a(f"s_lshl_b32 s76, s2, 2")
        a("s_add_u32 s76, s76, s3")
        a("s_lshl_b32 s76, s76, 6")
        a(f"s_add_u32 s76, s76, {DIAG + idx*4}")
        a(f"v_mov_b32 v{r0+1}, s76")
        a("s_mov_b64 s[78:79], exec")
        a("s_mov_b64 exec, 1")
        a(f"global_store_dword v{r0+1}, v{r0}, s[{P_WS}:{P_WS+1}]")
        a("s_mov_b64 exec, s[78:79]")

    S_KC, S_VC = 8, 12
    S_KA, S_VA, S_KB, S_VB = 16, 18, 20, 22
    S_OFF, S_OFF2, S_IT, S_SEG = 24, 25, 26, 27
    S_SCALE, S_L2E, S_SELLO, S_SELHI, S_MASKHI = 28, 29, 30, 31, 32
    S_M4 = 36
    V_KO, V_VO = 4, 5
    V_P, V_ML, V_QA, V_QB = 6, 7, 8, 9
    V_Q = 12
    V_S = 28
    V_PB = 36
    V_ST = 40
    V_O = 48
    V_M, V_L, V_MN, V_AL, V_MLG = 80, 81, 82, 83, 84
    V_T = 86
    V_RING = 96
    SST = 250
    def KR(d): return 32 * d
    def VR(d): return V_RING + 32 * d
    fl = (" " + kvflags) if kvflags else ""

    a(f"; ---------------- S waves ----------------")
    GM = 2 if G2 else 1
    if GB is None: GB = GM
    import math
    LGB = int(math.log2(GB))
    STEP = GM * W * 8192
    STEPB = GB * W * 8192
    S_STEP = 35
    S_W0A, S_W0B = 33, 34
    a("s_and_b32 s4, s2, 127")
    a("s_lshl_b32 s4, s4, 21")
    a("s_lshr_b32 s5, s2, 7")
    if G2:
        a(f"s_lshl_b32 s{S_W0A}, s5, 1")
        a(f"s_add_u32 s{S_W0A}, s{S_W0A}, s3")
        a(f"s_lshl_b32 s{S_W0A}, s{S_W0A}, 13")
    else:
        a("s_lshl_b32 s5, s5, 20")
        a("s_add_u32 s4, s4, s5")
        a(f"s_lshl_b32 s{S_W0A}, s3, 13")
    for (dst, p) in ((S_KC, P_AK), (S_VC, P_AV)):
        a(f"s_add_u32 s{dst}, s{p}, s4")
        a(f"s_addc_u32 s{dst+1}, s{p+1}, 0")
        a(f"s_and_b32 s{dst+1}, s{dst+1}, 0xffff")
        a(f"s_mov_b32 s{dst+2}, {GM << 20}")
        a(f"s_mov_b32 s{dst+3}, 0x20000")
    a(f"s_mov_b32 s{S_OFF}, s{S_W0A}")
    a(f"s_add_u32 s{S_OFF2}, s{S_OFF}, 4096")
    a(f"v_lshlrev_b32 v{V_KO}, 8, v3")
    a(f"v_lshl_add_u32 v{V_KO}, v2, 4, v{V_KO}")
    a(f"v_lshlrev_b32 v{V_VO}, 10, v2")
    a(f"v_lshl_add_u32 v{V_VO}, v3, 4, v{V_VO}")
    def issueK(d):
        for t in range(8):
            so = S_OFF if t < 4 else S_OFF2
            r = KR(d) + 4 * t
            a(f"buffer_load_dwordx4 a[{r}:{r+3}], v{V_KO}, s[{S_KC}:{S_KC+3}], s{so} offen offset:{(t%4)*64}{fl}")
    def issueV(d):
        for t in range(8):
            so = S_OFF if t < 4 else S_OFF2
            r = VR(d) + 4 * t
            a(f"buffer_load_dwordx4 v[{r}:{r+3}], v{V_VO}, s[{S_VC}:{S_VC+3}], s{so} offen offset:{(t%4)*256}{fl}")
    a(f"s_mov_b32 s{S_STEP}, {STEP}")
    def advance():
        a(f"s_add_u32 s{S_OFF}, s{S_OFF}, s{S_STEP}")
        a(f"s_add_u32 s{S_OFF2}, s{S_OFF2}, s{S_STEP}")
    if b0: a("s_barrier")
    for d in range(batch1):
        issueK(d); issueV(d); advance()
    a(f"s_mov_b32 s{S_KA}, s{S_KC}")
    a(f"s_mov_b32 s{S_KA+1}, s{S_KC+1}")
    a(f"s_mov_b32 s{S_VA}, s{S_VC}")
    a(f"s_mov_b32 s{S_VA+1}, s{S_VC+1}")
    if GB > 1:
        a(f"s_lshr_b32 s5, s2, {LGB}")
        a(f"s_lshl_b32 s5, s5, {18 + LGB}")
        a(f"s_and_b32 s{S_W0B}, s2, {GB - 1}")
        a(f"s_lshl_b32 s{S_W0B}, s{S_W0B}, 1")
        a(f"s_add_u32 s{S_W0B}, s{S_W0B}, s3")
        a(f"s_lshl_b32 s{S_W0B}, s{S_W0B}, 13")
    else:
        a("s_lshl_b32 s5, s2, 18")
        a(f"s_lshl_b32 s{S_W0B}, s3, 13")
    for (dst, p) in ((S_KB, P_BK), (S_VB, P_BV)):
        a(f"s_add_u32 s{dst}, s{p}, s5")
        a(f"s_addc_u32 s{dst+1}, s{p+1}, 0")
        a(f"s_and_b32 s{dst+1}, s{dst+1}, 0xffff")
    def set_issue(kb, vb, size, tile0, w0, step):
        a(f"s_mov_b32 s{S_KC}, s{kb}")
        a(f"s_mov_b32 s{S_KC+1}, s{kb+1}")
        a(f"s_mov_b32 s{S_KC+2}, {size}")
        a(f"s_mov_b32 s{S_VC}, s{vb}")
        a(f"s_mov_b32 s{S_VC+1}, s{vb+1}")
        a(f"s_mov_b32 s{S_VC+2}, {size}")
        a(f"s_mov_b32 s{S_STEP}, {step}")
        a(f"s_add_u32 s{S_OFF}, s{w0}, {tile0 * STEP}")
        a(f"s_add_u32 s{S_OFF2}, s{S_OFF}, 4096")
    a(f"s_mov_b32 s{S_SCALE}, {SCALE:#x}")
    a(f"s_mov_b32 s{S_L2E}, {LOG2E:#x}")
    a(f"s_mov_b32 s{S_SELLO}, {SEL_LO:#x}")
    a(f"s_mov_b32 s{S_SELHI}, {SEL_HI:#x}")
    a(f"s_mov_b32 s{S_MASKHI}, 0xffff0000")
    a(f"s_mov_b32 s{S_M4}, 0x000f000f")
    a(f"s_mov_b32 s{S_M4+1}, 0x000f000f")
    a(f"v_and_b32 v10, 3, v3")
    a(f"s_lshl_b32 s4, s3, 11")
    a(f"v_lshlrev_b32 v{V_P}, 9, v10")
    a(f"v_lshl_add_u32 v{V_P}, v2, 4, v{V_P}")
    a(f"v_add_u32 v{V_P}, s4, v{V_P}")
    a(f"s_lshl_b32 s4, s3, 7")
    a(f"v_lshlrev_b32 v{V_ML}, 5, v10")
    a(f"v_lshl_add_u32 v{V_ML}, v2, 2, v{V_ML}")
    a(f"v_add_u32 v{V_ML}, s4, v{V_ML}")
    a(f"v_lshlrev_b32 v{V_QA}, 4, v2")
    a(f"v_lshl_add_u32 v{V_QB}, v10, 8, v{V_QA}")
    def init_state():
        for i in range(32): a(f"v_mov_b32 v{V_O+i}, 0")
        a(f"v_mov_b32 v{V_M}, {NEG_INF:#x}")
        a(f"v_mov_b32 v{V_MLG}, {NEG_INF:#x}")
        a(f"v_mov_b32 v{V_L}, 0")
    def load_q(vaddr, base):
        for s in range(4):
            a(f"ds_read_b128 v[{V_Q+4*s}:{V_Q+4*s+3}], v{vaddr} offset:{base + 64*s}")
    init_state()
    if b0b: a("s_barrier")
    for d in range(batch1, D):
        if stag:
            a(f"s_waitcnt vmcnt({16 * batch1 - 8})")
        issueK(d)
        if stag:
            a(f"s_waitcnt vmcnt({16 * batch1 - 8})")
        issueV(d); advance()
    stamp(0, SST, start=True)
    a("s_barrier")
    load_q(V_QA, L_QA)
    a(f"s_mov_b32 s{S_SEG}, 0")
    a(f"s_mov_b32 s{S_IT}, {N0 // D}")
    a("s_waitcnt lgkmcnt(0)")
    stamp(1, SST)
    if itstamp:
        a("s_mov_b32 s38, 0")
        a("v_mov_b32 v249, 0")
    a.label("L_sloop")
    if itstamp:
        a("s_memrealtime s[84:85]")
        a("s_waitcnt lgkmcnt(0)")
        a("s_mov_b32 m0, s38")
        a("s_nop 0")
        a("v_writelane_b32 v249, s84, m0")
        a("s_add_u32 s38, s38, 1")
    if bm is not None:
        a(f"s_cmp_eq_u32 s{S_SEG}, 0")
        a("s_cbranch_scc0 L_nobm")
        a(f"s_cmp_eq_u32 s{S_IT}, {bm}")
        a("s_cbranch_scc0 L_nobm")
        a("s_barrier")
        a.label("L_nobm")
    a(f"s_cmp_eq_u32 s{S_IT}, 1")
    a("s_cbranch_scc0 L_noswitch")
    a(f"s_cmp_eq_u32 s{S_SEG}, 0")
    a("s_cbranch_scc0 L_sw1")
    set_issue(S_KB, S_VB, GB << 18, 0, S_W0B, STEPB)
    a("s_branch L_noswitch")
    a.label("L_sw1")
    a(f"s_cmp_eq_u32 s{S_SEG}, 1")
    a("s_cbranch_scc0 L_sw2")
    set_issue(S_KA, S_VA, GM << 20, N0, S_W0A, STEP)
    a("s_branch L_noswitch")
    a.label("L_sw2")
    a(f"s_mov_b32 s{S_KC+2}, 0")
    a(f"s_mov_b32 s{S_VC+2}, 0")
    a("s_barrier")
    a.label("L_noswitch")
    WAITN = 16 * D - 8
    T = V_T
    for d in range(D):
        a(f"; ---- tile slot {d}")
        a(f"s_waitcnt vmcnt({WAITN})")
        if nocomp:
            issueK(d)
            a(f"s_waitcnt vmcnt({WAITN})")
            issueV(d)
            advance()
            continue
        for s in range(4):
            for h in range(2):
                kr = KR(d) + 4 * (4 * h + s)
                c = "0" if s == 0 else f"v[{V_S+4*h}:{V_S+4*h+3}]"
                a(f"v_mfma_f32_16x16x32_bf16 v[{V_S+4*h}:{V_S+4*h+3}], a[{kr}:{kr+3}], v[{V_Q+4*s}:{V_Q+4*s+3}], {c}")
        issueK(d)
        a("s_nop 1")
        S = [V_S + i for i in range(8)]
        if mimic:
            for i in range(4): a(f"v_cvt_pk_bf16_f32 v{T+i}, v{S[2*i]}, v{S[2*i+1]}")
            for i in range(4):
                a(f"v_lshlrev_b32 v{S[2*i]}, 16, v{T+i}")
                a(f"v_and_b32 v{S[2*i+1]}, s{S_MASKHI}, v{T+i}")
            for i in range(8): a(f"v_mul_f32 v{S[i]}, s{S_SCALE}, v{S[i]}")
            for i in range(4): a(f"v_cvt_pk_bf16_f32 v{T+i}, v{S[2*i]}, v{S[2*i+1]}")
            for i in range(4):
                a(f"v_lshlrev_b32 v{S[2*i]}, 16, v{T+i}")
                a(f"v_and_b32 v{S[2*i+1]}, s{S_MASKHI}, v{T+i}")
        else:
            for i in range(8): a(f"v_mul_f32 v{S[i]}, s{S_SCALE}, v{S[i]}")
        a(f"v_max3_f32 v{T}, v{S[0]}, v{S[1]}, v{S[2]}")
        a(f"v_max3_f32 v{T+1}, v{S[3]}, v{S[4]}, v{S[5]}")
        a(f"v_max3_f32 v{T}, v{T}, v{S[6]}, v{S[7]}")
        a(f"v_max_f32 v{T}, v{T}, v{T+1}")
        a(f"v_mov_b32 v{T+1}, v{T}")
        a("s_nop 1")
        a(f"v_permlane32_swap_b32 v{T}, v{T+1}")
        a(f"v_max_f32 v{T}, v{T}, v{T+1}")
        a(f"v_mov_b32 v{T+1}, v{T}")
        a("s_nop 1")
        a(f"v_permlane16_swap_b32 v{T}, v{T+1}")
        a(f"v_max_f32 v{T}, v{T}, v{T+1}")
        a(f"v_max_f32 v{V_MN}, v{V_M}, v{T}")
        a(f"v_cmp_gt_f32 vcc, v{V_MN}, v{V_M}")
        lab = a.uniq("L_nors")
        a(f"s_cbranch_vccz {lab}")
        a(f"v_sub_f32 v{T+1}, v{V_M}, v{V_MN}")
        a(f"v_mul_f32 v{T+1}, s{S_L2E}, v{T+1}")
        a(f"v_exp_f32 v{V_AL}, v{T+1}")
        a(f"v_mov_b32 v{V_M}, v{V_MN}")
        a(f"v_mul_f32 v{V_MLG}, s{S_L2E}, v{V_MN}")
        a(f"v_mul_f32 v{V_L}, v{V_L}, v{V_AL}")
        for i in range(32): a(f"v_mul_f32 v{V_O+i}, v{V_O+i}, v{V_AL}")
        a.label(lab)
        for i in range(8): a(f"v_fma_f32 v{S[i]}, v{S[i]}, s{S_L2E}, -v{V_MLG}")
        for i in range(8): a(f"v_exp_f32 v{S[i]}, v{S[i]}")
        a(f"v_add_f32 v{T}, v{S[0]}, v{S[1]}")
        a(f"v_add_f32 v{T+1}, v{S[2]}, v{S[3]}")
        a(f"v_add_f32 v{T+2}, v{S[4]}, v{S[5]}")
        a(f"v_add_f32 v{T+3}, v{S[6]}, v{S[7]}")
        for i in range(4): a(f"v_cvt_pk_bf16_f32 v{V_PB+i}, v{S[2*i]}, v{S[2*i+1]}")
        a(f"v_add_f32 v{T}, v{T}, v{T+1}")
        a(f"v_add_f32 v{T+2}, v{T+2}, v{T+3}")
        a(f"v_add_f32 v{T}, v{T}, v{T+2}")
        a(f"v_add_f32 v{V_L}, v{V_L}, v{T}")
        a(f"s_waitcnt vmcnt({WAITN})")
        def perms(j):
            st = V_ST + 4 * (j & 1)
            r, hh = j >> 1, j & 1
            sel = S_SELHI if hh else S_SELLO
            for u in range(4):
                lo = VR(d) + 4 * (2 * u) + r
                hi = VR(d) + 4 * (2 * u + 1) + r
                a(f"v_perm_b32 v{st+u}, v{hi}, v{lo}, s{sel}")
        def pv(j):
            st = V_ST + 4 * (j & 1)
            a(f"v_mfma_f32_16x16x32_bf16 v[{V_O+4*j}:{V_O+4*j+3}], v[{st}:{st+3}], v[{V_PB}:{V_PB+3}], v[{V_O+4*j}:{V_O+4*j+3}]")
        perms(0); perms(1)
        for j in range(8):
            if j == 7: a("s_nop 0")
            pv(j)
            if j + 2 < 8: perms(j + 2)
        issueV(d)
        advance()
    a(f"s_sub_u32 s{S_IT}, s{S_IT}, 1")
    a(f"s_cmp_lg_u32 s{S_IT}, 0")
    a("s_cbranch_scc1 L_sloop")
    a("s_nop 7")
    a(f"s_cmp_eq_u32 s{S_SEG}, 1")
    a(f"s_cselect_b32 s4, {L_SPB - L_SPA}, 0")
    a(f"s_cselect_b32 s5, {L_MLB - L_MLA}, 0")
    a(f"v_add_u32 v{T}, s4, v{V_P}")
    a(f"v_add_u32 v{T+1}, s5, v{V_ML}")
    a(f"s_mov_b64 exec, s[{S_M4}:{S_M4+1}]")
    for j in range(8):
        a(f"ds_write_b128 v{T}, v[{V_O+4*j}:{V_O+4*j+3}] offset:{L_SPA + 64*j}")
    a(f"ds_write_b32 v{T+1}, v{V_L} offset:{L_MLA}")
    a(f"ds_write_b32 v{T+1}, v{V_M} offset:{L_MLA + 16}")
    a("s_mov_b64 exec, -1")
    a("s_waitcnt lgkmcnt(0)")
    a(f"s_cmp_eq_u32 s{S_SEG}, 0")
    a("s_cbranch_scc0 L_se1")
    stamp(2, SST)
    a("s_barrier")
    load_q(V_QB, L_QB)
    init_state()
    a(f"s_mov_b32 s{S_SEG}, 1")
    a(f"s_mov_b32 s{S_IT}, {TB // D}")
    a("s_waitcnt lgkmcnt(0)")
    a("s_branch L_sloop")
    a.label("L_se1")
    a(f"s_cmp_eq_u32 s{S_SEG}, 1")
    a("s_cbranch_scc0 L_se2")
    stamp(3, SST)
    a("s_barrier")
    load_q(V_QA, L_QA)
    for j in range(8):
        a(f"ds_read_b128 v[{V_O+4*j}:{V_O+4*j+3}], v{V_P} offset:{L_SPA + 64*j}")
    a(f"ds_read_b32 v{V_L}, v{V_ML} offset:{L_MLA}")
    a(f"ds_read_b32 v{V_M}, v{V_ML} offset:{L_MLA + 16}")
    a(f"s_mov_b32 s{S_SEG}, 2")
    a(f"s_mov_b32 s{S_IT}, {(TA - N0) // D}")
    a("s_waitcnt lgkmcnt(0)")
    a(f"v_mul_f32 v{V_MLG}, s{S_L2E}, v{V_M}")
    a("s_branch L_sloop")
    a.label("L_se2")
    if diag:
        a("s_memtime s[82:83]")
        a("s_waitcnt lgkmcnt(0)")
        a("s_sub_u32 s82, s82, s80")
        a("s_memrealtime s[74:75]")
        a("s_waitcnt lgkmcnt(0)")
        a("s_sub_u32 s74, s74, s72")
        a(f"v_mov_b32 v{SST+2}, s82")
        a(f"v_mov_b32 v{SST+3}, s74")
        a("s_lshl_b32 s76, s2, 2")
        a("s_add_u32 s76, s76, s3")
        a("s_lshl_b32 s76, s76, 6")
        a(f"s_add_u32 s76, s76, {DIAG + 5*4}")
        a(f"v_mov_b32 v{SST+4}, s76")
        a("s_mov_b64 exec, 1")
        a(f"global_store_dwordx2 v{SST+4}, v[{SST+2}:{SST+3}], s[{P_WS}:{P_WS+1}]")
        a("s_mov_b64 exec, -1")
    if itstamp:
        a("s_lshl_b32 s76, s2, 1")
        a("s_add_u32 s76, s76, s3")
        a("s_lshl_b32 s76, s76, 8")
        a(f"s_add_u32 s76, s76, {DIAG + 0x10000}")
        a(f"v_lshl_add_u32 v248, v0, 2, s76")
        a(f"global_store_dword v248, v249, s[{P_WS}:{P_WS+1}]")
    stamp(4, SST)
    a("s_barrier")
    a("s_waitcnt vmcnt(0)")
    a("s_endpgm")

    H_WS, H_W, H_X = 8, 12, 16
    H_T = 20
    H_G1, H_G2, H_G3 = 22, 24, 26
    H_SELLO, H_SELHI, H_L2E = 28, 29, 30
    H_SO = 31
    H_CNT = 32
    H_h, H_b = 34, 35
    H_dh, H_cg, H_i2 = 36, 37, 38
    H_MHI = 39
    H_TB = 84
    H_ST = 88
    VC, VG = 3, 2
    V_L16 = 4
    V_WOFF = 5
    VT = 6
    VX = 8
    V_TV = 16
    V_PERM = 17
    V_GS = 18
    V_B512 = 19
    V_MR = 20
    V_MM = 21
    HST = 22
    VW = 24
    VST = 152
    VD = 160
    VWQ = 192
    ho = hoflags; sf = stflags
    fl_qa = fl_qa or ho; fl_qbc = fl_qbc or ho; fl_qbg = fl_qbg or ho; fl_st2a = fl_st2a or ho; fl_st2b = fl_st2b or ho; fl_fin = fl_fin or ho
    sf_qa = sf_qa or sf; sf_qbp = sf_qbp or sf; sf_qbf = sf_qbf or sf; sf_gp = sf_gp or sf; sf_oa = sf_oa or sf; sf_y = sf_y or sf

    def srd(dst, p, size):
        a(f"s_mov_b32 s{dst}, s{p}")
        a(f"s_and_b32 s{dst+1}, s{p+1}, 0xffff")
        a(f"s_mov_b32 s{dst+2}, {size}")
        a(f"s_mov_b32 s{dst+3}, 0x20000")

    def check(lab, quads=(), fulltags=(), sleep=0):
        acc, accf = VST, VST + 1
        done = a.uniq("L_ok")
        first = True
        for q in quads:
            for i in range(4):
                if first: a(f"v_xor_b32 v{acc}, s{H_TB+i}, v{q+i}"); first = False
                else: a(f"v_bitop3_b32 v{acc}, v{acc}, v{q+i}, s{H_TB+i} bitop3:0xf6")
        if quads: a(f"v_and_b32 v{acc}, 0xff, v{acc}")
        for r in fulltags:
            if first: a(f"v_xor_b32 v{acc}, s{H_T}, v{r}"); first = False
            else: a(f"v_bitop3_b32 v{acc}, v{acc}, v{r}, s{H_T} bitop3:0xf6")
        a(f"v_cmp_ne_u32 vcc, 0, v{acc}")
        a(f"s_cbranch_vccz {done}")
        a(f"s_sub_u32 s{H_CNT}, s{H_CNT}, 1")
        a(f"s_cmp_eq_u32 s{H_CNT}, 0")
        a(f"s_cbranch_scc1 {done}")
        if sleep: a(f"s_sleep {sleep}")
        a(f"s_branch {lab}")
        a.label(done)

    def tag4(dst, src=None):
        src = [dst + i for i in range(4)] if src is None else src
        for i in range(4):
            a(f"v_perm_b32 v{dst+i}, v{src[i]}, v{V_TV}, s{H_ST+i}")

    def wt_tile(wbase, areg, first):
        def perms(j):
            st = VST + 4 * (j & 1)
            r, hh = j >> 1, j & 1
            sel = H_SELHI if hh else H_SELLO
            for u in range(4):
                lo = wbase + 4 * (2 * u) + r
                hi = wbase + 4 * (2 * u + 1) + r
                a(f"v_perm_b32 v{st+u}, v{hi}, v{lo}, s{sel}")
        def mm(j):
            st = VST + 4 * (j & 1)
            c = "0" if first else f"v[{VD+4*j}:{VD+4*j+3}]"
            a(f"v_mfma_f32_16x16x32_bf16 v[{VD+4*j}:{VD+4*j+3}], v[{areg}:{areg+3}], v[{st}:{st+3}], {c}")
        perms(0); perms(1)
        for j in range(8):
            if j == 7: a("s_nop 0")
            mm(j)
            if j + 2 < 8: perms(j + 2)

    def select_batch(dst):
        for j in range(8): a(f"v_cndmask_b32 v{dst+j}, v{VD+4*j}, v{VD+4*j+1}, s[{H_G1}:{H_G1+1}]")
        for j in range(8): a(f"v_cndmask_b32 v{dst+j}, v{dst+j}, v{VD+4*j+2}, s[{H_G2}:{H_G2+1}]")
        for j in range(8): a(f"v_cndmask_b32 v{dst+j}, v{dst+j}, v{VD+4*j+3}, s[{H_G3}:{H_G3+1}]")

    def xsum(regs, tmp, sw):
        for i, r in enumerate(regs): a(f"v_mov_b32 v{tmp+i}, v{r}")
        if len(regs) < 3: a("s_nop 1")
        for i, r in enumerate(regs): a(f"v_permlane{sw}_swap_b32 v{r}, v{tmp+i}")
        for i, r in enumerate(regs): a(f"v_add_f32 v{r}, v{r}, v{tmp+i}")

    def read_tag():
        a(f"v_readfirstlane_b32 s{H_T}, v{VT+1}")
        a("s_nop 3")
        a(f"s_add_u32 s{H_T}, s{H_T}, {TAGINC:#x}")
        for i in range(4): a(f"s_bfe_u32 s{H_TB+i}, s{H_T}, {0x80000 + 8*i:#x}")
        a(f"v_mov_b32 v{V_TV}, s{H_T}")

    def qproj_loads(pw):
        srd(H_W, pw, 4 << 20)
        a(f"s_lshr_b32 s6, s2, 5")
        a(f"v_and_b32 v{VT}, 3, v{VC}")
        a(f"v_lshlrev_b32 v{VT}, 10, v{VT}")
        a(f"v_lshl_add_u32 v{VT}, v{VG}, 4, v{VT}")
        a(f"v_lshlrev_b32 v{V_WOFF}, 16, v{VG}")
        a(f"v_lshl_add_u32 v{V_WOFF}, v{VC}, 4, v{V_WOFF}")
        a(f"s_lshl_b32 s7, s6, 7")
        a(f"s_lshl_b32 s{H_SO}, s6, 19")
        a(f"s_lshl_b32 s4, s{H_h}, 8")
        a(f"s_add_u32 s{H_SO}, s{H_SO}, s4")
        a(f"buffer_load_dwordx4 v[{VX}:{VX+3}], v{VT}, s[{H_X}:{H_X+3}], s7 offen nt")
        a(f"buffer_load_dwordx4 v[{VX+4}:{VX+7}], v{VT}, s[{H_X}:{H_X+3}], s7 offen offset:64 nt")
        for tau in range(2):
            for t in range(8):
                r = VW + 32 * tau + 4 * t
                a(f"buffer_load_dwordx4 v[{r}:{r+3}], v{V_WOFF}, s[{H_W}:{H_W+3}], s{H_SO} offen nt")
                if not (tau == 1 and t == 7):
                    step = 8192 if t < 7 else (32 - 7) * 8192
                    a(f"s_add_u32 s{H_SO}, s{H_SO}, {step}")
    def qproj_rest(dst, first, publish=True):
        a(f"s_lshl_b32 s7, s{H_h}, 3")
        a("s_add_u32 s7, s7, s6")
        a("s_lshl_b32 s7, s7, 11")
        if dst: a(f"s_add_u32 s7, s7, {dst}")
        a("s_waitcnt vmcnt(8)")
        wt_tile(VW, VX, True)
        a("s_waitcnt vmcnt(0)")
        wt_tile(VW + 32, VX + 4, False)
        if first: read_tag()
        else: a("s_nop 7")
        select_batch(VW)
        for u in range(2):
            tag4(VW + 4*u)
            if publish:
                a(f"buffer_store_dwordx4 v[{VW+4*u}:{VW+4*u+3}], v{V_B512}, s[{H_WS}:{H_WS+3}], s7 offen offset:{u*256} {sf_qa if dst == QA_G else sf_qbp}")
    def qproj_publish():
        for u in range(2):
            a(f"buffer_store_dwordx4 v[{VW+4*u}:{VW+4*u+3}], v{V_B512}, s[{H_WS}:{H_WS+3}], s7 offen offset:{u*256} {sf_qbp}")

    def merge(q0, sp, ml, r0):
        for w in range(W):
            a(f"ds_read_b128 v[{q0+8+4*w}:{q0+8+4*w+3}], v{V_MR} offset:{sp + w*2048 + r0*512}")
            a(f"ds_read_b128 v[{q0+16+4*w}:{q0+16+4*w+3}], v{V_MM} offset:{ml + w*128 + r0*32}")
            a(f"ds_read_b32 v{q0+24+w}, v{V_MM} offset:{ml + w*128 + r0*32 + 16}")
        a("s_waitcnt lgkmcnt(0)")
        M = q0 + 4; F = q0 + 26; LL = q0 + 6
        a(f"v_max_f32 v{M}, v{q0+24}, v{q0+25}")
        a(f"v_max_f32 v{M}, {NEG_BIG:#x}, v{M}")
        for w in range(W): a(f"v_sub_f32 v{F+w}, v{q0+24+w}, v{M}")
        for w in range(W): a(f"v_mul_f32 v{F+w}, s{H_L2E}, v{F+w}")
        for w in range(W): a(f"v_exp_f32 v{F+w}, v{F+w}")
        for w in range(W):
            l0 = q0 + 16 + 4 * w
            a(f"v_add_f32 v{l0}, v{l0}, v{l0+1}")
            a(f"v_add_f32 v{l0+2}, v{l0+2}, v{l0+3}")
        for i in range(4): a(f"v_mul_f32 v{q0+i}, v{F}, v{q0+8+i}")
        for i in range(4): a(f"v_fmac_f32 v{q0+i}, v{F+1}, v{q0+12+i}")
        tag4(q0)
    def merge_ml(q0):
        M = q0 + 4; F = q0 + 26; LL = q0 + 6
        for w in range(W):
            l0 = q0 + 16 + 4 * w
            a(f"v_add_f32 v{l0}, v{l0}, v{l0+2}")
        a(f"v_mov_b32 v{M+1}, s{H_T}")
        a(f"v_mul_f32 v{LL}, v{F}, v{q0+16}")
        a(f"v_mov_b32 v{M+3}, s{H_T}")
        a(f"v_fmac_f32 v{LL}, v{F+1}, v{q0+20}")

    def perm_addr(headstep):
        a(f"v_bfe_u32 v{VST}, v0, 1, 1")
        a(f"v_lshlrev_b32 v{V_PERM}, 8, v{VST}")
        a(f"v_bfe_u32 v{VST}, v0, 2, 3")
        a(f"v_lshl_add_u32 v{V_PERM}, v{VST}, 5, v{V_PERM}")
        a(f"v_and_b32 v{VST}, 1, v0")
        a(f"v_lshl_add_u32 v{V_PERM}, v{VST}, 4, v{V_PERM}")
        a(f"v_lshrrev_b32 v{VST}, 5, v0")
        a(f"v_and_b32 v{VST+1}, 31, v0")
        a(f"v_lshlrev_b32 v{V_MR}, 4, v{VST+1}")
        if headstep:
            a(f"v_mul_u32_u24 v{VST+1}, {headstep}, v{VST}")
            a(f"v_add_u32 v{V_PERM}, v{V_PERM}, v{VST+1}")
            a(f"v_lshl_add_u32 v{V_MR}, v{VST}, 9, v{V_MR}")
            a(f"v_lshlrev_b32 v{V_MM}, 5, v{VST}")
        else:
            a(f"v_mov_b32 v{V_MM}, 0")

    def wpre_loads(pw, stage):
        srd(H_W, pw, 4 << 20)
        a(f"v_lshlrev_b32 v{V_WOFF}, 10, v{VG}")
        a(f"v_lshl_add_u32 v{V_WOFF}, v{VC}, 4, v{V_WOFF}")
        a(f"s_lshl_b32 s92, s{H_h}, 17")
        a(f"s_lshl_b32 s93, s{H_dh}, 16")
        a("s_add_u32 s92, s92, s93")
        a(f"s_lshl_b32 s93, s{H_cg}, 8")
        a("s_add_u32 s92, s92, s93")
        for tau in range(2):
            for t in range(8):
                r = stage + 32 * tau + 4 * t
                a(f"s_add_u32 s{H_SO}, s92, {(8*t + 4*tau)*1024}")
                a(f"buffer_load_dwordx4 v[{r}:{r+3}], v{V_WOFF}, s[{H_W}:{H_W+3}], s{H_SO} offen nt")
    def wpre_perms(stage, waits=True):
        for tau in range(2):
            if waits: a(f"s_waitcnt vmcnt({8 * (1 - tau)})")
            for j in range(8):
                r, hh = j >> 1, j & 1
                sel = H_SELHI if hh else H_SELLO
                for u in range(4):
                    lo = stage + 32 * tau + 4 * (2 * u) + r
                    hi = stage + 32 * tau + 4 * (2 * u + 1) + r
                    a(f"v_perm_b32 v{VWQ + 32*tau + 4*j + u}, v{hi}, v{lo}, s{sel}")
    def wpre(pw):
        wpre_loads(pw, VW)
        wpre_perms(VW)

    VGP, VGM = VX, VX + 1
    def st2_addr(NP, pbase, mlbase):
        a(f"v_mul_u32_u24 v{VGP}, {32*NP*512}, v{VG}")
        a(f"v_lshl_add_u32 v{VGP}, v{VC}, 4, v{VGP}")
        a(f"v_lshlrev_b32 v{VGM}, 13, v{VG}")
        a(f"v_and_b32 v{VST}, {NP-1}, v{VC}")
        a(f"v_lshl_add_u32 v{VGM}, v{VST}, 7, v{VGM}")
        a(f"s_mul_i32 s42, s{H_h}, {NP*512}")
        a(f"s_lshl_b32 s5, s{H_dh}, 8")
        a("s_add_u32 s42, s42, s5")
        a(f"s_add_u32 s42, s42, {pbase}")
        if NP == 2:
            a(f"s_lshl_b32 s43, s{H_h}, 8")
        else:
            a(f"s_lshr_b32 s43, s{H_h}, 2")
            a("s_lshl_b32 s43, s43, 10")
            a(f"s_and_b32 s5, s{H_h}, 3")
            a("s_lshl_b32 s5, s5, 4")
            a("s_add_u32 s43, s43, s5")
        a(f"s_add_u32 s43, s43, {mlbase}")

    def st2(NP, ob, name, sleep, light):
        Y = VW
        ML = VW + 4 * NP
        ho = fl_st2a if NP == 2 else fl_st2b
        if light:
            lab = f"L_{name}_lp"
            a.label(lab)
            a(f"buffer_load_dwordx4 v[{ML}:{ML+3}], v{VGM}, s[{H_WS}:{H_WS+3}], s43 offen {ho}")
            a("s_waitcnt vmcnt(0)")
            check(lab, fulltags=[ML+1, ML+3], sleep=sleep)
        lab = f"L_{name}_g"
        a.label(lab)
        if not light:
            a(f"buffer_load_dwordx4 v[{ML}:{ML+3}], v{VGM}, s[{H_WS}:{H_WS+3}], s43 offen {ho}")
        for p in range(NP):
            a(f"buffer_load_dwordx4 v[{Y+4*p}:{Y+4*p+3}], v{VGP}, s[{H_WS}:{H_WS+3}], s42 offen offset:{p*512} {ho}")
        a("s_waitcnt vmcnt(0)")
        check(lab, quads=[Y + 4*p for p in range(NP)], fulltags=([] if light else [ML+1, ML+3]), sleep=sleep)
        MM, F, LS = VST + 2, VST + 3, VST + 4
        steps = ["quad_perm:[1,0,3,2]"] + (["quad_perm:[2,3,0,1]", "row_half_mirror"] if NP == 8 else [])
        a(f"v_mov_b32 v{MM}, v{ML}")
        for st in steps:
            a("s_nop 1")
            a(f"v_max_f32_dpp v{MM}, v{MM}, v{MM} {st} row_mask:0xf bank_mask:0xf")
        a(f"v_sub_f32 v{F}, v{ML}, v{MM}")
        a(f"v_mul_f32 v{F}, s{H_L2E}, v{F}")
        a(f"v_exp_f32 v{F}, v{F}")
        a(f"v_lshlrev_b32 v{VT}, 3, v0")
        a(f"v_mul_f32 v{LS}, v{F}, v{ML+2}")
        for st in steps:
            a("s_nop 1")
            a(f"v_add_f32_dpp v{LS}, v{LS}, v{LS} {st} row_mask:0xf bank_mask:0xf")
        a(f"v_rcp_f32 v{LS}, v{LS}")
        a(f"v_mul_f32 v{F}, v{V_GS}, v{F}")
        a(f"v_and_b32 v{VT+1}, 3, v{VC}")
        a(f"v_mul_f32 v{F}, v{F}, v{LS}")
        a(f"v_lshlrev_b32 v{VT+1}, 7, v{VT+1}")
        a(f"v_lshl_add_u32 v{VT+1}, v{VG}, 4, v{VT+1}")
        O = VST + 4
        for i in range(4):
            a(f"v_mul_f32_dpp v{O+i}, v{F}, v{Y+i} row_newbcast:0 row_mask:0xf bank_mask:0xf")
        for p in range(1, NP):
            for i in range(4):
                a(f"v_fmac_f32_dpp v{O+i}, v{F}, v{Y+4*p+i} row_newbcast:{p} row_mask:0xf bank_mask:0xf")
        a(f"v_cvt_pk_bf16_f32 v{O}, v{O}, v{O+1}")
        a(f"v_cvt_pk_bf16_f32 v{O+1}, v{O+2}, v{O+3}")
        a(f"ds_write_b64 v{VT}, v[{O}:{O+1}] offset:{ob}")
        a("s_waitcnt lgkmcnt(0)")
        for tau in range(2):
            a(f"ds_read_b128 v[{VX+4*tau}:{VX+4*tau+3}], v{VT+1} offset:{ob + 64*tau}")
        a("s_waitcnt lgkmcnt(0)")
        for tau in range(2):
            for j in range(8):
                c = "0" if tau == 0 else f"v[{VD+4*j}:{VD+4*j+3}]"
                wr = VWQ + 32 * tau + 4 * j
                a(f"v_mfma_f32_16x16x32_bf16 v[{VD+4*j}:{VD+4*j+3}], v[{VX+4*tau}:{VX+4*tau+3}], v[{wr}:{wr+3}], {c}")

    NB = 4 + (1 if b0 else 0) + (1 if b0b else 0) + 1 + (1 if bm is not None else 0)
    a.label("L_H")
    a("; ---------------- H waves ----------------")
    if noH:
        for _ in range(NB): a("s_barrier")
        a("s_branch L_end")
    srd(H_WS, P_WS, WS_USED)
    srd(H_X, P_X, 4096)
    a(f"v_mov_b32 v{VT}, {EPOCH:#x}")
    a(f"buffer_load_dword v{VT+1}, v{VT}, s[{H_WS}:{H_WS+3}], 0 offen sc1")
    a(f"s_and_b32 s{H_h}, s2, 31")
    a(f"s_mov_b32 s{H_SELLO}, {SEL_LO:#x}")
    a(f"s_mov_b32 s{H_SELHI}, {SEL_HI:#x}")
    def h_consts():
        a(f"s_mov_b32 s{H_G1}, 0xffff0000")
        a(f"s_mov_b32 s{H_G1+1}, 0")
        a(f"s_mov_b32 s{H_G2}, 0")
        a(f"s_mov_b32 s{H_G2+1}, 0x0000ffff")
        a(f"s_mov_b32 s{H_G3}, 0")
        a(f"s_mov_b32 s{H_G3+1}, 0xffff0000")
        a(f"s_mov_b32 s{H_L2E}, {LOG2E:#x}")
        a(f"s_mov_b32 s{H_MHI}, 0xffff0000")
        a(f"s_mov_b32 s{H_CNT}, {maxpoll}")
        for i in range(4): a(f"s_mov_b32 s{H_ST+i}, {0x07060500 + i:#x}")
        a(f"s_lshr_b32 s{H_b}, s2, 5")
        a(f"s_and_b32 s{H_dh}, s{H_b}, 1")
        a(f"s_and_b32 s{H_b}, s{H_b}, 3")
        a(f"s_lshr_b32 s{H_cg}, s2, 6")
        a(f"s_lshl_b32 s{H_i2}, s{H_h}, 1")
        a(f"s_add_u32 s{H_i2}, s{H_i2}, s{H_dh}")
        a(f"v_lshlrev_b32 v{V_L16}, 4, v0")
        a(f"v_lshlrev_b32 v{V_B512}, 9, v{VG}")
        a(f"v_lshl_add_u32 v{V_B512}, v{VC}, 4, v{V_B512}")
    a(f"s_cmp_eq_u32 s3, {W}")
    a("s_cbranch_scc0 L_H1")

    qproj_loads(P_AWQ)
    if b0 and b0pos == 0: a("s_barrier")
    stamp(0, HST, start=True)
    h_consts()
    if b0 and b0pos == 1:
        a("s_waitcnt vmcnt(16)")
        a("s_barrier")
    if b0 and b0pos == 2:
        a("s_waitcnt vmcnt(8)")
        a("s_barrier")
    qproj_rest(QA_G, True)
    stamp(1, HST)
    a(f"v_lshrrev_b32 v{VT}, 5, v0")
    a(f"v_lshlrev_b32 v{VT}, 11, v{VT}")
    a(f"v_and_b32 v{VT+1}, 31, v0")
    a(f"v_lshl_add_u32 v{VT}, v{VT+1}, 4, v{VT}")
    a(f"s_lshl_b32 s4, s{H_h}, 14")
    a(f"s_lshl_b32 s5, s{H_b}, 9")
    a("s_add_u32 s4, s4, s5")
    if QA_G: a(f"s_add_u32 s4, s4, {QA_G}")
    a("s_add_u32 s5, s4, 4096")
    a("s_add_u32 s6, s4, 8192")
    a("s_add_u32 s7, s4, 12288")
    if qaack: a("s_waitcnt vmcnt(0)")
    def qa_loads():
        for k in range(4):
            a(f"buffer_load_dwordx4 v[{VW+4*k}:{VW+4*k+3}], v{VT}, s[{H_WS}:{H_WS+3}], s{4+k} offen {fl_qa}")
    qa_loads()
    EARLY = early and "wpre" not in skip
    if EARLY:
        a("s_mov_b32 s94, s4")
        wpre_loads(P_AWO, VW + 32)
    if b0b: a("s_barrier")
    if EARLY: a("s_waitcnt vmcnt(16)")
    else: a("s_waitcnt vmcnt(0)")
    a("s_branch L_qa_first")
    a.label("L_qa_retry")
    qa_loads()
    a("s_waitcnt vmcnt(0)")
    a.label("L_qa_first")
    check("L_qa_retry", quads=[VW + 4*k for k in range(4)], sleep=qsleep)
    for i in range(4):
        a(f"v_add_f32 v{VW+i}, v{VW+i}, v{VW+4+i}")
        a(f"v_add_f32 v{VW+8+i}, v{VW+8+i}, v{VW+12+i}")
    for i in range(4): a(f"v_add_f32 v{VW+i}, v{VW+i}, v{VW+8+i}")
    xsum([VW + i for i in range(4)], VW + 4, "32")
    a(f"v_lshlrev_b32 v{VT}, 4, v{VC}")
    a(f"v_bfe_u32 v{VT+1}, v0, 4, 1")
    a(f"v_lshl_add_u32 v{VT}, v{VT+1}, 3, v{VT}")
    a(f"v_cvt_pk_bf16_f32 v{VW}, v{VW}, v{VW+1}")
    a(f"v_cvt_pk_bf16_f32 v{VW+1}, v{VW+2}, v{VW+3}")
    a(f"ds_write_b64 v{VT}, v[{VW}:{VW+1}] offset:{L_QA}")
    a("s_waitcnt lgkmcnt(0)")
    stamp(2, HST)
    a("s_barrier")
    if EARLY: wpre_perms(VW + 32)
    elif "wpre" not in skip: wpre(P_AWO)
    perm_addr(0)
    st2_addr(2, OA_G, OA_ML)
    a("s_lshr_b32 s5, s2, 7")
    a(f"s_lshl_b32 s6, s{H_b}, 5")
    a(f"s_add_u32 s6, s6, s{H_h}")
    a("s_lshl_b32 s6, s6, 1")
    a("s_add_u32 s6, s6, s5")
    a("s_lshl_b32 s40, s6, 9")
    a(f"s_add_u32 s40, s40, {OA_G}")
    a("s_lshl_b32 s41, s6, 7")
    a(f"s_add_u32 s41, s41, {OA_ML}")
    stamp(3, HST)
    if bm is not None: a("s_barrier")
    a("s_barrier")
    a(f"v_lshlrev_b32 v{VT}, 3, v{VG}")
    a(f"ds_read_b32 v{V_GS}, v{VT} offset:{L_G}")
    a("s_waitcnt lgkmcnt(0)")
    a("s_barrier")
    a("s_barrier")
    a("s_barrier")
    stamp(4, HST)
    if "tail" in skip: a("s_branch L_hend")
    merge(VW, L_SPA, L_MLA, 0)
    a("s_mov_b32 exec_hi, 0")
    a(f"buffer_store_dwordx4 v[{VW}:{VW+3}], v{V_PERM}, s[{H_WS}:{H_WS+3}], s40 offen {sf_oa}")
    a("s_mov_b64 exec, -1")
    merge_ml(VW)
    a("s_mov_b64 exec, 0xff")
    a(f"buffer_store_dwordx4 v[{VW+4}:{VW+7}], v{V_L16}, s[{H_WS}:{H_WS+3}], s41 offen {sf_oa}")
    a("s_mov_b64 exec, -1")
    stamp(5, HST)
    st2(2, L_OBA, "st2a", tailsleep, False)
    a(f"s_lshl_b32 s4, s{H_cg}, 6")
    a(f"s_add_u32 s4, s4, s{H_i2}")
    a("s_lshl_b32 s4, s4, 11")
    a(f"s_add_u32 s4, s4, {Y_G}")
    a(f"v_lshlrev_b32 v{VT}, 5, v0")
    stamp(6, HST)
    a("s_barrier")
    a(f"ds_read_b128 v[{VW+8}:{VW+11}], v{VT} offset:{L_YB}")
    a(f"ds_read_b128 v[{VW+12}:{VW+15}], v{VT} offset:{L_YB + 16}")
    a("s_nop 3")
    select_batch(VW)
    a("s_waitcnt lgkmcnt(0)")
    for u in range(2):
        for i in range(4): a(f"v_add_f32 v{VW+4*u+i}, v{VW+4*u+i}, v{VW+8+4*u+i}")
        tag4(VW + 4*u)
        a(f"buffer_store_dwordx4 v[{VW+4*u}:{VW+4*u+3}], v{V_B512}, s[{H_WS}:{H_WS+3}], s4 offen offset:{u*256} {sf_y}")
    stamp(7, HST)
    a(f"v_lshrrev_b32 v{VT}, 1, v0")
    a(f"v_lshlrev_b32 v{VT}, 11, v{VT}")
    a(f"v_and_b32 v{VT+1}, 1, v0")
    a(f"v_lshl_add_u32 v{VT}, v{VT+1}, 4, v{VT}")
    a("s_bfe_u32 s4, s2, 0x20004")
    a("s_lshl_b32 s4, s4, 17")
    a("s_lshr_b32 s5, s2, 6")
    a("s_lshl_b32 s5, s5, 9")
    a("s_add_u32 s4, s4, s5")
    a("s_bfe_u32 s5, s2, 0x10003")
    a("s_lshl_b32 s5, s5, 8")
    a("s_add_u32 s4, s4, s5")
    a("s_and_b32 s5, s2, 7")
    a("s_lshl_b32 s5, s5, 5")
    a("s_add_u32 s4, s4, s5")
    a(f"s_add_u32 s4, s4, {Y_G}")
    a("s_add_u32 s5, s4, 65536")
    Y = VW + 16
    a.label("L_fin")
    a(f"buffer_load_dwordx4 v[{Y}:{Y+3}], v{VT}, s[{H_WS}:{H_WS+3}], s4 offen {fl_fin}")
    a(f"buffer_load_dwordx4 v[{Y+4}:{Y+7}], v{VT}, s[{H_WS}:{H_WS+3}], s5 offen {fl_fin}")
    a("s_lshr_b32 s6, s2, 6")
    a("s_lshl_b32 s6, s6, 10")
    a("s_bfe_u32 s7, s2, 0x20004")
    a("s_lshl_b32 s7, s7, 8")
    a("s_add_u32 s6, s6, s7")
    a("s_and_b32 s7, s2, 7")
    a("s_lshl_b32 s7, s7, 5")
    a("s_add_u32 s6, s6, s7")
    a("s_bfe_u32 s7, s2, 0x10003")
    a("s_lshl_b32 s7, s7, 3")
    a("s_add_u32 s6, s6, s7")
    srd(H_W, P_OUT, 4096)
    a("s_waitcnt vmcnt(0)")
    check("L_fin", quads=[Y, Y + 4], sleep=tailsleep)
    for i in range(4): a(f"v_add_f32 v{Y+i}, v{Y+i}, v{Y+4+i}")
    for st in ("quad_perm:[2,3,0,1]", "row_ror:4", "row_ror:8"):
        for i in range(4): a(f"v_add_f32_dpp v{Y+i}, v{Y+i}, v{Y+i} {st} row_mask:0xf bank_mask:0xf")
    xsum([Y + i for i in range(4)], Y + 4, "16")
    xsum([Y + i for i in range(4)], Y + 4, "32")
    a(f"v_lshlrev_b32 v{VT}, 4, v{VT+1}")
    a(f"v_cvt_pk_bf16_f32 v{Y}, v{Y}, v{Y+1}")
    a(f"v_cvt_pk_bf16_f32 v{Y+1}, v{Y+2}, v{Y+3}")
    a("s_mov_b64 exec, 3")
    a(f"buffer_store_dwordx2 v[{Y}:{Y+1}], v{VT}, s[{H_W}:{H_W+3}], s6 offen")
    a("s_cmp_eq_u32 s2, 0")
    a("s_cbranch_scc0 L_noep")
    a("s_mov_b64 exec, 1")
    a(f"v_mov_b32 v{VT}, {EPOCH:#x}")
    a(f"buffer_store_dword v{V_TV}, v{VT}, s[{H_WS}:{H_WS+3}], 0 offen sc1")
    a.label("L_noep")
    a("s_mov_b64 exec, -1")
    stamp(8, HST)
    a("s_branch L_hend")

    a.label("L_H1")
    if touch:
        a(f"v_mov_b32 v{VX}, {Y_G + 0x70000:#x}")
        a(f"buffer_load_dword v{VX+1}, v{VX}, s[{H_WS}:{H_WS+3}], 0 offen nt")
    if early and "j2" not in skip:
        qproj_loads(P_BWQ)
        if b0: a("s_barrier")
        stamp(0, HST, start=True)
        h_consts()
        qproj_rest(QBP_G, True, publish=False)
        if "wpre" not in skip: wpre_loads(P_BWO, VW + 32)
        if b0b: a("s_barrier")
        a("s_barrier")
        qproj_publish()
        stamp(1, HST)
        if "wpre" not in skip:
            a("s_waitcnt vmcnt(2)") if not diag else a("s_waitcnt vmcnt(0)")
            wpre_perms(VW + 32, waits=False)
    else:
        if b0: a("s_barrier")
        stamp(0, HST, start=True)
        h_consts()
        a("s_waitcnt vmcnt(0)")
        read_tag()
        if b0b: a("s_barrier")
        a("s_barrier")
        if "j2" not in skip:
            qproj_loads(P_BWQ)
            qproj_rest(QBP_G, False)
        stamp(1, HST)
        if "wpre" not in skip: wpre(P_BWO)
    srd(H_W, P_GATE, 1024)
    for b in range(4):
        a(f"buffer_load_dwordx4 v[{VW+4*b}:{VW+4*b+3}], v{V_L16}, s[{H_X}:{H_X+3}], 0 offen offset:{b*1024} nt")
    GWR = VW + 16
    a(f"buffer_load_dwordx4 v[{GWR}:{GWR+3}], v{V_L16}, s[{H_W}:{H_W+3}], 0 offen nt")
    a("s_waitcnt vmcnt(0)")
    GW = VW + 20
    for i in range(4):
        a(f"v_lshlrev_b32 v{GW+2*i}, 16, v{GWR+i}")
        a(f"v_and_b32 v{GW+2*i+1}, s{H_MHI}, v{GWR+i}")
    XU = VW + 28
    Z = VW + 36
    for b in range(4):
        for i in range(4):
            a(f"v_lshlrev_b32 v{XU+2*i}, 16, v{VW+4*b+i}")
            a(f"v_and_b32 v{XU+2*i+1}, s{H_MHI}, v{VW+4*b+i}")
        for i in range(8): a(f"v_mul_f32 v{XU+i}, v{XU+i}, v{GW+i}")
        for i in range(4): a(f"v_cvt_pk_bf16_f32 v{VW+4*b+i}, v{XU+2*i}, v{XU+2*i+1}")
        for i in range(4):
            a(f"v_lshlrev_b32 v{XU+2*i}, 16, v{VW+4*b+i}")
            a(f"v_and_b32 v{XU+2*i+1}, s{H_MHI}, v{VW+4*b+i}")
        for i in range(4): a(f"v_add_f32 v{XU+i}, v{XU+i}, v{XU+4+i}")
        a(f"v_add_f32 v{XU}, v{XU}, v{XU+2}")
        a(f"v_add_f32 v{XU+1}, v{XU+1}, v{XU+3}")
        a(f"v_add_f32 v{Z+b}, v{XU}, v{XU+1}")
    for rot in (8, 4, 2, 1):
        a("s_nop 0")
        for b in range(4):
            a(f"v_add_f32_dpp v{Z+b}, v{Z+b}, v{Z+b} row_ror:{rot} row_mask:0xf bank_mask:0xf")
    xsum([Z + b for b in range(4)], Z + 4, "32")
    xsum([Z + b for b in range(4)], Z + 4, "16")
    for b in range(4): a(f"v_cvt_pk_bf16_f32 v{Z+b}, v{Z+b}, v{Z+b}")
    for b in range(4): a(f"v_lshlrev_b32 v{Z+b}, 16, v{Z+b}")
    for b in range(4): a(f"v_mul_f32 v{Z+b}, s{H_L2E}, v{Z+b}")
    for b in range(4): a(f"v_sub_f32 v{Z+b}, 0, v{Z+b}")
    for b in range(4): a(f"v_exp_f32 v{Z+b}, v{Z+b}")
    a("s_nop 0")
    for b in range(4): a(f"v_add_f32 v{Z+b}, 1.0, v{Z+b}")
    for b in range(4): a(f"v_rcp_f32 v{Z+b}, v{Z+b}")
    a("s_nop 0")
    for b in range(4): a(f"v_cvt_pk_bf16_f32 v{Z+b}, v{Z+b}, v{Z+b}")
    GG = Z + 8
    for b in range(4): a(f"v_lshlrev_b32 v{GG+2*b}, 16, v{Z+b}")
    for b in range(4): a(f"v_sub_f32 v{GG+2*b+1}, 1.0, v{GG+2*b}")
    for b in range(4): a(f"v_cvt_pk_bf16_f32 v{GG+2*b+1}, v{GG+2*b+1}, v{GG+2*b+1}")
    for b in range(4): a(f"v_lshlrev_b32 v{GG+2*b+1}, 16, v{GG+2*b+1}")
    a(f"v_mov_b32 v{VT}, 0")
    a("s_mov_b64 exec, 1")
    a(f"ds_write_b128 v{VT}, v[{GG}:{GG+3}] offset:{L_G}")
    a(f"ds_write_b128 v{VT}, v[{GG+4}:{GG+7}] offset:{L_G + 16}")
    a("s_mov_b64 exec, -1")
    a("s_waitcnt lgkmcnt(0)")
    a(f"v_lshlrev_b32 v{VT}, 3, v{VG}")
    a(f"ds_read_b32 v{V_GS}, v{VT} offset:{L_G + 4}")
    stamp(2, HST)
    if "j3" not in skip:
        a(f"v_lshlrev_b32 v{VT}, 11, v{VG}")
        a(f"v_lshl_add_u32 v{VT}, v{VC}, 4, v{VT}")
        a(f"s_lshl_b32 s4, s{H_h}, 14")
        a(f"s_lshl_b32 s5, s{H_b}, 9")
        a("s_add_u32 s4, s4, s5")
        a("s_lshr_b32 s6, s2, 7")
        a("s_lshl_b32 s5, s6, 8")
        a("s_add_u32 s4, s4, s5")
        a(f"s_add_u32 s4, s4, {QBP_G}")
        a("s_add_u32 s5, s4, 8192")
        a.label("L_qbc")
        a(f"buffer_load_dwordx4 v[{VW}:{VW+3}], v{VT}, s[{H_WS}:{H_WS+3}], s4 offen {fl_qbc}")
        a(f"buffer_load_dwordx4 v[{VW+4}:{VW+7}], v{VT}, s[{H_WS}:{H_WS+3}], s5 offen {fl_qbc}")
        a("s_waitcnt vmcnt(0)")
        check("L_qbc", quads=[VW, VW + 4], sleep=midsleep)
        for i in range(4): a(f"v_add_f32 v{VW+i}, v{VW+i}, v{VW+4+i}")
        xsum([VW + i for i in range(4)], VW + 4, "32")
        xsum([VW + i for i in range(4)], VW + 4, "16")
        a(f"v_cvt_pk_bf16_f32 v{VW}, v{VW}, v{VW+1}")
        a(f"v_cvt_pk_bf16_f32 v{VW+2}, v{VW+2}, v{VW+3}")
        a(f"v_mov_b32 v{VW+1}, s{H_T}")
        a(f"v_mov_b32 v{VW+3}, s{H_T}")
        a(f"s_lshl_b32 s4, s{H_h}, 11")
        a(f"s_lshl_b32 s5, s{H_b}, 9")
        a("s_add_u32 s4, s4, s5")
        a("s_lshl_b32 s5, s6, 8")
        a("s_add_u32 s4, s4, s5")
        a(f"s_add_u32 s4, s4, {QBF_G}")
        a("s_mov_b64 exec, 0xffff")
        a(f"buffer_store_dwordx4 v[{VW}:{VW+3}], v{V_L16}, s[{H_WS}:{H_WS+3}], s4 offen {sf_qbf}")
        a("s_mov_b64 exec, -1")
        stamp(3, HST)
        if bm is not None: a("s_barrier")
        a(f"v_lshlrev_b32 v{VT}, 11, v{VG}")
        a(f"v_lshl_add_u32 v{VT}, v{VC}, 4, v{VT}")
        a("s_bfe_u32 s4, s2, 0x30003")
        a("s_lshl_b32 s4, s4, 13")
        a("s_lshr_b32 s5, s2, 6")
        a("s_lshl_b32 s5, s5, 9")
        a("s_add_u32 s4, s4, s5")
        a(f"s_add_u32 s4, s4, {QBF_G}")
        a.label("L_qbg")
        for u in range(2):
            a(f"buffer_load_dwordx4 v[{VW+8+4*u}:{VW+8+4*u+3}], v{VT}, s[{H_WS}:{H_WS+3}], s4 offen offset:{u*256} {fl_qbg}")
        a("s_waitcnt vmcnt(0)")
        check("L_qbg", fulltags=[VW+9, VW+11, VW+13, VW+15], sleep=midsleep)
        a(f"v_lshlrev_b32 v{VT}, 8, v{VG}")
        a(f"v_lshl_add_u32 v{VT}, v{VC}, 4, v{VT}")
        for u in range(2):
            a(f"v_mov_b32 v{VW+8+4*u+1}, v{VW+8+4*u+2}")
            a(f"ds_write_b64 v{VT}, v[{VW+8+4*u}:{VW+8+4*u+1}] offset:{L_QB + 8*u}")
    elif bm is not None: a("s_barrier")
    a("s_waitcnt lgkmcnt(0)")
    perm_addr(4096)
    st2_addr(8, GP_G, GP_ML)
    a("s_lshr_b32 s4, s2, 6")
    a("s_lshl_b32 s4, s4, 8")
    a("s_bfe_u32 s5, s2, 0x30003")
    a("s_lshl_b32 s5, s5, 5")
    a("s_add_u32 s4, s4, s5")
    a("s_and_b32 s5, s2, 7")
    a("s_add_u32 s4, s4, s5")
    a("s_lshl_b32 s40, s4, 9")
    a(f"s_add_u32 s40, s40, {GP_G}")
    a("s_lshl_b32 s41, s2, 7")
    a(f"s_add_u32 s41, s41, {GP_ML}")
    stamp(4, HST)
    a("s_barrier")
    a("s_barrier")
    for rr in range(2):
        merge(VW + 32 * rr, L_SPB, L_MLB, 2 * rr)
        merge_ml(VW + 32 * rr)
    a("s_mov_b32 s4, 0xaaaaaaaa")
    a("s_mov_b32 s5, 0xaaaaaaaa")
    for i in range(4): a(f"v_cndmask_b32 v{VW+4+i}, v{VW+4+i}, v{VW+32+4+i}, s[4:5]")
    a(f"v_lshrrev_b32 v{VT}, 5, v0")
    a(f"v_and_b32 v{VT+1}, 1, v0")
    a(f"v_lshl_add_u32 v{VT}, v{VT+1}, 1, v{VT}")
    a(f"v_bfe_u32 v{VT+1}, v0, 1, 1")
    a(f"v_lshl_add_u32 v{VT}, v{VT+1}, 2, v{VT}")
    a(f"v_lshlrev_b32 v{VT}, 4, v{VT}")
    stamp(5, HST)
    a("s_barrier")
    if "gp" not in skip:
        for rr in range(2):
            q0 = VW + 32 * rr
            a(f"buffer_store_dwordx4 v[{q0}:{q0+3}], v{V_PERM}, s[{H_WS}:{H_WS+3}], s40 offen {sf_gp}")
            if rr == 0: a("s_add_u32 s40, s40, 8192")
        a("s_mov_b32 exec_lo, 0xf")
        a("s_mov_b32 exec_hi, 0xf")
        a(f"buffer_store_dwordx4 v[{VW+4}:{VW+7}], v{VT}, s[{H_WS}:{H_WS+3}], s41 offen {sf_gp}")
        a("s_mov_b64 exec, -1")
    stamp(6, HST)
    a("s_barrier")
    if "tail" in skip: a("s_branch L_hend")
    st2(8, L_OBB, "st2b", tailsleep, True)
    a(f"v_lshlrev_b32 v{VT}, 5, v0")
    a("s_nop 6")
    select_batch(VW)
    a(f"ds_write_b128 v{VT}, v[{VW}:{VW+3}] offset:{L_YB}")
    a(f"ds_write_b128 v{VT}, v[{VW+4}:{VW+7}] offset:{L_YB + 16}")
    a("s_waitcnt lgkmcnt(0)")
    stamp(7, HST)
    a("s_barrier")
    a.label("L_hend")
    a("s_waitcnt vmcnt(0)")
    a.label("L_end")
    a("s_endpgm")
    nagpr = 32 * D
    a.raw('.section .rodata,"a"')
    a.raw(".p2align 6")
    a.raw(f".amdhsa_kernel {NAME}_kernel")
    a.raw(f"  .amdhsa_next_free_vgpr {256 + max(nagpr, 64)}")
    a.raw("  .amdhsa_next_free_sgpr 96")
    a.raw("  .amdhsa_accum_offset 256")
    a.raw("  .amdhsa_group_segment_fixed_size 0")
    a.raw("  .amdhsa_kernarg_size 112")
    a.raw("  .amdhsa_user_sgpr_count 2")
    a.raw("  .amdhsa_user_sgpr_kernarg_segment_ptr 1")
    a.raw("  .amdhsa_system_sgpr_workgroup_id_x 1")
    a.raw("  .amdhsa_float_denorm_mode_32 3")
    a.raw(".end_amdhsa_kernel")
    return a.text()

if __name__ == "__main__":
    import json
    kw = json.loads(sys.argv[2]) if len(sys.argv) > 2 else {}
    open(sys.argv[1], "w").write(gen(**kw))
```

```python
import sys

NAME = "gated_mix__mha_block_cached__gqa_block_cached__decode"

EPOCH  = 0x000000
GP_ML  = 0x001000
OA_ML  = 0x009000
QA_G   = 0x011000
QBP_G  = 0x091000
QBF_G  = 0x111000
OA_G   = 0x121000
GP_G   = 0x141000
Y_G    = 0x1C1000
DIAG   = 0x250000
WS_USED = 0x280000

L_QA, L_QB = 0, 256
L_SPA, L_SPB = 2048, 6144
L_MLA, L_MLB = 10240, 10496
L_OBA, L_OBB = 10752, 11264
L_G = 11776
L_YB = 11840
L_QX = 13888
L_F = 15936
LDS_BYTES = 16384

SCALE = 0x3db504f3
LOG2E = 0x3fb8aa3b
SEL_LO, SEL_HI = 0x05040100, 0x07060302
TAGINC = 0x9e3779b9
NEG_INF = 0xff800000
NEG_BIG = 0xf149f2ca

class Asm:
    def __init__(self):
        self.L = []
        self.n = 0
    def __call__(self, s):
        self.L.append("  " + s)
    def label(self, s):
        self.L.append(s + ":")
    def raw(self, s):
        self.L.append(s)
    def uniq(self, p):
        self.n += 1
        return f"{p}_{self.n}"
    def text(self):
        return "\n".join(self.L) + "\n"

P_X, P_AK, P_AV, P_AWQ, P_AWO = 44, 46, 48, 50, 52
P_BK, P_BV, P_BWQ, P_BWO, P_GATE, P_OUT, P_DBG, P_WS = 56, 58, 60, 62, 64, 66, 68, 70

def gen(D=4, N0=16, diag=False, kvflags="nt", maxpoll=1 << 18, b0=True, b0b=True, batch1=None,
        noH=False, nocomp=0, skip=(), mimic=True, tailsleep=1, midsleep=8, qsleep=0,
        hoflags="sc1", stflags="sc1", qaack=False, stag=False, G2=False, touch=False, b0pos=0, early=True, bm=None, itstamp=False, GB=None, h1late=False, nob5=False, b3bit=1, split=True, flags=True, lite=False, fl_qa=None, fl_qbc=None, fl_qbg=None, fl_st2a=None, fl_st2b=None, fl_fin=None, sf_qa=None, sf_qbp=None, sf_qbf=None, sf_gp=None, sf_oa=None, sf_y=None):
    a = Asm()
    W, NH = 2, 2
    NWAVES = W + NH
    TA = 128 // W
    TB = 32 // W
    if batch1 is None: batch1 = max(1, D // 2)
    assert N0 % D == 0 and TB % D == 0 and (TA - N0) % D == 0
    a.raw(f"; @launch grid=(256,1,1) block=({64*NWAVES},1,1) lds={LDS_BYTES}")
    a.raw('.amdgcn_target "amdgcn-amd-amdhsa--gfx950"')
    a.raw(".text")
    a.raw(f".globl {NAME}_kernel")
    a.raw(".p2align 8")
    a.raw(f".type {NAME}_kernel,@function")
    a.label(f"{NAME}_kernel")
    a("s_cmp_ge_u32 s2, 256")
    a("s_cbranch_scc1 L_end")
    a("s_load_dwordx16 s[44:59], s[0:1], 0")
    a("s_load_dwordx8 s[60:67], s[0:1], 64")
    a("s_load_dwordx4 s[68:71], s[0:1], 96")
    if diag or lite:
        a("s_memrealtime s[72:73]")
    if diag:
        a("s_memtime s[80:81]")
    a("v_lshrrev_b32 v1, 6, v0")
    a("v_and_b32 v0, 63, v0")
    a("v_and_b32 v3, 15, v0")
    a("v_readfirstlane_b32 s3, v1")
    a("v_lshrrev_b32 v2, 4, v0")
    a("s_waitcnt lgkmcnt(0)")
    a(f"s_cmp_ge_u32 s3, {W}")
    a("s_cbranch_scc1 L_H")

    def stamp(idx, r0, start=False):
        if not diag: return
        if not start:
            a("s_memrealtime s[74:75]")
            a("s_waitcnt lgkmcnt(0)")
            a(f"v_mov_b32 v{r0}, s74")
        else:
            a(f"v_mov_b32 v{r0}, s72")
        a(f"s_lshl_b32 s76, s2, 2")
        a("s_add_u32 s76, s76, s3")
        a("s_lshl_b32 s76, s76, 6")
        a(f"s_add_u32 s76, s76, {DIAG + idx*4}")
        a(f"v_mov_b32 v{r0+1}, s76")
        a("s_mov_b64 s[78:79], exec")
        a("s_mov_b64 exec, 1")
        a(f"global_store_dword v{r0+1}, v{r0}, s[{P_WS}:{P_WS+1}]")
        a("s_mov_b64 exec, s[78:79]")

    def lds_wait(off, vtmp, vzero, sleep=1, n=1):
        lab = a.uniq("L_spin")
        a.label(lab)
        if n == 1:
            a(f"ds_read_b32 v{vtmp}, v{vzero} offset:{L_F + off}")
            a("s_waitcnt lgkmcnt(0)")
        else:
            a(f"ds_read_b64 v[{vtmp}:{vtmp+1}], v{vzero} offset:{L_F + off}")
            a("s_waitcnt lgkmcnt(0)")
            a(f"v_and_b32 v{vtmp}, v{vtmp}, v{vtmp+1}")
            a("s_nop 0")
        a(f"v_readfirstlane_b32 s4, v{vtmp}")
        done = a.uniq("L_spun")
        a("s_nop 3")
        a("s_cmp_lg_u32 s4, 0")
        a(f"s_cbranch_scc1 {done}")
        if sleep: a(f"s_sleep {sleep}")
        a(f"s_branch {lab}")
        a.label(done)
    def lds_set(off, vone, vzero):
        a(f"ds_write_b32 v{vzero}, v{vone} offset:{L_F + off}")

    S_KC, S_VC = 8, 12
    S_KA, S_VA, S_KB, S_VB = 16, 18, 20, 22
    S_OFF, S_OFF2, S_IT, S_SEG = 24, 25, 26, 27
    S_SCALE, S_L2E, S_SELLO, S_SELHI, S_MASKHI = 28, 29, 30, 31, 32
    S_M4 = 36
    V_KO, V_VO = 4, 5
    V_P, V_ML, V_QA, V_QB = 6, 7, 8, 9
    V_Q = 12
    V_S = 28
    V_PB = 36
    V_ST = 40
    V_O = 48
    V_M, V_L, V_MN, V_AL, V_MLG = 80, 81, 82, 83, 84
    V_T = 86
    V_RING = 96
    SST = 250
    def KR(d): return 32 * d
    def VR(d): return V_RING + 32 * d
    fl = (" " + kvflags) if kvflags else ""

    a(f"; ---------------- S waves ----------------")
    GM = 2 if G2 else 1
    if GB is None: GB = GM
    import math
    LGB = int(math.log2(GB))
    STEP = GM * W * 8192
    STEPB = GB * W * 8192
    S_STEP = 35
    S_W0A, S_W0B = 33, 34
    a("s_and_b32 s4, s2, 127")
    a("s_lshl_b32 s4, s4, 21")
    a("s_lshr_b32 s5, s2, 7")
    if G2:
        a(f"s_lshl_b32 s{S_W0A}, s5, 1")
        a(f"s_add_u32 s{S_W0A}, s{S_W0A}, s3")
        a(f"s_lshl_b32 s{S_W0A}, s{S_W0A}, 13")
    else:
        a("s_lshl_b32 s5, s5, 20")
        a("s_add_u32 s4, s4, s5")
        a(f"s_lshl_b32 s{S_W0A}, s3, 13")
    for (dst, p) in ((S_KC, P_AK), (S_VC, P_AV)):
        a(f"s_add_u32 s{dst}, s{p}, s4")
        a(f"s_addc_u32 s{dst+1}, s{p+1}, 0")
        a(f"s_and_b32 s{dst+1}, s{dst+1}, 0xffff")
        a(f"s_mov_b32 s{dst+2}, {GM << 20}")
        a(f"s_mov_b32 s{dst+3}, 0x20000")
    a(f"s_mov_b32 s{S_OFF}, s{S_W0A}")
    a(f"s_add_u32 s{S_OFF2}, s{S_OFF}, 4096")
    a(f"v_lshlrev_b32 v{V_KO}, 8, v3")
    a(f"v_lshl_add_u32 v{V_KO}, v2, 4, v{V_KO}")
    a(f"v_lshlrev_b32 v{V_VO}, 10, v2")
    a(f"v_lshl_add_u32 v{V_VO}, v3, 4, v{V_VO}")
    def issueK(d):
        for t in range(8):
            so = S_OFF if t < 4 else S_OFF2
            r = KR(d) + 4 * t
            a(f"buffer_load_dwordx4 a[{r}:{r+3}], v{V_KO}, s[{S_KC}:{S_KC+3}], s{so} offen offset:{(t%4)*64}{fl}")
    def issueV(d):
        for t in range(8):
            so = S_OFF if t < 4 else S_OFF2
            r = VR(d) + 4 * t
            a(f"buffer_load_dwordx4 v[{r}:{r+3}], v{V_VO}, s[{S_VC}:{S_VC+3}], s{so} offen offset:{(t%4)*256}{fl}")
    a(f"s_mov_b32 s{S_STEP}, {STEP}")
    def advance():
        a(f"s_add_u32 s{S_OFF}, s{S_OFF}, s{S_STEP}")
        a(f"s_add_u32 s{S_OFF2}, s{S_OFF2}, s{S_STEP}")
    V_ZERO, V_ONE = 11, 94
    if flags:
        assert b0
        a(f"v_mov_b32 v{V_ZERO}, 0")
        a(f"v_mov_b32 v{V_ONE}, 1")
        a(f"v_mov_b32 v86, 0")
        a(f"v_mov_b32 v87, 0")
        a(f"v_mov_b32 v88, 0")
        a(f"v_mov_b32 v89, 0")
        a(f"ds_write_b128 v{V_ZERO}, v[86:89] offset:{L_F}")
        a("s_waitcnt lgkmcnt(0)")
    if b0: a("s_barrier")
    for d in range(batch1):
        issueK(d); issueV(d); advance()
    a(f"s_mov_b32 s{S_KA}, s{S_KC}")
    a(f"s_mov_b32 s{S_KA+1}, s{S_KC+1}")
    a(f"s_mov_b32 s{S_VA}, s{S_VC}")
    a(f"s_mov_b32 s{S_VA+1}, s{S_VC+1}")
    if GB > 1:
        a(f"s_lshr_b32 s5, s2, {LGB}")
        a(f"s_lshl_b32 s5, s5, {18 + LGB}")
        a(f"s_and_b32 s{S_W0B}, s2, {GB - 1}")
        a(f"s_lshl_b32 s{S_W0B}, s{S_W0B}, 1")
        a(f"s_add_u32 s{S_W0B}, s{S_W0B}, s3")
        a(f"s_lshl_b32 s{S_W0B}, s{S_W0B}, 13")
    else:
        a("s_lshl_b32 s5, s2, 18")
        a(f"s_lshl_b32 s{S_W0B}, s3, 13")
    for (dst, p) in ((S_KB, P_BK), (S_VB, P_BV)):
        a(f"s_add_u32 s{dst}, s{p}, s5")
        a(f"s_addc_u32 s{dst+1}, s{p+1}, 0")
        a(f"s_and_b32 s{dst+1}, s{dst+1}, 0xffff")
    def set_issue(kb, vb, size, tile0, w0, step):
        a(f"s_mov_b32 s{S_KC}, s{kb}")
        a(f"s_mov_b32 s{S_KC+1}, s{kb+1}")
        a(f"s_mov_b32 s{S_KC+2}, {size}")
        a(f"s_mov_b32 s{S_VC}, s{vb}")
        a(f"s_mov_b32 s{S_VC+1}, s{vb+1}")
        a(f"s_mov_b32 s{S_VC+2}, {size}")
        a(f"s_mov_b32 s{S_STEP}, {step}")
        a(f"s_add_u32 s{S_OFF}, s{w0}, {tile0 * STEP}")
        a(f"s_add_u32 s{S_OFF2}, s{S_OFF}, 4096")
    a(f"s_mov_b32 s{S_SCALE}, {SCALE:#x}")
    a(f"s_mov_b32 s{S_L2E}, {LOG2E:#x}")
    a(f"s_mov_b32 s{S_SELLO}, {SEL_LO:#x}")
    a(f"s_mov_b32 s{S_SELHI}, {SEL_HI:#x}")
    a(f"s_mov_b32 s{S_MASKHI}, 0xffff0000")
    a(f"s_mov_b32 s{S_M4}, 0x000f000f")
    a(f"s_mov_b32 s{S_M4+1}, 0x000f000f")
    a(f"v_and_b32 v10, 3, v3")
    a(f"s_lshl_b32 s4, s3, 11")
    a(f"v_lshlrev_b32 v{V_P}, 9, v10")
    a(f"v_lshl_add_u32 v{V_P}, v2, 4, v{V_P}")
    a(f"v_add_u32 v{V_P}, s4, v{V_P}")
    a(f"s_lshl_b32 s4, s3, 7")
    a(f"v_lshlrev_b32 v{V_ML}, 5, v10")
    a(f"v_lshl_add_u32 v{V_ML}, v2, 2, v{V_ML}")
    a(f"v_add_u32 v{V_ML}, s4, v{V_ML}")
    a(f"v_lshlrev_b32 v{V_QA}, 4, v2")
    a(f"v_lshl_add_u32 v{V_QB}, v10, 8, v{V_QA}")
    def init_state():
        for i in range(32): a(f"v_mov_b32 v{V_O+i}, 0")
        a(f"v_mov_b32 v{V_M}, {NEG_INF:#x}")
        a(f"v_mov_b32 v{V_MLG}, {NEG_INF:#x}")
        a(f"v_mov_b32 v{V_L}, 0")
    def load_q(vaddr, base):
        for s in range(4):
            a(f"ds_read_b128 v[{V_Q+4*s}:{V_Q+4*s+3}], v{vaddr} offset:{base + 64*s}")
    init_state()
    if split: a("s_barrier")
    if b0b: a("s_barrier")
    for d in range(batch1, D):
        if stag:
            a(f"s_waitcnt vmcnt({16 * batch1 - 8})")
        issueK(d)
        if stag:
            a(f"s_waitcnt vmcnt({16 * batch1 - 8})")
        issueV(d); advance()
    stamp(0, SST, start=True)
    a("s_barrier")
    load_q(V_QA, L_QA)
    a(f"s_mov_b32 s{S_SEG}, 0")
    a(f"s_mov_b32 s{S_IT}, {N0 // D}")
    a("s_waitcnt lgkmcnt(0)")
    stamp(1, SST)
    if itstamp:
        a("s_mov_b32 s38, 0")
        a("v_mov_b32 v249, 0")
    a.label("L_sloop")
    if itstamp:
        a("s_memrealtime s[84:85]")
        a("s_waitcnt lgkmcnt(0)")
        a("s_mov_b32 m0, s38")
        a("s_nop 0")
        a("v_writelane_b32 v249, s84, m0")
        a("s_add_u32 s38, s38, 1")
    if bm is not None:
        a(f"s_cmp_eq_u32 s{S_SEG}, 0")
        a("s_cbranch_scc0 L_nobm")
        a(f"s_cmp_eq_u32 s{S_IT}, {bm}")
        a("s_cbranch_scc0 L_nobm")
        if flags: lds_set(4, V_ONE, V_ZERO)
        else: a("s_barrier")
        a.label("L_nobm")
    a(f"s_cmp_eq_u32 s{S_IT}, 1")
    a("s_cbranch_scc0 L_noswitch")
    a(f"s_cmp_eq_u32 s{S_SEG}, 0")
    a("s_cbranch_scc0 L_sw1")
    set_issue(S_KB, S_VB, GB << 18, 0, S_W0B, STEPB)
    a("s_branch L_noswitch")
    a.label("L_sw1")
    a(f"s_cmp_eq_u32 s{S_SEG}, 1")
    a("s_cbranch_scc0 L_sw2")
    set_issue(S_KA, S_VA, GM << 20, N0, S_W0A, STEP)
    a("s_branch L_noswitch")
    a.label("L_sw2")
    a(f"s_mov_b32 s{S_KC+2}, 0")
    a(f"s_mov_b32 s{S_VC+2}, 0")
    if b3bit == 1: a("s_barrier")
    a.label("L_noswitch")
    if b3bit != 1:
        a(f"s_cmp_eq_u32 s{S_SEG}, 2")
        a("s_cbranch_scc0 L_nob3b")
        a(f"s_cmp_eq_u32 s{S_IT}, {b3bit}")
        a("s_cbranch_scc0 L_nob3b")
        a("s_barrier")
        a.label("L_nob3b")
    WAITN = 16 * D - 8
    T = V_T
    for d in range(D):
        a(f"; ---- tile slot {d}")
        a(f"s_waitcnt vmcnt({WAITN})")
        if nocomp:
            issueK(d)
            a(f"s_waitcnt vmcnt({WAITN})")
            issueV(d)
            advance()
            continue
        for s in range(4):
            for h in range(2):
                kr = KR(d) + 4 * (4 * h + s)
                c = "0" if s == 0 else f"v[{V_S+4*h}:{V_S+4*h+3}]"
                a(f"v_mfma_f32_16x16x32_bf16 v[{V_S+4*h}:{V_S+4*h+3}], a[{kr}:{kr+3}], v[{V_Q+4*s}:{V_Q+4*s+3}], {c}")
        issueK(d)
        a("s_nop 1")
        S = [V_S + i for i in range(8)]
        if mimic:
            for i in range(4): a(f"v_cvt_pk_bf16_f32 v{T+i}, v{S[2*i]}, v{S[2*i+1]}")
            for i in range(4):
                a(f"v_lshlrev_b32 v{S[2*i]}, 16, v{T+i}")
                a(f"v_and_b32 v{S[2*i+1]}, s{S_MASKHI}, v{T+i}")
            for i in range(8): a(f"v_mul_f32 v{S[i]}, s{S_SCALE}, v{S[i]}")
            for i in range(4): a(f"v_cvt_pk_bf16_f32 v{T+i}, v{S[2*i]}, v{S[2*i+1]}")
            for i in range(4):
                a(f"v_lshlrev_b32 v{S[2*i]}, 16, v{T+i}")
                a(f"v_and_b32 v{S[2*i+1]}, s{S_MASKHI}, v{T+i}")
        else:
            for i in range(8): a(f"v_mul_f32 v{S[i]}, s{S_SCALE}, v{S[i]}")
        a(f"v_max3_f32 v{T}, v{S[0]}, v{S[1]}, v{S[2]}")
        a(f"v_max3_f32 v{T+1}, v{S[3]}, v{S[4]}, v{S[5]}")
        a(f"v_max3_f32 v{T}, v{T}, v{S[6]}, v{S[7]}")
        a(f"v_max_f32 v{T}, v{T}, v{T+1}")
        a(f"v_mov_b32 v{T+1}, v{T}")
        a("s_nop 1")
        a(f"v_permlane32_swap_b32 v{T}, v{T+1}")
        a(f"v_max_f32 v{T}, v{T}, v{T+1}")
        a(f"v_mov_b32 v{T+1}, v{T}")
        a("s_nop 1")
        a(f"v_permlane16_swap_b32 v{T}, v{T+1}")
        a(f"v_max_f32 v{T}, v{T}, v{T+1}")
        a(f"v_max_f32 v{V_MN}, v{V_M}, v{T}")
        a(f"v_cmp_gt_f32 vcc, v{V_MN}, v{V_M}")
        lab = a.uniq("L_nors")
        a(f"s_cbranch_vccz {lab}")
        a(f"v_sub_f32 v{T+1}, v{V_M}, v{V_MN}")
        a(f"v_mul_f32 v{T+1}, s{S_L2E}, v{T+1}")
        a(f"v_exp_f32 v{V_AL}, v{T+1}")
        a(f"v_mov_b32 v{V_M}, v{V_MN}")
        a(f"v_mul_f32 v{V_MLG}, s{S_L2E}, v{V_MN}")
        a(f"v_mul_f32 v{V_L}, v{V_L}, v{V_AL}")
        for i in range(32): a(f"v_mul_f32 v{V_O+i}, v{V_O+i}, v{V_AL}")
        a.label(lab)
        for i in range(8): a(f"v_fma_f32 v{S[i]}, v{S[i]}, s{S_L2E}, -v{V_MLG}")
        for i in range(8): a(f"v_exp_f32 v{S[i]}, v{S[i]}")
        a(f"v_add_f32 v{T}, v{S[0]}, v{S[1]}")
        a(f"v_add_f32 v{T+1}, v{S[2]}, v{S[3]}")
        a(f"v_add_f32 v{T+2}, v{S[4]}, v{S[5]}")
        a(f"v_add_f32 v{T+3}, v{S[6]}, v{S[7]}")
        for i in range(4): a(f"v_cvt_pk_bf16_f32 v{V_PB+i}, v{S[2*i]}, v{S[2*i+1]}")
        a(f"v_add_f32 v{T}, v{T}, v{T+1}")
        a(f"v_add_f32 v{T+2}, v{T+2}, v{T+3}")
        a(f"v_add_f32 v{T}, v{T}, v{T+2}")
        a(f"v_add_f32 v{V_L}, v{V_L}, v{T}")
        a(f"s_waitcnt vmcnt({WAITN})")
        def perms(j):
            st = V_ST + 4 * (j & 1)
            r, hh = j >> 1, j & 1
            sel = S_SELHI if hh else S_SELLO
            for u in range(4):
                lo = VR(d) + 4 * (2 * u) + r
                hi = VR(d) + 4 * (2 * u + 1) + r
                a(f"v_perm_b32 v{st+u}, v{hi}, v{lo}, s{sel}")
        def pv(j):
            st = V_ST + 4 * (j & 1)
            a(f"v_mfma_f32_16x16x32_bf16 v[{V_O+4*j}:{V_O+4*j+3}], v[{st}:{st+3}], v[{V_PB}:{V_PB+3}], v[{V_O+4*j}:{V_O+4*j+3}]")
        perms(0); perms(1)
        for j in range(8):
            if j == 7: a("s_nop 0")
            pv(j)
            if j + 2 < 8: perms(j + 2)
        issueV(d)
        advance()
    a(f"s_sub_u32 s{S_IT}, s{S_IT}, 1")
    a(f"s_cmp_lg_u32 s{S_IT}, 0")
    a("s_cbranch_scc1 L_sloop")
    a("s_nop 7")
    a(f"s_cmp_eq_u32 s{S_SEG}, 1")
    a(f"s_cselect_b32 s4, {L_SPB - L_SPA}, 0")
    a(f"s_cselect_b32 s5, {L_MLB - L_MLA}, 0")
    a(f"v_add_u32 v{T}, s4, v{V_P}")
    a(f"v_add_u32 v{T+1}, s5, v{V_ML}")
    a(f"s_mov_b64 exec, s[{S_M4}:{S_M4+1}]")
    for j in range(8):
        a(f"ds_write_b128 v{T}, v[{V_O+4*j}:{V_O+4*j+3}] offset:{L_SPA + 64*j}")
    a(f"ds_write_b32 v{T+1}, v{V_L} offset:{L_MLA}")
    a(f"ds_write_b32 v{T+1}, v{V_M} offset:{L_MLA + 16}")
    a("s_mov_b64 exec, -1")
    a("s_waitcnt lgkmcnt(0)")
    a(f"s_cmp_eq_u32 s{S_SEG}, 0")
    a("s_cbranch_scc0 L_se1")
    stamp(2, SST)
    if flags: lds_wait(0, 86, V_ZERO)
    else: a("s_barrier")
    load_q(V_QB, L_QB)
    init_state()
    a(f"s_mov_b32 s{S_SEG}, 1")
    a(f"s_mov_b32 s{S_IT}, {TB // D}")
    a("s_waitcnt lgkmcnt(0)")
    a("s_branch L_sloop")
    a.label("L_se1")
    a(f"s_cmp_eq_u32 s{S_SEG}, 1")
    a("s_cbranch_scc0 L_se2")
    stamp(3, SST)
    if flags:
        a(f"s_lshl_b32 s4, s3, 2")
        a(f"v_mov_b32 v86, s4")
        lds_set(8, V_ONE, 86)
    else: a("s_barrier")
    load_q(V_QA, L_QA)
    for j in range(8):
        a(f"ds_read_b128 v[{V_O+4*j}:{V_O+4*j+3}], v{V_P} offset:{L_SPA + 64*j}")
    a(f"ds_read_b32 v{V_L}, v{V_ML} offset:{L_MLA}")
    a(f"ds_read_b32 v{V_M}, v{V_ML} offset:{L_MLA + 16}")
    a(f"s_mov_b32 s{S_SEG}, 2")
    a(f"s_mov_b32 s{S_IT}, {(TA - N0) // D}")
    a("s_waitcnt lgkmcnt(0)")
    a(f"v_mul_f32 v{V_MLG}, s{S_L2E}, v{V_M}")
    a("s_branch L_sloop")
    a.label("L_se2")
    if diag:
        a("s_memtime s[82:83]")
        a("s_waitcnt lgkmcnt(0)")
        a("s_sub_u32 s82, s82, s80")
        a("s_memrealtime s[74:75]")
        a("s_waitcnt lgkmcnt(0)")
        a("s_sub_u32 s74, s74, s72")
        a(f"v_mov_b32 v{SST+2}, s82")
        a(f"v_mov_b32 v{SST+3}, s74")
        a("s_lshl_b32 s76, s2, 2")
        a("s_add_u32 s76, s76, s3")
        a("s_lshl_b32 s76, s76, 6")
        a(f"s_add_u32 s76, s76, {DIAG + 5*4}")
        a(f"v_mov_b32 v{SST+4}, s76")
        a("s_mov_b64 exec, 1")
        a(f"global_store_dwordx2 v{SST+4}, v[{SST+2}:{SST+3}], s[{P_WS}:{P_WS+1}]")
        a("s_mov_b64 exec, -1")
    if itstamp:
        a("s_lshl_b32 s76, s2, 1")
        a("s_add_u32 s76, s76, s3")
        a("s_lshl_b32 s76, s76, 8")
        a(f"s_add_u32 s76, s76, {DIAG + 0x10000}")
        a(f"v_lshl_add_u32 v248, v0, 2, s76")
        a(f"global_store_dword v248, v249, s[{P_WS}:{P_WS+1}]")
    stamp(4, SST)
    a("s_barrier")
    a("s_waitcnt vmcnt(0)")
    a("s_endpgm")

    H_WS, H_W, H_X = 8, 12, 16
    H_T = 20
    H_G1, H_G2, H_G3 = 22, 24, 26
    H_SELLO, H_SELHI, H_L2E = 28, 29, 30
    H_SO = 31
    H_CNT = 32
    H_h, H_b = 34, 35
    H_dh, H_cg, H_i2 = 36, 37, 38
    H_MHI = 39
    H_TB = 84
    H_ST = 88
    VC, VG = 3, 2
    V_L16 = 4
    V_WOFF = 5
    VT = 6
    VX = 8
    V_TV = 16
    V_PERM = 17
    V_GS = 18
    V_B512 = 19
    V_MR = 20
    V_MM = 21
    HST = 22
    VW = 24
    VST = 152
    VD = 160
    VWQ = 192
    ho = hoflags; sf = stflags
    fl_qa = fl_qa or ho; fl_qbc = fl_qbc or ho; fl_qbg = fl_qbg or ho; fl_st2a = fl_st2a or ho; fl_st2b = fl_st2b or ho; fl_fin = fl_fin or ho
    sf_qa = sf_qa or sf; sf_qbp = sf_qbp or sf; sf_qbf = sf_qbf or sf; sf_gp = sf_gp or sf; sf_oa = sf_oa or sf; sf_y = sf_y or sf

    def srd(dst, p, size):
        a(f"s_mov_b32 s{dst}, s{p}")
        a(f"s_and_b32 s{dst+1}, s{p+1}, 0xffff")
        a(f"s_mov_b32 s{dst+2}, {size}")
        a(f"s_mov_b32 s{dst+3}, 0x20000")

    def check(lab, quads=(), fulltags=(), sleep=0):
        acc, accf = VST, VST + 1
        done = a.uniq("L_ok")
        first = True
        for q in quads:
            for i in range(4):
                if first: a(f"v_xor_b32 v{acc}, s{H_TB+i}, v{q+i}"); first = False
                else: a(f"v_bitop3_b32 v{acc}, v{acc}, v{q+i}, s{H_TB+i} bitop3:0xf6")
        if quads: a(f"v_and_b32 v{acc}, 0xff, v{acc}")
        for r in fulltags:
            if first: a(f"v_xor_b32 v{acc}, s{H_T}, v{r}"); first = False
            else: a(f"v_bitop3_b32 v{acc}, v{acc}, v{r}, s{H_T} bitop3:0xf6")
        a(f"v_cmp_ne_u32 vcc, 0, v{acc}")
        a(f"s_cbranch_vccz {done}")
        a(f"s_sub_u32 s{H_CNT}, s{H_CNT}, 1")
        a(f"s_cmp_eq_u32 s{H_CNT}, 0")
        a(f"s_cbranch_scc1 {done}")
        if sleep: a(f"s_sleep {sleep}")
        a(f"s_branch {lab}")
        a.label(done)

    def tag4(dst, src=None):
        src = [dst + i for i in range(4)] if src is None else src
        for i in range(4):
            a(f"v_perm_b32 v{dst+i}, v{src[i]}, v{V_TV}, s{H_ST+i}")

    def wt_tile(wbase, areg, first):
        def perms(j):
            st = VST + 4 * (j & 1)
            r, hh = j >> 1, j & 1
            sel = H_SELHI if hh else H_SELLO
            for u in range(4):
                lo = wbase + 4 * (2 * u) + r
                hi = wbase + 4 * (2 * u + 1) + r
                a(f"v_perm_b32 v{st+u}, v{hi}, v{lo}, s{sel}")
        def mm(j):
            st = VST + 4 * (j & 1)
            c = "0" if first else f"v[{VD+4*j}:{VD+4*j+3}]"
            a(f"v_mfma_f32_16x16x32_bf16 v[{VD+4*j}:{VD+4*j+3}], v[{areg}:{areg+3}], v[{st}:{st+3}], {c}")
        perms(0); perms(1)
        for j in range(8):
            if j == 7: a("s_nop 0")
            mm(j)
            if j + 2 < 8: perms(j + 2)

    def select_batch(dst):
        for j in range(8): a(f"v_cndmask_b32 v{dst+j}, v{VD+4*j}, v{VD+4*j+1}, s[{H_G1}:{H_G1+1}]")
        for j in range(8): a(f"v_cndmask_b32 v{dst+j}, v{dst+j}, v{VD+4*j+2}, s[{H_G2}:{H_G2+1}]")
        for j in range(8): a(f"v_cndmask_b32 v{dst+j}, v{dst+j}, v{VD+4*j+3}, s[{H_G3}:{H_G3+1}]")

    def xsum(regs, tmp, sw):
        for i, r in enumerate(regs): a(f"v_mov_b32 v{tmp+i}, v{r}")
        if len(regs) < 3: a("s_nop 1")
        for i, r in enumerate(regs): a(f"v_permlane{sw}_swap_b32 v{r}, v{tmp+i}")
        for i, r in enumerate(regs): a(f"v_add_f32 v{r}, v{r}, v{tmp+i}")

    def read_tag():
        a(f"v_readfirstlane_b32 s{H_T}, v{VT+1}")
        a("s_nop 3")
        a(f"s_add_u32 s{H_T}, s{H_T}, {TAGINC:#x}")
        for i in range(4): a(f"s_bfe_u32 s{H_TB+i}, s{H_T}, {0x80000 + 8*i:#x}")
        a(f"v_mov_b32 v{V_TV}, s{H_T}")

    def qproj_loads(pw):
        srd(H_W, pw, 4 << 20)
        a(f"s_lshr_b32 s6, s2, 5")
        a(f"v_and_b32 v{VT}, 3, v{VC}")
        a(f"v_lshlrev_b32 v{VT}, 10, v{VT}")
        a(f"v_lshl_add_u32 v{VT}, v{VG}, 4, v{VT}")
        a(f"v_lshlrev_b32 v{V_WOFF}, 16, v{VG}")
        a(f"v_lshl_add_u32 v{V_WOFF}, v{VC}, 4, v{V_WOFF}")
        a(f"s_lshl_b32 s7, s6, 7")
        a(f"s_lshl_b32 s{H_SO}, s6, 19")
        a(f"s_lshl_b32 s4, s{H_h}, 8")
        a(f"s_add_u32 s{H_SO}, s{H_SO}, s4")
        a(f"buffer_load_dwordx4 v[{VX}:{VX+3}], v{VT}, s[{H_X}:{H_X+3}], s7 offen nt")
        a(f"buffer_load_dwordx4 v[{VX+4}:{VX+7}], v{VT}, s[{H_X}:{H_X+3}], s7 offen offset:64 nt")
        for tau in range(2):
            for t in range(8):
                r = VW + 32 * tau + 4 * t
                a(f"buffer_load_dwordx4 v[{r}:{r+3}], v{V_WOFF}, s[{H_W}:{H_W+3}], s{H_SO} offen nt")
                if not (tau == 1 and t == 7):
                    step = 8192 if t < 7 else (32 - 7) * 8192
                    a(f"s_add_u32 s{H_SO}, s{H_SO}, {step}")
    def qsplit_loads(hw):
        a("s_cmp_lt_u32 s2, 128")
        a(f"s_cselect_b32 s4, s{P_AWQ}, s{P_BWQ}")
        a(f"s_cselect_b32 s5, s{P_AWQ+1}, s{P_BWQ+1}")
        srd(H_W, 4, 4 << 20)
        a("s_bfe_u32 s6, s2, 0x20005")
        a("s_lshl_b32 s6, s6, 1")
        if hw: a("s_add_u32 s6, s6, 1")
        a(f"v_and_b32 v{VT}, 3, v{VC}")
        a(f"v_lshlrev_b32 v{VT}, 10, v{VT}")
        a(f"v_lshl_add_u32 v{VT}, v{VG}, 4, v{VT}")
        a(f"v_lshlrev_b32 v{V_WOFF}, 16, v{VG}")
        a(f"v_lshl_add_u32 v{V_WOFF}, v{VC}, 4, v{V_WOFF}")
        a(f"s_lshl_b32 s7, s6, 7")
        a(f"s_lshl_b32 s{H_SO}, s6, 19")
        a(f"s_lshl_b32 s4, s{H_h}, 8")
        a(f"s_add_u32 s{H_SO}, s{H_SO}, s4")
        a(f"buffer_load_dwordx4 v[{VX}:{VX+3}], v{VT}, s[{H_X}:{H_X+3}], s7 offen nt")
        a(f"buffer_load_dwordx4 v[{VX+4}:{VX+7}], v{VT}, s[{H_X}:{H_X+3}], s7 offen offset:64 nt")
        for tau in range(2):
            for t in range(8):
                r = VW + 32 * tau + 4 * t
                a(f"buffer_load_dwordx4 v[{r}:{r+3}], v{V_WOFF}, s[{H_W}:{H_W+3}], s{H_SO} offen nt")
                if not (tau == 1 and t == 7):
                    step = 8192 if t < 7 else (32 - 7) * 8192
                    a(f"s_add_u32 s{H_SO}, s{H_SO}, {step}")
    def qsplit_compute():
        a("s_waitcnt vmcnt(8)")
        wt_tile(VW, VX, True)
        a("s_waitcnt vmcnt(0)")
        wt_tile(VW + 32, VX + 4, False)
        read_tag()
        select_batch(VW)
    def qproj_rest(dst, first, publish=True):
        a(f"s_lshl_b32 s7, s{H_h}, 3")
        a("s_add_u32 s7, s7, s6")
        a("s_lshl_b32 s7, s7, 11")
        if dst: a(f"s_add_u32 s7, s7, {dst}")
        a("s_waitcnt vmcnt(8)")
        wt_tile(VW, VX, True)
        a("s_waitcnt vmcnt(0)")
        wt_tile(VW + 32, VX + 4, False)
        if first: read_tag()
        else: a("s_nop 7")
        select_batch(VW)
        for u in range(2):
            tag4(VW + 4*u)
            if publish:
                a(f"buffer_store_dwordx4 v[{VW+4*u}:{VW+4*u+3}], v{V_B512}, s[{H_WS}:{H_WS+3}], s7 offen offset:{u*256} {sf_qa if dst == QA_G else sf_qbp}")
    def qproj_publish():
        for u in range(2):
            a(f"buffer_store_dwordx4 v[{VW+4*u}:{VW+4*u+3}], v{V_B512}, s[{H_WS}:{H_WS+3}], s7 offen offset:{u*256} {sf_qbp}")

    def merge(q0, sp, ml, r0):
        for w in range(W):
            a(f"ds_read_b128 v[{q0+8+4*w}:{q0+8+4*w+3}], v{V_MR} offset:{sp + w*2048 + r0*512}")
            a(f"ds_read_b128 v[{q0+16+4*w}:{q0+16+4*w+3}], v{V_MM} offset:{ml + w*128 + r0*32}")
            a(f"ds_read_b32 v{q0+24+w}, v{V_MM} offset:{ml + w*128 + r0*32 + 16}")
        a("s_waitcnt lgkmcnt(0)")
        M = q0 + 4; F = q0 + 26; LL = q0 + 6
        a(f"v_max_f32 v{M}, v{q0+24}, v{q0+25}")
        a(f"v_max_f32 v{M}, {NEG_BIG:#x}, v{M}")
        for w in range(W): a(f"v_sub_f32 v{F+w}, v{q0+24+w}, v{M}")
        for w in range(W): a(f"v_mul_f32 v{F+w}, s{H_L2E}, v{F+w}")
        for w in range(W): a(f"v_exp_f32 v{F+w}, v{F+w}")
        for w in range(W):
            l0 = q0 + 16 + 4 * w
            a(f"v_add_f32 v{l0}, v{l0}, v{l0+1}")
            a(f"v_add_f32 v{l0+2}, v{l0+2}, v{l0+3}")
        for i in range(4): a(f"v_mul_f32 v{q0+i}, v{F}, v{q0+8+i}")
        for i in range(4): a(f"v_fmac_f32 v{q0+i}, v{F+1}, v{q0+12+i}")
        tag4(q0)
    def merge_ml(q0):
        M = q0 + 4; F = q0 + 26; LL = q0 + 6
        for w in range(W):
            l0 = q0 + 16 + 4 * w
            a(f"v_add_f32 v{l0}, v{l0}, v{l0+2}")
        a(f"v_mov_b32 v{M+1}, s{H_T}")
        a(f"v_mul_f32 v{LL}, v{F}, v{q0+16}")
        a(f"v_mov_b32 v{M+3}, s{H_T}")
        a(f"v_fmac_f32 v{LL}, v{F+1}, v{q0+20}")

    def perm_addr(headstep):
        a(f"v_bfe_u32 v{VST}, v0, 1, 1")
        a(f"v_lshlrev_b32 v{V_PERM}, 8, v{VST}")
        a(f"v_bfe_u32 v{VST}, v0, 2, 3")
        a(f"v_lshl_add_u32 v{V_PERM}, v{VST}, 5, v{V_PERM}")
        a(f"v_and_b32 v{VST}, 1, v0")
        a(f"v_lshl_add_u32 v{V_PERM}, v{VST}, 4, v{V_PERM}")
        a(f"v_lshrrev_b32 v{VST}, 5, v0")
        a(f"v_and_b32 v{VST+1}, 31, v0")
        a(f"v_lshlrev_b32 v{V_MR}, 4, v{VST+1}")
        if headstep:
            a(f"v_mul_u32_u24 v{VST+1}, {headstep}, v{VST}")
            a(f"v_add_u32 v{V_PERM}, v{V_PERM}, v{VST+1}")
            a(f"v_lshl_add_u32 v{V_MR}, v{VST}, 9, v{V_MR}")
            a(f"v_lshlrev_b32 v{V_MM}, 5, v{VST}")
        else:
            a(f"v_mov_b32 v{V_MM}, 0")

    def wpre_loads(pw, stage):
        srd(H_W, pw, 4 << 20)
        a(f"v_lshlrev_b32 v{V_WOFF}, 10, v{VG}")
        a(f"v_lshl_add_u32 v{V_WOFF}, v{VC}, 4, v{V_WOFF}")
        a(f"s_lshl_b32 s92, s{H_h}, 17")
        a(f"s_lshl_b32 s93, s{H_dh}, 16")
        a("s_add_u32 s92, s92, s93")
        a(f"s_lshl_b32 s93, s{H_cg}, 8")
        a("s_add_u32 s92, s92, s93")
        for tau in range(2):
            for t in range(8):
                r = stage + 32 * tau + 4 * t
                a(f"s_add_u32 s{H_SO}, s92, {(8*t + 4*tau)*1024}")
                a(f"buffer_load_dwordx4 v[{r}:{r+3}], v{V_WOFF}, s[{H_W}:{H_W+3}], s{H_SO} offen nt")
    def wpre_perms(stage, waits=True):
        for tau in range(2):
            if waits: a(f"s_waitcnt vmcnt({8 * (1 - tau)})")
            for j in range(8):
                r, hh = j >> 1, j & 1
                sel = H_SELHI if hh else H_SELLO
                for u in range(4):
                    lo = stage + 32 * tau + 4 * (2 * u) + r
                    hi = stage + 32 * tau + 4 * (2 * u + 1) + r
                    a(f"v_perm_b32 v{VWQ + 32*tau + 4*j + u}, v{hi}, v{lo}, s{sel}")
    def wpre(pw):
        wpre_loads(pw, VW)
        wpre_perms(VW)

    VGP, VGM = VX, VX + 1
    def st2_addr(NP, pbase, mlbase):
        a(f"v_mul_u32_u24 v{VGP}, {32*NP*512}, v{VG}")
        a(f"v_lshl_add_u32 v{VGP}, v{VC}, 4, v{VGP}")
        a(f"v_lshlrev_b32 v{VGM}, 13, v{VG}")
        a(f"v_and_b32 v{VST}, {NP-1}, v{VC}")
        a(f"v_lshl_add_u32 v{VGM}, v{VST}, 7, v{VGM}")
        a(f"s_mul_i32 s42, s{H_h}, {NP*512}")
        a(f"s_lshl_b32 s5, s{H_dh}, 8")
        a("s_add_u32 s42, s42, s5")
        a(f"s_add_u32 s42, s42, {pbase}")
        if NP == 2:
            a(f"s_lshl_b32 s43, s{H_h}, 8")
        else:
            a(f"s_lshr_b32 s43, s{H_h}, 2")
            a("s_lshl_b32 s43, s43, 10")
            a(f"s_and_b32 s5, s{H_h}, 3")
            a("s_lshl_b32 s5, s5, 4")
            a("s_add_u32 s43, s43, s5")
        a(f"s_add_u32 s43, s43, {mlbase}")

    def st2(NP, ob, name, sleep, light):
        Y = VW
        ML = VW + 4 * NP
        ho = fl_st2a if NP == 2 else fl_st2b
        if light:
            lab = f"L_{name}_lp"
            a.label(lab)
            a(f"buffer_load_dwordx4 v[{ML}:{ML+3}], v{VGM}, s[{H_WS}:{H_WS+3}], s43 offen {ho}")
            a("s_waitcnt vmcnt(0)")
            check(lab, fulltags=[ML+1, ML+3], sleep=sleep)
        lab = f"L_{name}_g"
        a.label(lab)
        if not light:
            a(f"buffer_load_dwordx4 v[{ML}:{ML+3}], v{VGM}, s[{H_WS}:{H_WS+3}], s43 offen {ho}")
        for p in range(NP):
            a(f"buffer_load_dwordx4 v[{Y+4*p}:{Y+4*p+3}], v{VGP}, s[{H_WS}:{H_WS+3}], s42 offen offset:{p*512} {ho}")
        a("s_waitcnt vmcnt(0)")
        check(lab, quads=[Y + 4*p for p in range(NP)], fulltags=([] if light else [ML+1, ML+3]), sleep=sleep)
        MM, F, LS = VST + 2, VST + 3, VST + 4
        steps = ["quad_perm:[1,0,3,2]"] + (["quad_perm:[2,3,0,1]", "row_half_mirror"] if NP == 8 else [])
        a(f"v_mov_b32 v{MM}, v{ML}")
        for st in steps:
            a("s_nop 1")
            a(f"v_max_f32_dpp v{MM}, v{MM}, v{MM} {st} row_mask:0xf bank_mask:0xf")
        a(f"v_sub_f32 v{F}, v{ML}, v{MM}")
        a(f"v_mul_f32 v{F}, s{H_L2E}, v{F}")
        a(f"v_exp_f32 v{F}, v{F}")
        a(f"v_lshlrev_b32 v{VT}, 3, v0")
        a(f"v_mul_f32 v{LS}, v{F}, v{ML+2}")
        for st in steps:
            a("s_nop 1")
            a(f"v_add_f32_dpp v{LS}, v{LS}, v{LS} {st} row_mask:0xf bank_mask:0xf")
        a(f"v_rcp_f32 v{LS}, v{LS}")
        a(f"v_mul_f32 v{F}, v{V_GS}, v{F}")
        a(f"v_and_b32 v{VT+1}, 3, v{VC}")
        a(f"v_mul_f32 v{F}, v{F}, v{LS}")
        a(f"v_lshlrev_b32 v{VT+1}, 7, v{VT+1}")
        a(f"v_lshl_add_u32 v{VT+1}, v{VG}, 4, v{VT+1}")
        O = VST + 4
        for i in range(4):
            a(f"v_mul_f32_dpp v{O+i}, v{F}, v{Y+i} row_newbcast:0 row_mask:0xf bank_mask:0xf")
        for p in range(1, NP):
            for i in range(4):
                a(f"v_fmac_f32_dpp v{O+i}, v{F}, v{Y+4*p+i} row_newbcast:{p} row_mask:0xf bank_mask:0xf")
        a(f"v_cvt_pk_bf16_f32 v{O}, v{O}, v{O+1}")
        a(f"v_cvt_pk_bf16_f32 v{O+1}, v{O+2}, v{O+3}")
        a(f"ds_write_b64 v{VT}, v[{O}:{O+1}] offset:{ob}")
        a("s_waitcnt lgkmcnt(0)")
        for tau in range(2):
            a(f"ds_read_b128 v[{VX+4*tau}:{VX+4*tau+3}], v{VT+1} offset:{ob + 64*tau}")
        a("s_waitcnt lgkmcnt(0)")
        for tau in range(2):
            for j in range(8):
                c = "0" if tau == 0 else f"v[{VD+4*j}:{VD+4*j+3}]"
                wr = VWQ + 32 * tau + 4 * j
                a(f"v_mfma_f32_16x16x32_bf16 v[{VD+4*j}:{VD+4*j+3}], v[{VX+4*tau}:{VX+4*tau+3}], v[{wr}:{wr+3}], {c}")

    NB = 4 + (1 if b0 else 0) + (1 if b0b else 0) + 1 + (1 if bm is not None else 0) + (1 if split else 0)
    if flags: NB -= 2 + (1 if bm is not None else 0)
    a.label("L_H")
    a("; ---------------- H waves ----------------")
    if noH:
        if flags:
            for _ in range(NB - 2): a("s_barrier")
            a("v_mov_b32 v10, 0")
            a("v_mov_b32 v11, 1")
            a(f"ds_write_b32 v10, v11 offset:{L_F}")
            a("s_waitcnt lgkmcnt(0)")
            a("s_barrier"); a("s_barrier")
        else:
            for _ in range(NB): a("s_barrier")
        a("s_branch L_end")
    srd(H_WS, P_WS, WS_USED)
    srd(H_X, P_X, 4096)
    a(f"v_mov_b32 v{VT}, {EPOCH:#x}")
    a(f"buffer_load_dword v{VT+1}, v{VT}, s[{H_WS}:{H_WS+3}], 0 offen sc1")
    a(f"s_and_b32 s{H_h}, s2, 31")
    a(f"s_mov_b32 s{H_SELLO}, {SEL_LO:#x}")
    a(f"s_mov_b32 s{H_SELHI}, {SEL_HI:#x}")
    def h_consts():
        a(f"s_mov_b32 s{H_G1}, 0xffff0000")
        a(f"s_mov_b32 s{H_G1+1}, 0")
        a(f"s_mov_b32 s{H_G2}, 0")
        a(f"s_mov_b32 s{H_G2+1}, 0x0000ffff")
        a(f"s_mov_b32 s{H_G3}, 0")
        a(f"s_mov_b32 s{H_G3+1}, 0xffff0000")
        a(f"s_mov_b32 s{H_L2E}, {LOG2E:#x}")
        a(f"s_mov_b32 s{H_MHI}, 0xffff0000")
        a(f"s_mov_b32 s{H_CNT}, {maxpoll}")
        for i in range(4): a(f"s_mov_b32 s{H_ST+i}, {0x07060500 + i:#x}")
        a(f"s_lshr_b32 s{H_b}, s2, 5")
        a(f"s_and_b32 s{H_dh}, s{H_b}, 1")
        a(f"s_and_b32 s{H_b}, s{H_b}, 3")
        a(f"s_lshr_b32 s{H_cg}, s2, 6")
        a(f"s_lshl_b32 s{H_i2}, s{H_h}, 1")
        a(f"s_add_u32 s{H_i2}, s{H_i2}, s{H_dh}")
        a(f"v_lshlrev_b32 v{V_L16}, 4, v0")
        a(f"v_lshlrev_b32 v{V_B512}, 9, v{VG}")
        a(f"v_lshl_add_u32 v{V_B512}, v{VC}, 4, v{V_B512}")
    a(f"s_cmp_eq_u32 s3, {W}")
    a("s_cbranch_scc0 L_H1")

    VQB = VW + 16
    if split:
        qsplit_loads(0)
        if b0: a("s_barrier")
        stamp(0, HST, start=True)
        h_consts()
        qsplit_compute()
        a(f"v_lshlrev_b32 v{VT}, 5, v0")
        a("s_barrier")
        a(f"ds_read_b128 v[{VW+8}:{VW+11}], v{VT} offset:{L_QX}")
        a(f"ds_read_b128 v[{VW+12}:{VW+15}], v{VT} offset:{L_QX + 16}")
        a(f"s_lshl_b32 s95, s{H_h}, 2")
        a("s_bfe_u32 s5, s2, 0x20005")
        a("s_add_u32 s95, s95, s5")
        a("s_lshl_b32 s95, s95, 11")
        a(f"s_mov_b32 s4, {QA_G}")
        a("s_cmp_lt_u32 s2, 128")
        a(f"s_cselect_b32 s5, s4, {QBP_G}")
        a("s_add_u32 s95, s95, s5")
        a("s_waitcnt lgkmcnt(0)")
        for i in range(8): a(f"v_add_f32 v{VW+i}, v{VW+i}, v{VW+8+i}")
        for u in range(2): tag4(VQB + 4*u, [VW + 4*u + i for i in range(4)])
        a("s_cmp_lt_u32 s2, 128")
        a("s_cbranch_scc0 L_noqapub")
        for u in range(2):
            a(f"buffer_store_dwordx4 v[{VQB+4*u}:{VQB+4*u+3}], v{V_B512}, s[{H_WS}:{H_WS+3}], s95 offen offset:{u*256} {sf_qa}")
        a.label("L_noqapub")
        stamp(1, HST)
        a(f"v_lshrrev_b32 v{VT}, 5, v0")
        a(f"v_lshlrev_b32 v{VT}, 11, v{VT}")
        a(f"v_and_b32 v{VT+1}, 31, v0")
        a(f"v_lshl_add_u32 v{VT}, v{VT+1}, 4, v{VT}")
        a(f"s_lshl_b32 s4, s{H_h}, 13")
        a(f"s_lshl_b32 s5, s{H_b}, 9")
        a("s_add_u32 s4, s4, s5")
        a(f"s_add_u32 s4, s4, {QA_G}")
        a("s_add_u32 s5, s4, 4096")
        NQ = 2
    else:
        qproj_loads(P_AWQ)
        if b0 and b0pos == 0: a("s_barrier")
        stamp(0, HST, start=True)
        h_consts()
        if b0 and b0pos == 1:
            a("s_waitcnt vmcnt(16)")
            a("s_barrier")
        if b0 and b0pos == 2:
            a("s_waitcnt vmcnt(8)")
            a("s_barrier")
        qproj_rest(QA_G, True)
        stamp(1, HST)
        a(f"v_lshrrev_b32 v{VT}, 5, v0")
        a(f"v_lshlrev_b32 v{VT}, 11, v{VT}")
        a(f"v_and_b32 v{VT+1}, 31, v0")
        a(f"v_lshl_add_u32 v{VT}, v{VT+1}, 4, v{VT}")
        a(f"s_lshl_b32 s4, s{H_h}, 14")
        a(f"s_lshl_b32 s5, s{H_b}, 9")
        a("s_add_u32 s4, s4, s5")
        if QA_G: a(f"s_add_u32 s4, s4, {QA_G}")
        a("s_add_u32 s5, s4, 4096")
        a("s_add_u32 s6, s4, 8192")
        a("s_add_u32 s7, s4, 12288")
        NQ = 4
    if qaack: a("s_waitcnt vmcnt(0)")
    def qa_loads():
        for k in range(NQ):
            a(f"buffer_load_dwordx4 v[{VW+4*k}:{VW+4*k+3}], v{VT}, s[{H_WS}:{H_WS+3}], s{4+k} offen {fl_qa}")
    qa_loads()
    EARLY = early and "wpre" not in skip
    if EARLY:
        a("s_mov_b32 s94, s4")
        wpre_loads(P_AWO, VW + 32)
    if b0b: a("s_barrier")
    if EARLY: a("s_waitcnt vmcnt(16)")
    else: a("s_waitcnt vmcnt(0)")
    a("s_branch L_qa_first")
    a.label("L_qa_retry")
    qa_loads()
    a("s_waitcnt vmcnt(0)")
    a.label("L_qa_first")
    check("L_qa_retry", quads=[VW + 4*k for k in range(NQ)], sleep=qsleep)
    if NQ == 4:
        for i in range(4):
            a(f"v_add_f32 v{VW+i}, v{VW+i}, v{VW+4+i}")
            a(f"v_add_f32 v{VW+8+i}, v{VW+8+i}, v{VW+12+i}")
        for i in range(4): a(f"v_add_f32 v{VW+i}, v{VW+i}, v{VW+8+i}")
    else:
        for i in range(4): a(f"v_add_f32 v{VW+i}, v{VW+i}, v{VW+4+i}")
    xsum([VW + i for i in range(4)], VW + 4, "32")
    a(f"v_lshlrev_b32 v{VT}, 4, v{VC}")
    a(f"v_bfe_u32 v{VT+1}, v0, 4, 1")
    a(f"v_lshl_add_u32 v{VT}, v{VT+1}, 3, v{VT}")
    a(f"v_cvt_pk_bf16_f32 v{VW}, v{VW}, v{VW+1}")
    a(f"v_cvt_pk_bf16_f32 v{VW+1}, v{VW+2}, v{VW+3}")
    a(f"ds_write_b64 v{VT}, v[{VW}:{VW+1}] offset:{L_QA}")
    a("s_waitcnt lgkmcnt(0)")
    stamp(2, HST)
    a("s_barrier")
    if split:
        a("s_cmp_lt_u32 s2, 128")
        a("s_cbranch_scc1 L_noqbpub")
        for u in range(2):
            a(f"buffer_store_dwordx4 v[{VQB+4*u}:{VQB+4*u+3}], v{V_B512}, s[{H_WS}:{H_WS+3}], s95 offen offset:{u*256} {sf_qbp}")
        a.label("L_noqbpub")
        if EARLY: a("s_waitcnt vmcnt(0)")
    if EARLY and split: wpre_perms(VW + 32, waits=False)
    elif EARLY: wpre_perms(VW + 32)
    elif "wpre" not in skip: wpre(P_AWO)
    perm_addr(0)
    st2_addr(2, OA_G, OA_ML)
    a("s_lshr_b32 s5, s2, 7")
    a(f"s_lshl_b32 s6, s{H_b}, 5")
    a(f"s_add_u32 s6, s6, s{H_h}")
    a("s_lshl_b32 s6, s6, 1")
    a("s_add_u32 s6, s6, s5")
    a("s_lshl_b32 s40, s6, 9")
    a(f"s_add_u32 s40, s40, {OA_G}")
    a("s_lshl_b32 s41, s6, 7")
    a(f"s_add_u32 s41, s41, {OA_ML}")
    stamp(3, HST)
    if not flags:
        if bm is not None: a("s_barrier")
        a("s_barrier")
        a(f"v_lshlrev_b32 v{VT}, 3, v{VG}")
        a(f"ds_read_b32 v{V_GS}, v{VT} offset:{L_G}")
        a("s_waitcnt lgkmcnt(0)")
        a("s_barrier")
        a("s_barrier")
    else:
        a("s_barrier")
        a(f"v_lshlrev_b32 v{VT}, 3, v{VG}")
        a(f"ds_read_b32 v{V_GS}, v{VT} offset:{L_G}")
        a("s_waitcnt lgkmcnt(0)")
    a("s_barrier")
    stamp(4, HST)
    if "tail" in skip: a("s_branch L_hend")
    merge(VW, L_SPA, L_MLA, 0)
    a("s_mov_b32 exec_hi, 0")
    a(f"buffer_store_dwordx4 v[{VW}:{VW+3}], v{V_PERM}, s[{H_WS}:{H_WS+3}], s40 offen {sf_oa}")
    a("s_mov_b64 exec, -1")
    merge_ml(VW)
    a("s_mov_b64 exec, 0xff")
    a(f"buffer_store_dwordx4 v[{VW+4}:{VW+7}], v{V_L16}, s[{H_WS}:{H_WS+3}], s41 offen {sf_oa}")
    a("s_mov_b64 exec, -1")
    stamp(5, HST)
    st2(2, L_OBA, "st2a", tailsleep, False)
    a(f"s_lshl_b32 s4, s{H_cg}, 6")
    a(f"s_add_u32 s4, s4, s{H_i2}")
    a("s_lshl_b32 s4, s4, 11")
    a(f"s_add_u32 s4, s4, {Y_G}")
    a(f"v_lshlrev_b32 v{VT}, 5, v0")
    stamp(6, HST)
    if not nob5: a("s_barrier")
    a(f"ds_read_b128 v[{VW+8}:{VW+11}], v{VT} offset:{L_YB}")
    a(f"ds_read_b128 v[{VW+12}:{VW+15}], v{VT} offset:{L_YB + 16}")
    a("s_nop 3")
    select_batch(VW)
    a("s_waitcnt lgkmcnt(0)")
    for u in range(2):
        for i in range(4): a(f"v_add_f32 v{VW+4*u+i}, v{VW+4*u+i}, v{VW+8+4*u+i}")
        tag4(VW + 4*u)
        a(f"buffer_store_dwordx4 v[{VW+4*u}:{VW+4*u+3}], v{V_B512}, s[{H_WS}:{H_WS+3}], s4 offen offset:{u*256} {sf_y}")
    stamp(7, HST)
    a(f"v_lshrrev_b32 v{VT}, 1, v0")
    a(f"v_lshlrev_b32 v{VT}, 11, v{VT}")
    a(f"v_and_b32 v{VT+1}, 1, v0")
    a(f"v_lshl_add_u32 v{VT}, v{VT+1}, 4, v{VT}")
    a("s_bfe_u32 s4, s2, 0x20004")
    a("s_lshl_b32 s4, s4, 17")
    a("s_lshr_b32 s5, s2, 6")
    a("s_lshl_b32 s5, s5, 9")
    a("s_add_u32 s4, s4, s5")
    a("s_bfe_u32 s5, s2, 0x10003")
    a("s_lshl_b32 s5, s5, 8")
    a("s_add_u32 s4, s4, s5")
    a("s_and_b32 s5, s2, 7")
    a("s_lshl_b32 s5, s5, 5")
    a("s_add_u32 s4, s4, s5")
    a(f"s_add_u32 s4, s4, {Y_G}")
    a("s_add_u32 s5, s4, 65536")
    Y = VW + 16
    a.label("L_fin")
    a(f"buffer_load_dwordx4 v[{Y}:{Y+3}], v{VT}, s[{H_WS}:{H_WS+3}], s4 offen {fl_fin}")
    a(f"buffer_load_dwordx4 v[{Y+4}:{Y+7}], v{VT}, s[{H_WS}:{H_WS+3}], s5 offen {fl_fin}")
    a("s_lshr_b32 s6, s2, 6")
    a("s_lshl_b32 s6, s6, 10")
    a("s_bfe_u32 s7, s2, 0x20004")
    a("s_lshl_b32 s7, s7, 8")
    a("s_add_u32 s6, s6, s7")
    a("s_and_b32 s7, s2, 7")
    a("s_lshl_b32 s7, s7, 5")
    a("s_add_u32 s6, s6, s7")
    a("s_bfe_u32 s7, s2, 0x10003")
    a("s_lshl_b32 s7, s7, 3")
    a("s_add_u32 s6, s6, s7")
    srd(H_W, P_OUT, 4096)
    a("s_waitcnt vmcnt(0)")
    check("L_fin", quads=[Y, Y + 4], sleep=tailsleep)
    for i in range(4): a(f"v_add_f32 v{Y+i}, v{Y+i}, v{Y+4+i}")
    for st in ("quad_perm:[2,3,0,1]", "row_ror:4", "row_ror:8"):
        for i in range(4): a(f"v_add_f32_dpp v{Y+i}, v{Y+i}, v{Y+i} {st} row_mask:0xf bank_mask:0xf")
    xsum([Y + i for i in range(4)], Y + 4, "16")
    xsum([Y + i for i in range(4)], Y + 4, "32")
    a(f"v_lshlrev_b32 v{VT}, 4, v{VT+1}")
    a(f"v_cvt_pk_bf16_f32 v{Y}, v{Y}, v{Y+1}")
    a(f"v_cvt_pk_bf16_f32 v{Y+1}, v{Y+2}, v{Y+3}")
    a("s_mov_b64 exec, 3")
    a(f"buffer_store_dwordx2 v[{Y}:{Y+1}], v{VT}, s[{H_W}:{H_W+3}], s6 offen")
    a("s_cmp_eq_u32 s2, 0")
    a("s_cbranch_scc0 L_noep")
    a("s_mov_b64 exec, 1")
    a(f"v_mov_b32 v{VT}, {EPOCH:#x}")
    a(f"buffer_store_dword v{V_TV}, v{VT}, s[{H_WS}:{H_WS+3}], 0 offen sc1")
    a.label("L_noep")
    a("s_mov_b64 exec, -1")
    stamp(8, HST)
    if lite:
        a("s_memrealtime s[74:75]")
        a("s_waitcnt lgkmcnt(0)")
        a(f"v_mov_b32 v{HST}, s72")
        a(f"v_mov_b32 v{HST+1}, s74")
        a("s_lshl_b32 s76, s2, 3")
        a(f"s_add_u32 s76, s76, {DIAG}")
        a(f"v_mov_b32 v{VT}, s76")
        a("s_mov_b64 exec, 1")
        a(f"global_store_dwordx2 v{VT}, v[{HST}:{HST+1}], s[{P_WS}:{P_WS+1}]")
        a("s_mov_b64 exec, -1")
    a("s_branch L_hend")

    a.label("L_H1")
    if touch:
        a(f"v_mov_b32 v{VX}, {Y_G + 0x70000:#x}")
        a(f"buffer_load_dword v{VX+1}, v{VX}, s[{H_WS}:{H_WS+3}], 0 offen nt")
    if split:
        qsplit_loads(1)
        if b0: a("s_barrier")
        stamp(0, HST, start=True)
        h_consts()
        qsplit_compute()
        a(f"v_lshlrev_b32 v{VT}, 5, v0")
        a(f"ds_write_b128 v{VT}, v[{VW}:{VW+3}] offset:{L_QX}")
        a(f"ds_write_b128 v{VT}, v[{VW+4}:{VW+7}] offset:{L_QX + 16}")
        a("s_waitcnt lgkmcnt(0)")
        a("s_barrier")
        if "wpre" not in skip: wpre_loads(P_BWO, VW + 32)
        if b0b: a("s_barrier")
        a("s_barrier")
        stamp(1, HST)
        if "wpre" not in skip:
            a("s_waitcnt vmcnt(0)")
            wpre_perms(VW + 32, waits=False)
    elif early and "j2" not in skip:
        if not h1late: qproj_loads(P_BWQ)
        if b0: a("s_barrier")
        if h1late: qproj_loads(P_BWQ)
        stamp(0, HST, start=True)
        h_consts()
        qproj_rest(QBP_G, True, publish=False)
        if "wpre" not in skip: wpre_loads(P_BWO, VW + 32)
        if b0b: a("s_barrier")
        a("s_barrier")
        qproj_publish()
        stamp(1, HST)
        if "wpre" not in skip:
            a("s_waitcnt vmcnt(2)") if not diag else a("s_waitcnt vmcnt(0)")
            wpre_perms(VW + 32, waits=False)
    else:
        if b0: a("s_barrier")
        stamp(0, HST, start=True)
        h_consts()
        a("s_waitcnt vmcnt(0)")
        read_tag()
        if b0b: a("s_barrier")
        a("s_barrier")
        if "j2" not in skip:
            qproj_loads(P_BWQ)
            qproj_rest(QBP_G, False)
        stamp(1, HST)
        if "wpre" not in skip: wpre(P_BWO)
    srd(H_W, P_GATE, 1024)
    for b in range(4):
        a(f"buffer_load_dwordx4 v[{VW+4*b}:{VW+4*b+3}], v{V_L16}, s[{H_X}:{H_X+3}], 0 offen offset:{b*1024} nt")
    GWR = VW + 16
    a(f"buffer_load_dwordx4 v[{GWR}:{GWR+3}], v{V_L16}, s[{H_W}:{H_W+3}], 0 offen nt")
    a("s_waitcnt vmcnt(0)")
    GW = VW + 20
    for i in range(4):
        a(f"v_lshlrev_b32 v{GW+2*i}, 16, v{GWR+i}")
        a(f"v_and_b32 v{GW+2*i+1}, s{H_MHI}, v{GWR+i}")
    XU = VW + 28
    Z = VW + 36
    for b in range(4):
        for i in range(4):
            a(f"v_lshlrev_b32 v{XU+2*i}, 16, v{VW+4*b+i}")
            a(f"v_and_b32 v{XU+2*i+1}, s{H_MHI}, v{VW+4*b+i}")
        for i in range(8): a(f"v_mul_f32 v{XU+i}, v{XU+i}, v{GW+i}")
        for i in range(4): a(f"v_cvt_pk_bf16_f32 v{VW+4*b+i}, v{XU+2*i}, v{XU+2*i+1}")
        for i in range(4):
            a(f"v_lshlrev_b32 v{XU+2*i}, 16, v{VW+4*b+i}")
            a(f"v_and_b32 v{XU+2*i+1}, s{H_MHI}, v{VW+4*b+i}")
        for i in range(4): a(f"v_add_f32 v{XU+i}, v{XU+i}, v{XU+4+i}")
        a(f"v_add_f32 v{XU}, v{XU}, v{XU+2}")
        a(f"v_add_f32 v{XU+1}, v{XU+1}, v{XU+3}")
        a(f"v_add_f32 v{Z+b}, v{XU}, v{XU+1}")
    for rot in (8, 4, 2, 1):
        a("s_nop 0")
        for b in range(4):
            a(f"v_add_f32_dpp v{Z+b}, v{Z+b}, v{Z+b} row_ror:{rot} row_mask:0xf bank_mask:0xf")
    xsum([Z + b for b in range(4)], Z + 4, "32")
    xsum([Z + b for b in range(4)], Z + 4, "16")
    for b in range(4): a(f"v_cvt_pk_bf16_f32 v{Z+b}, v{Z+b}, v{Z+b}")
    for b in range(4): a(f"v_lshlrev_b32 v{Z+b}, 16, v{Z+b}")
    for b in range(4): a(f"v_mul_f32 v{Z+b}, s{H_L2E}, v{Z+b}")
    for b in range(4): a(f"v_sub_f32 v{Z+b}, 0, v{Z+b}")
    for b in range(4): a(f"v_exp_f32 v{Z+b}, v{Z+b}")
    a("s_nop 0")
    for b in range(4): a(f"v_add_f32 v{Z+b}, 1.0, v{Z+b}")
    for b in range(4): a(f"v_rcp_f32 v{Z+b}, v{Z+b}")
    a("s_nop 0")
    for b in range(4): a(f"v_cvt_pk_bf16_f32 v{Z+b}, v{Z+b}, v{Z+b}")
    GG = Z + 8
    for b in range(4): a(f"v_lshlrev_b32 v{GG+2*b}, 16, v{Z+b}")
    for b in range(4): a(f"v_sub_f32 v{GG+2*b+1}, 1.0, v{GG+2*b}")
    for b in range(4): a(f"v_cvt_pk_bf16_f32 v{GG+2*b+1}, v{GG+2*b+1}, v{GG+2*b+1}")
    for b in range(4): a(f"v_lshlrev_b32 v{GG+2*b+1}, 16, v{GG+2*b+1}")
    a(f"v_mov_b32 v{VT}, 0")
    a("s_mov_b64 exec, 1")
    a(f"ds_write_b128 v{VT}, v[{GG}:{GG+3}] offset:{L_G}")
    a(f"ds_write_b128 v{VT}, v[{GG+4}:{GG+7}] offset:{L_G + 16}")
    a("s_mov_b64 exec, -1")
    a("s_waitcnt lgkmcnt(0)")
    a(f"v_lshlrev_b32 v{VT}, 3, v{VG}")
    a(f"ds_read_b32 v{V_GS}, v{VT} offset:{L_G + 4}")
    stamp(2, HST)
    if "j3" not in skip:
        a(f"v_lshlrev_b32 v{VT}, 11, v{VG}")
        a(f"v_lshl_add_u32 v{VT}, v{VC}, 4, v{VT}")
        a(f"s_lshl_b32 s4, s{H_h}, {13 if split else 14}")
        a(f"s_lshl_b32 s5, s{H_b}, 9")
        a("s_add_u32 s4, s4, s5")
        a("s_lshr_b32 s6, s2, 7")
        a("s_lshl_b32 s5, s6, 8")
        a("s_add_u32 s4, s4, s5")
        a(f"s_add_u32 s4, s4, {QBP_G}")
        a("s_add_u32 s5, s4, 8192")
        a.label("L_qbc")
        a(f"buffer_load_dwordx4 v[{VW}:{VW+3}], v{VT}, s[{H_WS}:{H_WS+3}], s4 offen {fl_qbc}")
        if not split:
            a(f"buffer_load_dwordx4 v[{VW+4}:{VW+7}], v{VT}, s[{H_WS}:{H_WS+3}], s5 offen {fl_qbc}")
        a("s_waitcnt vmcnt(0)")
        check("L_qbc", quads=([VW] if split else [VW, VW + 4]), sleep=midsleep)
        if not split:
            for i in range(4): a(f"v_add_f32 v{VW+i}, v{VW+i}, v{VW+4+i}")
        xsum([VW + i for i in range(4)], VW + 4, "32")
        xsum([VW + i for i in range(4)], VW + 4, "16")
        a(f"v_cvt_pk_bf16_f32 v{VW}, v{VW}, v{VW+1}")
        a(f"v_cvt_pk_bf16_f32 v{VW+2}, v{VW+2}, v{VW+3}")
        a(f"v_mov_b32 v{VW+1}, s{H_T}")
        a(f"v_mov_b32 v{VW+3}, s{H_T}")
        a(f"s_lshl_b32 s4, s{H_h}, 11")
        a(f"s_lshl_b32 s5, s{H_b}, 9")
        a("s_add_u32 s4, s4, s5")
        a("s_lshl_b32 s5, s6, 8")
        a("s_add_u32 s4, s4, s5")
        a(f"s_add_u32 s4, s4, {QBF_G}")
        a("s_mov_b64 exec, 0xffff")
        a(f"buffer_store_dwordx4 v[{VW}:{VW+3}], v{V_L16}, s[{H_WS}:{H_WS+3}], s4 offen {sf_qbf}")
        a("s_mov_b64 exec, -1")
        stamp(3, HST)
        if bm is not None:
            if flags:
                a(f"v_mov_b32 v{VST+2}, 0")
                lds_wait(4, VST, VST + 2, sleep=16)
            else: a("s_barrier")
        a(f"v_lshlrev_b32 v{VT}, 11, v{VG}")
        a(f"v_lshl_add_u32 v{VT}, v{VC}, 4, v{VT}")
        a("s_bfe_u32 s4, s2, 0x30003")
        a("s_lshl_b32 s4, s4, 13")
        a("s_lshr_b32 s5, s2, 6")
        a("s_lshl_b32 s5, s5, 9")
        a("s_add_u32 s4, s4, s5")
        a(f"s_add_u32 s4, s4, {QBF_G}")
        a.label("L_qbg")
        for u in range(2):
            a(f"buffer_load_dwordx4 v[{VW+8+4*u}:{VW+8+4*u+3}], v{VT}, s[{H_WS}:{H_WS+3}], s4 offen offset:{u*256} {fl_qbg}")
        a("s_waitcnt vmcnt(0)")
        check("L_qbg", fulltags=[VW+9, VW+11, VW+13, VW+15], sleep=midsleep)
        a(f"v_lshlrev_b32 v{VT}, 8, v{VG}")
        a(f"v_lshl_add_u32 v{VT}, v{VC}, 4, v{VT}")
        for u in range(2):
            a(f"v_mov_b32 v{VW+8+4*u+1}, v{VW+8+4*u+2}")
            a(f"ds_write_b64 v{VT}, v[{VW+8+4*u}:{VW+8+4*u+1}] offset:{L_QB + 8*u}")
    elif bm is not None and not flags: a("s_barrier")
    a("s_waitcnt lgkmcnt(0)")
    if flags:
        a(f"v_mov_b32 v{VST+2}, 0")
        a(f"v_mov_b32 v{VST+3}, 1")
        lds_set(0, VST + 3, VST + 2)
    perm_addr(4096)
    st2_addr(8, GP_G, GP_ML)
    a("s_lshr_b32 s4, s2, 6")
    a("s_lshl_b32 s4, s4, 8")
    a("s_bfe_u32 s5, s2, 0x30003")
    a("s_lshl_b32 s5, s5, 5")
    a("s_add_u32 s4, s4, s5")
    a("s_and_b32 s5, s2, 7")
    a("s_add_u32 s4, s4, s5")
    a("s_lshl_b32 s40, s4, 9")
    a(f"s_add_u32 s40, s40, {GP_G}")
    a("s_lshl_b32 s41, s2, 7")
    a(f"s_add_u32 s41, s41, {GP_ML}")
    stamp(4, HST)
    if flags:
        a(f"v_mov_b32 v{VST+2}, 0")
        lds_wait(8, VST, VST + 2, sleep=8, n=2)
    else:
        a("s_barrier")
        a("s_barrier")
    for rr in range(2):
        merge(VW + 32 * rr, L_SPB, L_MLB, 2 * rr)
        merge_ml(VW + 32 * rr)
    a("s_mov_b32 s4, 0xaaaaaaaa")
    a("s_mov_b32 s5, 0xaaaaaaaa")
    for i in range(4): a(f"v_cndmask_b32 v{VW+4+i}, v{VW+4+i}, v{VW+32+4+i}, s[4:5]")
    a(f"v_lshrrev_b32 v{VT}, 5, v0")
    a(f"v_and_b32 v{VT+1}, 1, v0")
    a(f"v_lshl_add_u32 v{VT}, v{VT+1}, 1, v{VT}")
    a(f"v_bfe_u32 v{VT+1}, v0, 1, 1")
    a(f"v_lshl_add_u32 v{VT}, v{VT+1}, 2, v{VT}")
    a(f"v_lshlrev_b32 v{VT}, 4, v{VT}")
    stamp(5, HST)
    a("s_barrier")
    if "gp" not in skip:
        for rr in range(2):
            q0 = VW + 32 * rr
            a(f"buffer_store_dwordx4 v[{q0}:{q0+3}], v{V_PERM}, s[{H_WS}:{H_WS+3}], s40 offen {sf_gp}")
            if rr == 0: a("s_add_u32 s40, s40, 8192")
        a("s_mov_b32 exec_lo, 0xf")
        a("s_mov_b32 exec_hi, 0xf")
        a(f"buffer_store_dwordx4 v[{VW+4}:{VW+7}], v{VT}, s[{H_WS}:{H_WS+3}], s41 offen {sf_gp}")
        a("s_mov_b64 exec, -1")
    stamp(6, HST)
    if not nob5:
        a("s_barrier")
        if "tail" in skip: a("s_branch L_hend")
    if not (nob5 and "tail" in skip):
        st2(8, L_OBB, "st2b", tailsleep, True)
        a(f"v_lshlrev_b32 v{VT}, 5, v0")
        a("s_nop 6")
        select_batch(VW)
        a(f"ds_write_b128 v{VT}, v[{VW}:{VW+3}] offset:{L_YB}")
        a(f"ds_write_b128 v{VT}, v[{VW+4}:{VW+7}] offset:{L_YB + 16}")
        a("s_waitcnt lgkmcnt(0)")
    stamp(7, HST)
    a("s_barrier")
    a.label("L_hend")
    a("s_waitcnt vmcnt(0)")
    a.label("L_end")
    a("s_endpgm")
    nagpr = 32 * D
    a.raw('.section .rodata,"a"')
    a.raw(".p2align 6")
    a.raw(f".amdhsa_kernel {NAME}_kernel")
    a.raw(f"  .amdhsa_next_free_vgpr {256 + max(nagpr, 64)}")
    a.raw("  .amdhsa_next_free_sgpr 96")
    a.raw("  .amdhsa_accum_offset 256")
    a.raw("  .amdhsa_group_segment_fixed_size 0")
    a.raw("  .amdhsa_kernarg_size 112")
    a.raw("  .amdhsa_user_sgpr_count 2")
    a.raw("  .amdhsa_user_sgpr_kernarg_segment_ptr 1")
    a.raw("  .amdhsa_system_sgpr_workgroup_id_x 1")
    a.raw("  .amdhsa_float_denorm_mode_32 3")
    a.raw(".end_amdhsa_kernel")
    return a.text()

if __name__ == "__main__":
    import json
    kw = json.loads(sys.argv[2]) if len(sys.argv) > 2 else {}
    open(sys.argv[1], "w").write(gen(**kw))
```

```python
import sys

NAME = "gated_mix__mha_block_cached__gqa_block_cached__decode"

EPOCH  = 0x000000
GP_ML  = 0x001000
OA_ML  = 0x009000
QA_G   = 0x011000
QBP_G  = 0x091000
QBF_G  = 0x111000
OA_G   = 0x121000
GP_G   = 0x141000
Y_G    = 0x1C1000
DIAG   = 0x250000
WS_USED = 0x280000

L_QA, L_QB = 0, 256
L_SPA, L_SPB = 2048, 6144
L_MLA, L_MLB = 10240, 10496
L_OBA, L_OBB = 10752, 11264
L_G = 11776
L_YB = 11840
L_QX = 13888
L_F = 15936
LDS_BYTES = 16384

SCALE = 0x3db504f3
LOG2E = 0x3fb8aa3b
SEL_LO, SEL_HI = 0x05040100, 0x07060302
TAGINC = 0x9e3779b9
NEG_INF = 0xff800000
NEG_BIG = 0xf149f2ca

class Asm:
    def __init__(self):
        self.L = []
        self.n = 0
    def __call__(self, s):
        self.L.append("  " + s)
    def label(self, s):
        self.L.append(s + ":")
    def raw(self, s):
        self.L.append(s)
    def uniq(self, p):
        self.n += 1
        return f"{p}_{self.n}"
    def text(self):
        return "\n".join(self.L) + "\n"

P_X, P_AK, P_AV, P_AWQ, P_AWO = 44, 46, 48, 50, 52
P_BK, P_BV, P_BWQ, P_BWO, P_GATE, P_OUT, P_DBG, P_WS = 56, 58, 60, 62, 64, 66, 68, 70

def gen(D=4, N0=16, diag=False, kvflags="nt", maxpoll=1 << 18, b0=True, b0b=True, batch1=None,
        noH=False, nocomp=0, skip=(), mimic=True, tailsleep=1, midsleep=8, qsleep=0,
        hoflags="sc1", stflags="sc1", qaack=False, stag=False, G2=False, touch=False, b0pos=0, early=True, bm=None, itstamp=False, GB=None, h1late=False, nob5=False, b3bit=1, split=True, flags=True, lite=False, codepf=False, outflags="", b0bpos=0, fl_qa=None, fl_qbc=None, fl_qbg=None, fl_st2a=None, fl_st2b=None, fl_fin=None, sf_qa=None, sf_qbp=None, sf_qbf=None, sf_gp=None, sf_oa=None, sf_y=None):
    a = Asm()
    W, NH = 2, 2
    NWAVES = W + NH
    TA = 128 // W
    TB = 32 // W
    if batch1 is None: batch1 = max(1, D // 2)
    assert N0 % D == 0 and TB % D == 0 and (TA - N0) % D == 0
    a.raw(f"; @launch grid=(256,1,1) block=({64*NWAVES},1,1) lds={LDS_BYTES}")
    a.raw('.amdgcn_target "amdgcn-amd-amdhsa--gfx950"')
    a.raw(".text")
    a.raw(f".globl {NAME}_kernel")
    a.raw(".p2align 8")
    a.raw(f".type {NAME}_kernel,@function")
    a.label(f"{NAME}_kernel")
    a("s_cmp_ge_u32 s2, 256")
    a("s_cbranch_scc1 L_end")
    a("s_load_dwordx16 s[44:59], s[0:1], 0")
    a("s_load_dwordx8 s[60:67], s[0:1], 64")
    a("s_load_dwordx4 s[68:71], s[0:1], 96")
    if codepf:
        a("s_getpc_b64 s[90:91]")
        a.label("L_pc")
        a(f"s_sub_u32 s90, s90, L_pc-{NAME}_kernel")
        a("s_subb_u32 s91, s91, 0")
        a("s_lshr_b32 s92, s2, 3")
        a("s_lshl_b32 s92, s92, 10")
        a(f"s_cmp_lt_u32 s92, L_code_end-{NAME}_kernel-1024")
        a("s_cbranch_scc0 L_nopf")
        a("v_cmp_gt_u32 vcc, 64, v0")
        a("s_and_saveexec_b64 s[86:87], vcc")
        a("s_cbranch_execz L_pf_restore")
        a("v_lshl_add_u32 v250, v0, 4, s92")
        a("global_load_dwordx4 v[252:255], v250, s[90:91]")
        a.label("L_pf_restore")
        a("s_mov_b64 exec, s[86:87]")
        a.label("L_nopf")
    if diag or lite:
        a("s_memrealtime s[72:73]")
    if diag:
        a("s_memtime s[80:81]")
    a("v_lshrrev_b32 v1, 6, v0")
    a("v_and_b32 v0, 63, v0")
    a("v_and_b32 v3, 15, v0")
    a("v_readfirstlane_b32 s3, v1")
    a("v_lshrrev_b32 v2, 4, v0")
    a("s_waitcnt lgkmcnt(0)")
    a(f"s_cmp_ge_u32 s3, {W}")
    a("s_cbranch_scc1 L_H")

    def stamp(idx, r0, start=False):
        if not diag: return
        if not start:
            a("s_memrealtime s[74:75]")
            a("s_waitcnt lgkmcnt(0)")
            a(f"v_mov_b32 v{r0}, s74")
        else:
            a(f"v_mov_b32 v{r0}, s72")
        a(f"s_lshl_b32 s76, s2, 2")
        a("s_add_u32 s76, s76, s3")
        a("s_lshl_b32 s76, s76, 6")
        a(f"s_add_u32 s76, s76, {DIAG + idx*4}")
        a(f"v_mov_b32 v{r0+1}, s76")
        a("s_mov_b64 s[78:79], exec")
        a("s_mov_b64 exec, 1")
        a(f"global_store_dword v{r0+1}, v{r0}, s[{P_WS}:{P_WS+1}]")
        a("s_mov_b64 exec, s[78:79]")

    def lds_wait(off, vtmp, vzero, sleep=1, n=1):
        lab = a.uniq("L_spin")
        a.label(lab)
        if n == 1:
            a(f"ds_read_b32 v{vtmp}, v{vzero} offset:{L_F + off}")
            a("s_waitcnt lgkmcnt(0)")
        else:
            a(f"ds_read_b64 v[{vtmp}:{vtmp+1}], v{vzero} offset:{L_F + off}")
            a("s_waitcnt lgkmcnt(0)")
            a(f"v_and_b32 v{vtmp}, v{vtmp}, v{vtmp+1}")
            a("s_nop 0")
        a(f"v_readfirstlane_b32 s4, v{vtmp}")
        done = a.uniq("L_spun")
        a("s_nop 3")
        a("s_cmp_lg_u32 s4, 0")
        a(f"s_cbranch_scc1 {done}")
        if sleep: a(f"s_sleep {sleep}")
        a(f"s_branch {lab}")
        a.label(done)
    def lds_set(off, vone, vzero):
        a(f"ds_write_b32 v{vzero}, v{vone} offset:{L_F + off}")

    S_KC, S_VC = 8, 12
    S_KA, S_VA, S_KB, S_VB = 16, 18, 20, 22
    S_OFF, S_OFF2, S_IT, S_SEG = 24, 25, 26, 27
    S_SCALE, S_L2E, S_SELLO, S_SELHI, S_MASKHI = 28, 29, 30, 31, 32
    S_M4 = 36
    V_KO, V_VO = 4, 5
    V_P, V_ML, V_QA, V_QB = 6, 7, 8, 9
    V_Q = 12
    V_S = 28
    V_PB = 36
    V_ST = 40
    V_O = 48
    V_M, V_L, V_MN, V_AL, V_MLG = 80, 81, 82, 83, 84
    V_T = 86
    V_RING = 96
    SST = 250
    def KR(d): return 32 * d
    def VR(d): return V_RING + 32 * d
    fl = (" " + kvflags) if kvflags else ""

    a(f"; ---------------- S waves ----------------")
    GM = 2 if G2 else 1
    if GB is None: GB = GM
    import math
    LGB = int(math.log2(GB))
    STEP = GM * W * 8192
    STEPB = GB * W * 8192
    S_STEP = 35
    S_W0A, S_W0B = 33, 34
    a("s_and_b32 s4, s2, 127")
    a("s_lshl_b32 s4, s4, 21")
    a("s_lshr_b32 s5, s2, 7")
    if G2:
        a(f"s_lshl_b32 s{S_W0A}, s5, 1")
        a(f"s_add_u32 s{S_W0A}, s{S_W0A}, s3")
        a(f"s_lshl_b32 s{S_W0A}, s{S_W0A}, 13")
    else:
        a("s_lshl_b32 s5, s5, 20")
        a("s_add_u32 s4, s4, s5")
        a(f"s_lshl_b32 s{S_W0A}, s3, 13")
    for (dst, p) in ((S_KC, P_AK), (S_VC, P_AV)):
        a(f"s_add_u32 s{dst}, s{p}, s4")
        a(f"s_addc_u32 s{dst+1}, s{p+1}, 0")
        a(f"s_and_b32 s{dst+1}, s{dst+1}, 0xffff")
        a(f"s_mov_b32 s{dst+2}, {GM << 20}")
        a(f"s_mov_b32 s{dst+3}, 0x20000")
    a(f"s_mov_b32 s{S_OFF}, s{S_W0A}")
    a(f"s_add_u32 s{S_OFF2}, s{S_OFF}, 4096")
    a(f"v_lshlrev_b32 v{V_KO}, 8, v3")
    a(f"v_lshl_add_u32 v{V_KO}, v2, 4, v{V_KO}")
    a(f"v_lshlrev_b32 v{V_VO}, 10, v2")
    a(f"v_lshl_add_u32 v{V_VO}, v3, 4, v{V_VO}")
    def issueK(d):
        for t in range(8):
            so = S_OFF if t < 4 else S_OFF2
            r = KR(d) + 4 * t
            a(f"buffer_load_dwordx4 a[{r}:{r+3}], v{V_KO}, s[{S_KC}:{S_KC+3}], s{so} offen offset:{(t%4)*64}{fl}")
    def issueV(d):
        for t in range(8):
            so = S_OFF if t < 4 else S_OFF2
            r = VR(d) + 4 * t
            a(f"buffer_load_dwordx4 v[{r}:{r+3}], v{V_VO}, s[{S_VC}:{S_VC+3}], s{so} offen offset:{(t%4)*256}{fl}")
    a(f"s_mov_b32 s{S_STEP}, {STEP}")
    def advance():
        a(f"s_add_u32 s{S_OFF}, s{S_OFF}, s{S_STEP}")
        a(f"s_add_u32 s{S_OFF2}, s{S_OFF2}, s{S_STEP}")
    V_ZERO, V_ONE = 11, 94
    if flags:
        assert b0
        a(f"v_mov_b32 v{V_ZERO}, 0")
        a(f"v_mov_b32 v{V_ONE}, 1")
        a(f"v_mov_b32 v86, 0")
        a(f"v_mov_b32 v87, 0")
        a(f"v_mov_b32 v88, 0")
        a(f"v_mov_b32 v89, 0")
        a(f"ds_write_b128 v{V_ZERO}, v[86:89] offset:{L_F}")
        a("s_waitcnt lgkmcnt(0)")
    if b0: a("s_barrier")
    for d in range(batch1):
        issueK(d); issueV(d); advance()
    a(f"s_mov_b32 s{S_KA}, s{S_KC}")
    a(f"s_mov_b32 s{S_KA+1}, s{S_KC+1}")
    a(f"s_mov_b32 s{S_VA}, s{S_VC}")
    a(f"s_mov_b32 s{S_VA+1}, s{S_VC+1}")
    if GB > 1:
        a(f"s_lshr_b32 s5, s2, {LGB}")
        a(f"s_lshl_b32 s5, s5, {18 + LGB}")
        a(f"s_and_b32 s{S_W0B}, s2, {GB - 1}")
        a(f"s_lshl_b32 s{S_W0B}, s{S_W0B}, 1")
        a(f"s_add_u32 s{S_W0B}, s{S_W0B}, s3")
        a(f"s_lshl_b32 s{S_W0B}, s{S_W0B}, 13")
    else:
        a("s_lshl_b32 s5, s2, 18")
        a(f"s_lshl_b32 s{S_W0B}, s3, 13")
    for (dst, p) in ((S_KB, P_BK), (S_VB, P_BV)):
        a(f"s_add_u32 s{dst}, s{p}, s5")
        a(f"s_addc_u32 s{dst+1}, s{p+1}, 0")
        a(f"s_and_b32 s{dst+1}, s{dst+1}, 0xffff")
    def set_issue(kb, vb, size, tile0, w0, step):
        a(f"s_mov_b32 s{S_KC}, s{kb}")
        a(f"s_mov_b32 s{S_KC+1}, s{kb+1}")
        a(f"s_mov_b32 s{S_KC+2}, {size}")
        a(f"s_mov_b32 s{S_VC}, s{vb}")
        a(f"s_mov_b32 s{S_VC+1}, s{vb+1}")
        a(f"s_mov_b32 s{S_VC+2}, {size}")
        a(f"s_mov_b32 s{S_STEP}, {step}")
        a(f"s_add_u32 s{S_OFF}, s{w0}, {tile0 * STEP}")
        a(f"s_add_u32 s{S_OFF2}, s{S_OFF}, 4096")
    a(f"s_mov_b32 s{S_SCALE}, {SCALE:#x}")
    a(f"s_mov_b32 s{S_L2E}, {LOG2E:#x}")
    a(f"s_mov_b32 s{S_SELLO}, {SEL_LO:#x}")
    a(f"s_mov_b32 s{S_SELHI}, {SEL_HI:#x}")
    a(f"s_mov_b32 s{S_MASKHI}, 0xffff0000")
    a(f"s_mov_b32 s{S_M4}, 0x000f000f")
    a(f"s_mov_b32 s{S_M4+1}, 0x000f000f")
    a(f"v_and_b32 v10, 3, v3")
    a(f"s_lshl_b32 s4, s3, 11")
    a(f"v_lshlrev_b32 v{V_P}, 9, v10")
    a(f"v_lshl_add_u32 v{V_P}, v2, 4, v{V_P}")
    a(f"v_add_u32 v{V_P}, s4, v{V_P}")
    a(f"s_lshl_b32 s4, s3, 7")
    a(f"v_lshlrev_b32 v{V_ML}, 5, v10")
    a(f"v_lshl_add_u32 v{V_ML}, v2, 2, v{V_ML}")
    a(f"v_add_u32 v{V_ML}, s4, v{V_ML}")
    a(f"v_lshlrev_b32 v{V_QA}, 4, v2")
    a(f"v_lshl_add_u32 v{V_QB}, v10, 8, v{V_QA}")
    def init_state():
        for i in range(32): a(f"v_mov_b32 v{V_O+i}, 0")
        a(f"v_mov_b32 v{V_M}, {NEG_INF:#x}")
        a(f"v_mov_b32 v{V_MLG}, {NEG_INF:#x}")
        a(f"v_mov_b32 v{V_L}, 0")
    def load_q(vaddr, base):
        for s in range(4):
            a(f"ds_read_b128 v[{V_Q+4*s}:{V_Q+4*s+3}], v{vaddr} offset:{base + 64*s}")
    init_state()
    if split: a("s_barrier")
    if b0b: a("s_barrier")
    for d in range(batch1, D):
        if stag:
            a(f"s_waitcnt vmcnt({16 * batch1 - 8})")
        issueK(d)
        if stag:
            a(f"s_waitcnt vmcnt({16 * batch1 - 8})")
        issueV(d); advance()
    stamp(0, SST, start=True)
    a("s_barrier")
    load_q(V_QA, L_QA)
    a(f"s_mov_b32 s{S_SEG}, 0")
    a(f"s_mov_b32 s{S_IT}, {N0 // D}")
    a("s_waitcnt lgkmcnt(0)")
    stamp(1, SST)
    if itstamp:
        a("s_mov_b32 s38, 0")
        a("v_mov_b32 v249, 0")
    a.label("L_sloop")
    if itstamp:
        a("s_memrealtime s[84:85]")
        a("s_waitcnt lgkmcnt(0)")
        a("s_mov_b32 m0, s38")
        a("s_nop 0")
        a("v_writelane_b32 v249, s84, m0")
        a("s_add_u32 s38, s38, 1")
    if bm is not None:
        a(f"s_cmp_eq_u32 s{S_SEG}, 0")
        a("s_cbranch_scc0 L_nobm")
        a(f"s_cmp_eq_u32 s{S_IT}, {bm}")
        a("s_cbranch_scc0 L_nobm")
        if flags: lds_set(4, V_ONE, V_ZERO)
        else: a("s_barrier")
        a.label("L_nobm")
    a(f"s_cmp_eq_u32 s{S_IT}, 1")
    a("s_cbranch_scc0 L_noswitch")
    a(f"s_cmp_eq_u32 s{S_SEG}, 0")
    a("s_cbranch_scc0 L_sw1")
    set_issue(S_KB, S_VB, GB << 18, 0, S_W0B, STEPB)
    a("s_branch L_noswitch")
    a.label("L_sw1")
    a(f"s_cmp_eq_u32 s{S_SEG}, 1")
    a("s_cbranch_scc0 L_sw2")
    set_issue(S_KA, S_VA, GM << 20, N0, S_W0A, STEP)
    a("s_branch L_noswitch")
    a.label("L_sw2")
    a(f"s_mov_b32 s{S_KC+2}, 0")
    a(f"s_mov_b32 s{S_VC+2}, 0")
    if b3bit == 1: a("s_barrier")
    a.label("L_noswitch")
    if b3bit != 1:
        a(f"s_cmp_eq_u32 s{S_SEG}, 2")
        a("s_cbranch_scc0 L_nob3b")
        a(f"s_cmp_eq_u32 s{S_IT}, {b3bit}")
        a("s_cbranch_scc0 L_nob3b")
        a("s_barrier")
        a.label("L_nob3b")
    WAITN = 16 * D - 8
    T = V_T
    for d in range(D):
        a(f"; ---- tile slot {d}")
        a(f"s_waitcnt vmcnt({WAITN})")
        if nocomp:
            issueK(d)
            a(f"s_waitcnt vmcnt({WAITN})")
            issueV(d)
            advance()
            continue
        for s in range(4):
            for h in range(2):
                kr = KR(d) + 4 * (4 * h + s)
                c = "0" if s == 0 else f"v[{V_S+4*h}:{V_S+4*h+3}]"
                a(f"v_mfma_f32_16x16x32_bf16 v[{V_S+4*h}:{V_S+4*h+3}], a[{kr}:{kr+3}], v[{V_Q+4*s}:{V_Q+4*s+3}], {c}")
        issueK(d)
        a("s_nop 1")
        S = [V_S + i for i in range(8)]
        if mimic:
            for i in range(4): a(f"v_cvt_pk_bf16_f32 v{T+i}, v{S[2*i]}, v{S[2*i+1]}")
            for i in range(4):
                a(f"v_lshlrev_b32 v{S[2*i]}, 16, v{T+i}")
                a(f"v_and_b32 v{S[2*i+1]}, s{S_MASKHI}, v{T+i}")
            for i in range(8): a(f"v_mul_f32 v{S[i]}, s{S_SCALE}, v{S[i]}")
            for i in range(4): a(f"v_cvt_pk_bf16_f32 v{T+i}, v{S[2*i]}, v{S[2*i+1]}")
            for i in range(4):
                a(f"v_lshlrev_b32 v{S[2*i]}, 16, v{T+i}")
                a(f"v_and_b32 v{S[2*i+1]}, s{S_MASKHI}, v{T+i}")
        else:
            for i in range(8): a(f"v_mul_f32 v{S[i]}, s{S_SCALE}, v{S[i]}")
        a(f"v_max3_f32 v{T}, v{S[0]}, v{S[1]}, v{S[2]}")
        a(f"v_max3_f32 v{T+1}, v{S[3]}, v{S[4]}, v{S[5]}")
        a(f"v_max3_f32 v{T}, v{T}, v{S[6]}, v{S[7]}")
        a(f"v_max_f32 v{T}, v{T}, v{T+1}")
        a(f"v_mov_b32 v{T+1}, v{T}")
        a("s_nop 1")
        a(f"v_permlane32_swap_b32 v{T}, v{T+1}")
        a(f"v_max_f32 v{T}, v{T}, v{T+1}")
        a(f"v_mov_b32 v{T+1}, v{T}")
        a("s_nop 1")
        a(f"v_permlane16_swap_b32 v{T}, v{T+1}")
        a(f"v_max_f32 v{T}, v{T}, v{T+1}")
        a(f"v_max_f32 v{V_MN}, v{V_M}, v{T}")
        a(f"v_cmp_gt_f32 vcc, v{V_MN}, v{V_M}")
        lab = a.uniq("L_nors")
        a(f"s_cbranch_vccz {lab}")
        a(f"v_sub_f32 v{T+1}, v{V_M}, v{V_MN}")
        a(f"v_mul_f32 v{T+1}, s{S_L2E}, v{T+1}")
        a(f"v_exp_f32 v{V_AL}, v{T+1}")
        a(f"v_mov_b32 v{V_M}, v{V_MN}")
        a(f"v_mul_f32 v{V_MLG}, s{S_L2E}, v{V_MN}")
        a(f"v_mul_f32 v{V_L}, v{V_L}, v{V_AL}")
        for i in range(32): a(f"v_mul_f32 v{V_O+i}, v{V_O+i}, v{V_AL}")
        a.label(lab)
        for i in range(8): a(f"v_fma_f32 v{S[i]}, v{S[i]}, s{S_L2E}, -v{V_MLG}")
        for i in range(8): a(f"v_exp_f32 v{S[i]}, v{S[i]}")
        a(f"v_add_f32 v{T}, v{S[0]}, v{S[1]}")
        a(f"v_add_f32 v{T+1}, v{S[2]}, v{S[3]}")
        a(f"v_add_f32 v{T+2}, v{S[4]}, v{S[5]}")
        a(f"v_add_f32 v{T+3}, v{S[6]}, v{S[7]}")
        for i in range(4): a(f"v_cvt_pk_bf16_f32 v{V_PB+i}, v{S[2*i]}, v{S[2*i+1]}")
        a(f"v_add_f32 v{T}, v{T}, v{T+1}")
        a(f"v_add_f32 v{T+2}, v{T+2}, v{T+3}")
        a(f"v_add_f32 v{T}, v{T}, v{T+2}")
        a(f"v_add_f32 v{V_L}, v{V_L}, v{T}")
        a(f"s_waitcnt vmcnt({WAITN})")
        def perms(j):
            st = V_ST + 4 * (j & 1)
            r, hh = j >> 1, j & 1
            sel = S_SELHI if hh else S_SELLO
            for u in range(4):
                lo = VR(d) + 4 * (2 * u) + r
                hi = VR(d) + 4 * (2 * u + 1) + r
                a(f"v_perm_b32 v{st+u}, v{hi}, v{lo}, s{sel}")
        def pv(j):
            st = V_ST + 4 * (j & 1)
            a(f"v_mfma_f32_16x16x32_bf16 v[{V_O+4*j}:{V_O+4*j+3}], v[{st}:{st+3}], v[{V_PB}:{V_PB+3}], v[{V_O+4*j}:{V_O+4*j+3}]")
        perms(0); perms(1)
        for j in range(8):
            if j == 7: a("s_nop 0")
            pv(j)
            if j + 2 < 8: perms(j + 2)
        issueV(d)
        advance()
    a(f"s_sub_u32 s{S_IT}, s{S_IT}, 1")
    a(f"s_cmp_lg_u32 s{S_IT}, 0")
    a("s_cbranch_scc1 L_sloop")
    a("s_nop 7")
    a(f"s_cmp_eq_u32 s{S_SEG}, 1")
    a(f"s_cselect_b32 s4, {L_SPB - L_SPA}, 0")
    a(f"s_cselect_b32 s5, {L_MLB - L_MLA}, 0")
    a(f"v_add_u32 v{T}, s4, v{V_P}")
    a(f"v_add_u32 v{T+1}, s5, v{V_ML}")
    a(f"s_mov_b64 exec, s[{S_M4}:{S_M4+1}]")
    for j in range(8):
        a(f"ds_write_b128 v{T}, v[{V_O+4*j}:{V_O+4*j+3}] offset:{L_SPA + 64*j}")
    a(f"ds_write_b32 v{T+1}, v{V_L} offset:{L_MLA}")
    a(f"ds_write_b32 v{T+1}, v{V_M} offset:{L_MLA + 16}")
    a("s_mov_b64 exec, -1")
    a("s_waitcnt lgkmcnt(0)")
    a(f"s_cmp_eq_u32 s{S_SEG}, 0")
    a("s_cbranch_scc0 L_se1")
    stamp(2, SST)
    if flags: lds_wait(0, 86, V_ZERO)
    else: a("s_barrier")
    load_q(V_QB, L_QB)
    init_state()
    a(f"s_mov_b32 s{S_SEG}, 1")
    a(f"s_mov_b32 s{S_IT}, {TB // D}")
    a("s_waitcnt lgkmcnt(0)")
    a("s_branch L_sloop")
    a.label("L_se1")
    a(f"s_cmp_eq_u32 s{S_SEG}, 1")
    a("s_cbranch_scc0 L_se2")
    stamp(3, SST)
    if flags:
        a(f"s_lshl_b32 s4, s3, 2")
        a(f"v_mov_b32 v86, s4")
        lds_set(8, V_ONE, 86)
    else: a("s_barrier")
    load_q(V_QA, L_QA)
    for j in range(8):
        a(f"ds_read_b128 v[{V_O+4*j}:{V_O+4*j+3}], v{V_P} offset:{L_SPA + 64*j}")
    a(f"ds_read_b32 v{V_L}, v{V_ML} offset:{L_MLA}")
    a(f"ds_read_b32 v{V_M}, v{V_ML} offset:{L_MLA + 16}")
    a(f"s_mov_b32 s{S_SEG}, 2")
    a(f"s_mov_b32 s{S_IT}, {(TA - N0) // D}")
    a("s_waitcnt lgkmcnt(0)")
    a(f"v_mul_f32 v{V_MLG}, s{S_L2E}, v{V_M}")
    a("s_branch L_sloop")
    a.label("L_se2")
    if diag:
        a("s_memtime s[82:83]")
        a("s_waitcnt lgkmcnt(0)")
        a("s_sub_u32 s82, s82, s80")
        a("s_memrealtime s[74:75]")
        a("s_waitcnt lgkmcnt(0)")
        a("s_sub_u32 s74, s74, s72")
        a(f"v_mov_b32 v{SST+2}, s82")
        a(f"v_mov_b32 v{SST+3}, s74")
        a("s_lshl_b32 s76, s2, 2")
        a("s_add_u32 s76, s76, s3")
        a("s_lshl_b32 s76, s76, 6")
        a(f"s_add_u32 s76, s76, {DIAG + 5*4}")
        a(f"v_mov_b32 v{SST+4}, s76")
        a("s_mov_b64 exec, 1")
        a(f"global_store_dwordx2 v{SST+4}, v[{SST+2}:{SST+3}], s[{P_WS}:{P_WS+1}]")
        a("s_mov_b64 exec, -1")
    if itstamp:
        a("s_lshl_b32 s76, s2, 1")
        a("s_add_u32 s76, s76, s3")
        a("s_lshl_b32 s76, s76, 8")
        a(f"s_add_u32 s76, s76, {DIAG + 0x10000}")
        a(f"v_lshl_add_u32 v248, v0, 2, s76")
        a(f"global_store_dword v248, v249, s[{P_WS}:{P_WS+1}]")
    stamp(4, SST)
    a("s_barrier")
    a("s_waitcnt vmcnt(0)")
    a("s_endpgm")

    H_WS, H_W, H_X = 8, 12, 16
    H_T = 20
    H_G1, H_G2, H_G3 = 22, 24, 26
    H_SELLO, H_SELHI, H_L2E = 28, 29, 30
    H_SO = 31
    H_CNT = 32
    H_h, H_b = 34, 35
    H_dh, H_cg, H_i2 = 36, 37, 38
    H_MHI = 39
    H_TB = 84
    H_ST = 88
    VC, VG = 3, 2
    V_L16 = 4
    V_WOFF = 5
    VT = 6
    VX = 8
    V_TV = 16
    V_PERM = 17
    V_GS = 18
    V_B512 = 19
    V_MR = 20
    V_MM = 21
    V_C80 = 1
    HST = 22
    VW = 24
    VST = 152
    VD = 160
    VWQ = 192
    ho = hoflags; sf = stflags
    fl_qa = fl_qa or ho; fl_qbc = fl_qbc or ho; fl_qbg = fl_qbg or ho; fl_st2a = fl_st2a or ho; fl_st2b = fl_st2b or ho; fl_fin = fl_fin or ho
    sf_qa = sf_qa or sf; sf_qbp = sf_qbp or sf; sf_qbf = sf_qbf or sf; sf_gp = sf_gp or sf; sf_oa = sf_oa or sf; sf_y = sf_y or sf

    def srd(dst, p, size):
        a(f"s_mov_b32 s{dst}, s{p}")
        a(f"s_and_b32 s{dst+1}, s{p+1}, 0xffff")
        a(f"s_mov_b32 s{dst+2}, {size}")
        a(f"s_mov_b32 s{dst+3}, 0x20000")

    def check(lab, quads=(), fulltags=(), sleep=0):
        acc, accf = VST, VST + 1
        done = a.uniq("L_ok")
        first = True
        for q in quads:
            for i in range(4):
                if first: a(f"v_xor_b32 v{acc}, s{H_TB+i}, v{q+i}"); first = False
                else: a(f"v_bitop3_b32 v{acc}, v{acc}, v{q+i}, s{H_TB+i} bitop3:0xf6")
        if quads: a(f"v_and_b32 v{acc}, 0xff, v{acc}")
        for r in fulltags:
            if first: a(f"v_xor_b32 v{acc}, s{H_T}, v{r}"); first = False
            else: a(f"v_bitop3_b32 v{acc}, v{acc}, v{r}, s{H_T} bitop3:0xf6")
        a(f"v_cmp_ne_u32 vcc, 0, v{acc}")
        a(f"s_cbranch_vccz {done}")
        a(f"s_sub_u32 s{H_CNT}, s{H_CNT}, 1")
        a(f"s_cmp_eq_u32 s{H_CNT}, 0")
        a(f"s_cbranch_scc1 {done}")
        if sleep: a(f"s_sleep {sleep}")
        a(f"s_branch {lab}")
        a.label(done)

    def tag4(dst, src=None):
        src = [dst + i for i in range(4)] if src is None else src
        for i in range(4):
            a(f"v_perm_b32 v{dst+i}, v{src[i]}, v{V_TV}, s{H_ST+i}")

    def untag(quads):
        for q in quads:
            for i in range(4):
                a(f"v_perm_b32 v{q+i}, v{q+i}, v{V_C80}, s{H_ST}")

    def wt_tile(wbase, areg, first):
        def perms(j):
            st = VST + 4 * (j & 1)
            r, hh = j >> 1, j & 1
            sel = H_SELHI if hh else H_SELLO
            for u in range(4):
                lo = wbase + 4 * (2 * u) + r
                hi = wbase + 4 * (2 * u + 1) + r
                a(f"v_perm_b32 v{st+u}, v{hi}, v{lo}, s{sel}")
        def mm(j):
            st = VST + 4 * (j & 1)
            c = "0" if first else f"v[{VD+4*j}:{VD+4*j+3}]"
            a(f"v_mfma_f32_16x16x32_bf16 v[{VD+4*j}:{VD+4*j+3}], v[{areg}:{areg+3}], v[{st}:{st+3}], {c}")
        perms(0); perms(1)
        for j in range(8):
            if j == 7: a("s_nop 0")
            mm(j)
            if j + 2 < 8: perms(j + 2)

    def select_batch(dst):
        for j in range(8): a(f"v_cndmask_b32 v{dst+j}, v{VD+4*j}, v{VD+4*j+1}, s[{H_G1}:{H_G1+1}]")
        for j in range(8): a(f"v_cndmask_b32 v{dst+j}, v{dst+j}, v{VD+4*j+2}, s[{H_G2}:{H_G2+1}]")
        for j in range(8): a(f"v_cndmask_b32 v{dst+j}, v{dst+j}, v{VD+4*j+3}, s[{H_G3}:{H_G3+1}]")

    def xsum(regs, tmp, sw):
        for i, r in enumerate(regs): a(f"v_mov_b32 v{tmp+i}, v{r}")
        if len(regs) < 3: a("s_nop 1")
        for i, r in enumerate(regs): a(f"v_permlane{sw}_swap_b32 v{r}, v{tmp+i}")
        for i, r in enumerate(regs): a(f"v_add_f32 v{r}, v{r}, v{tmp+i}")

    def read_tag():
        a(f"v_readfirstlane_b32 s{H_T}, v{VT+1}")
        a("s_nop 3")
        a(f"s_add_u32 s{H_T}, s{H_T}, {TAGINC:#x}")
        for i in range(4): a(f"s_bfe_u32 s{H_TB+i}, s{H_T}, {0x80000 + 8*i:#x}")
        a(f"v_mov_b32 v{V_TV}, s{H_T}")

    def qproj_loads(pw):
        srd(H_W, pw, 4 << 20)
        a(f"s_lshr_b32 s6, s2, 5")
        a(f"v_and_b32 v{VT}, 3, v{VC}")
        a(f"v_lshlrev_b32 v{VT}, 10, v{VT}")
        a(f"v_lshl_add_u32 v{VT}, v{VG}, 4, v{VT}")
        a(f"v_lshlrev_b32 v{V_WOFF}, 16, v{VG}")
        a(f"v_lshl_add_u32 v{V_WOFF}, v{VC}, 4, v{V_WOFF}")
        a(f"s_lshl_b32 s7, s6, 7")
        a(f"s_lshl_b32 s{H_SO}, s6, 19")
        a(f"s_lshl_b32 s4, s{H_h}, 8")
        a(f"s_add_u32 s{H_SO}, s{H_SO}, s4")
        a(f"buffer_load_dwordx4 v[{VX}:{VX+3}], v{VT}, s[{H_X}:{H_X+3}], s7 offen nt")
        a(f"buffer_load_dwordx4 v[{VX+4}:{VX+7}], v{VT}, s[{H_X}:{H_X+3}], s7 offen offset:64 nt")
        for tau in range(2):
            for t in range(8):
                r = VW + 32 * tau + 4 * t
                a(f"buffer_load_dwordx4 v[{r}:{r+3}], v{V_WOFF}, s[{H_W}:{H_W+3}], s{H_SO} offen nt")
                if not (tau == 1 and t == 7):
                    step = 8192 if t < 7 else (32 - 7) * 8192
                    a(f"s_add_u32 s{H_SO}, s{H_SO}, {step}")
    def qsplit_loads(hw):
        a("s_cmp_lt_u32 s2, 128")
        a(f"s_cselect_b32 s4, s{P_AWQ}, s{P_BWQ}")
        a(f"s_cselect_b32 s5, s{P_AWQ+1}, s{P_BWQ+1}")
        srd(H_W, 4, 4 << 20)
        a("s_bfe_u32 s6, s2, 0x20005")
        a("s_lshl_b32 s6, s6, 1")
        if hw: a("s_add_u32 s6, s6, 1")
        a(f"v_and_b32 v{VT}, 3, v{VC}")
        a(f"v_lshlrev_b32 v{VT}, 10, v{VT}")
        a(f"v_lshl_add_u32 v{VT}, v{VG}, 4, v{VT}")
        a(f"v_lshlrev_b32 v{V_WOFF}, 16, v{VG}")
        a(f"v_lshl_add_u32 v{V_WOFF}, v{VC}, 4, v{V_WOFF}")
        a(f"s_lshl_b32 s7, s6, 7")
        a(f"s_lshl_b32 s{H_SO}, s6, 19")
        a(f"s_lshl_b32 s4, s{H_h}, 8")
        a(f"s_add_u32 s{H_SO}, s{H_SO}, s4")
        a(f"buffer_load_dwordx4 v[{VX}:{VX+3}], v{VT}, s[{H_X}:{H_X+3}], s7 offen nt")
        a(f"buffer_load_dwordx4 v[{VX+4}:{VX+7}], v{VT}, s[{H_X}:{H_X+3}], s7 offen offset:64 nt")
        for tau in range(2):
            for t in range(8):
                r = VW + 32 * tau + 4 * t
                a(f"buffer_load_dwordx4 v[{r}:{r+3}], v{V_WOFF}, s[{H_W}:{H_W+3}], s{H_SO} offen nt")
                if not (tau == 1 and t == 7):
                    step = 8192 if t < 7 else (32 - 7) * 8192
                    a(f"s_add_u32 s{H_SO}, s{H_SO}, {step}")
    def qsplit_compute():
        a("s_waitcnt vmcnt(8)")
        wt_tile(VW, VX, True)
        a("s_waitcnt vmcnt(0)")
        wt_tile(VW + 32, VX + 4, False)
        read_tag()
        select_batch(VW)
    def qproj_rest(dst, first, publish=True):
        a(f"s_lshl_b32 s7, s{H_h}, 3")
        a("s_add_u32 s7, s7, s6")
        a("s_lshl_b32 s7, s7, 11")
        if dst: a(f"s_add_u32 s7, s7, {dst}")
        a("s_waitcnt vmcnt(8)")
        wt_tile(VW, VX, True)
        a("s_waitcnt vmcnt(0)")
        wt_tile(VW + 32, VX + 4, False)
        if first: read_tag()
        else: a("s_nop 7")
        select_batch(VW)
        for u in range(2):
            tag4(VW + 4*u)
            if publish:
                a(f"buffer_store_dwordx4 v[{VW+4*u}:{VW+4*u+3}], v{V_B512}, s[{H_WS}:{H_WS+3}], s7 offen offset:{u*256} {sf_qa if dst == QA_G else sf_qbp}")
    def qproj_publish():
        for u in range(2):
            a(f"buffer_store_dwordx4 v[{VW+4*u}:{VW+4*u+3}], v{V_B512}, s[{H_WS}:{H_WS+3}], s7 offen offset:{u*256} {sf_qbp}")

    def merge(q0, sp, ml, r0):
        for w in range(W):
            a(f"ds_read_b128 v[{q0+8+4*w}:{q0+8+4*w+3}], v{V_MR} offset:{sp + w*2048 + r0*512}")
            a(f"ds_read_b128 v[{q0+16+4*w}:{q0+16+4*w+3}], v{V_MM} offset:{ml + w*128 + r0*32}")
            a(f"ds_read_b32 v{q0+24+w}, v{V_MM} offset:{ml + w*128 + r0*32 + 16}")
        a("s_waitcnt lgkmcnt(0)")
        M = q0 + 4; F = q0 + 26; LL = q0 + 6
        a(f"v_max_f32 v{M}, v{q0+24}, v{q0+25}")
        a(f"v_max_f32 v{M}, {NEG_BIG:#x}, v{M}")
        for w in range(W): a(f"v_sub_f32 v{F+w}, v{q0+24+w}, v{M}")
        for w in range(W): a(f"v_mul_f32 v{F+w}, s{H_L2E}, v{F+w}")
        for w in range(W): a(f"v_exp_f32 v{F+w}, v{F+w}")
        for w in range(W):
            l0 = q0 + 16 + 4 * w
            a(f"v_add_f32 v{l0}, v{l0}, v{l0+1}")
            a(f"v_add_f32 v{l0+2}, v{l0+2}, v{l0+3}")
        for i in range(4): a(f"v_mul_f32 v{q0+i}, v{F}, v{q0+8+i}")
        for i in range(4): a(f"v_fmac_f32 v{q0+i}, v{F+1}, v{q0+12+i}")
        tag4(q0)
    def merge_ml(q0):
        M = q0 + 4; F = q0 + 26; LL = q0 + 6
        for w in range(W):
            l0 = q0 + 16 + 4 * w
            a(f"v_add_f32 v{l0}, v{l0}, v{l0+2}")
        a(f"v_mov_b32 v{M+1}, s{H_T}")
        a(f"v_mul_f32 v{LL}, v{F}, v{q0+16}")
        a(f"v_mov_b32 v{M+3}, s{H_T}")
        a(f"v_fmac_f32 v{LL}, v{F+1}, v{q0+20}")

    def perm_addr(headstep):
        a(f"v_bfe_u32 v{VST}, v0, 1, 1")
        a(f"v_lshlrev_b32 v{V_PERM}, 8, v{VST}")
        a(f"v_bfe_u32 v{VST}, v0, 2, 3")
        a(f"v_lshl_add_u32 v{V_PERM}, v{VST}, 5, v{V_PERM}")
        a(f"v_and_b32 v{VST}, 1, v0")
        a(f"v_lshl_add_u32 v{V_PERM}, v{VST}, 4, v{V_PERM}")
        a(f"v_lshrrev_b32 v{VST}, 5, v0")
        a(f"v_and_b32 v{VST+1}, 31, v0")
        a(f"v_lshlrev_b32 v{V_MR}, 4, v{VST+1}")
        if headstep:
            a(f"v_mul_u32_u24 v{VST+1}, {headstep}, v{VST}")
            a(f"v_add_u32 v{V_PERM}, v{V_PERM}, v{VST+1}")
            a(f"v_lshl_add_u32 v{V_MR}, v{VST}, 9, v{V_MR}")
            a(f"v_lshlrev_b32 v{V_MM}, 5, v{VST}")
        else:
            a(f"v_mov_b32 v{V_MM}, 0")

    def wpre_loads(pw, stage):
        srd(H_W, pw, 4 << 20)
        a(f"v_lshlrev_b32 v{V_WOFF}, 10, v{VG}")
        a(f"v_lshl_add_u32 v{V_WOFF}, v{VC}, 4, v{V_WOFF}")
        a(f"s_lshl_b32 s92, s{H_h}, 17")
        a(f"s_lshl_b32 s93, s{H_dh}, 16")
        a("s_add_u32 s92, s92, s93")
        a(f"s_lshl_b32 s93, s{H_cg}, 8")
        a("s_add_u32 s92, s92, s93")
        for tau in range(2):
            for t in range(8):
                r = stage + 32 * tau + 4 * t
                a(f"s_add_u32 s{H_SO}, s92, {(8*t + 4*tau)*1024}")
                a(f"buffer_load_dwordx4 v[{r}:{r+3}], v{V_WOFF}, s[{H_W}:{H_W+3}], s{H_SO} offen nt")
    def wpre_perms(stage, waits=True):
        for tau in range(2):
            if waits: a(f"s_waitcnt vmcnt({8 * (1 - tau)})")
            for j in range(8):
                r, hh = j >> 1, j & 1
                sel = H_SELHI if hh else H_SELLO
                for u in range(4):
                    lo = stage + 32 * tau + 4 * (2 * u) + r
                    hi = stage + 32 * tau + 4 * (2 * u + 1) + r
                    a(f"v_perm_b32 v{VWQ + 32*tau + 4*j + u}, v{hi}, v{lo}, s{sel}")
    def wpre(pw):
        wpre_loads(pw, VW)
        wpre_perms(VW)

    VGP, VGM = VX, VX + 1
    def st2_addr(NP, pbase, mlbase):
        a(f"v_mul_u32_u24 v{VGP}, {32*NP*512}, v{VG}")
        a(f"v_lshl_add_u32 v{VGP}, v{VC}, 4, v{VGP}")
        a(f"v_lshlrev_b32 v{VGM}, 13, v{VG}")
        a(f"v_and_b32 v{VST}, {NP-1}, v{VC}")
        a(f"v_lshl_add_u32 v{VGM}, v{VST}, 7, v{VGM}")
        a(f"s_mul_i32 s42, s{H_h}, {NP*512}")
        a(f"s_lshl_b32 s5, s{H_dh}, 8")
        a("s_add_u32 s42, s42, s5")
        a(f"s_add_u32 s42, s42, {pbase}")
        if NP == 2:
            a(f"s_lshl_b32 s43, s{H_h}, 8")
        else:
            a(f"s_lshr_b32 s43, s{H_h}, 2")
            a("s_lshl_b32 s43, s43, 10")
            a(f"s_and_b32 s5, s{H_h}, 3")
            a("s_lshl_b32 s5, s5, 4")
            a("s_add_u32 s43, s43, s5")
        a(f"s_add_u32 s43, s43, {mlbase}")

    def st2(NP, ob, name, sleep, light):
        Y = VW
        ML = VW + 4 * NP
        ho = fl_st2a if NP == 2 else fl_st2b
        if light:
            lab = f"L_{name}_lp"
            a.label(lab)
            a(f"buffer_load_dwordx4 v[{ML}:{ML+3}], v{VGM}, s[{H_WS}:{H_WS+3}], s43 offen {ho}")
            a("s_waitcnt vmcnt(0)")
            check(lab, fulltags=[ML+1, ML+3], sleep=sleep)
        lab = f"L_{name}_g"
        a.label(lab)
        if not light:
            a(f"buffer_load_dwordx4 v[{ML}:{ML+3}], v{VGM}, s[{H_WS}:{H_WS+3}], s43 offen {ho}")
        for p in range(NP):
            a(f"buffer_load_dwordx4 v[{Y+4*p}:{Y+4*p+3}], v{VGP}, s[{H_WS}:{H_WS+3}], s42 offen offset:{p*512} {ho}")
        a("s_waitcnt vmcnt(0)")
        check(lab, quads=[Y + 4*p for p in range(NP)], fulltags=([] if light else [ML+1, ML+3]), sleep=sleep)
        UNTAG_LATER = [Y + 4*p for p in range(NP)]
        MM, F, LS = VST + 2, VST + 3, VST + 4
        steps = ["quad_perm:[1,0,3,2]"] + (["quad_perm:[2,3,0,1]", "row_half_mirror"] if NP == 8 else [])
        a(f"v_mov_b32 v{MM}, v{ML}")
        pend = [q + i for q in UNTAG_LATER for i in range(4)]
        def fill(n):
            k = 0
            while k < n and pend:
                r = pend.pop(0)
                a(f"v_perm_b32 v{r}, v{r}, v{V_C80}, s{H_ST}"); k += 1
            if k < n: a(f"s_nop {n - k - 1}")
        for st in steps:
            fill(2)
            a(f"v_max_f32_dpp v{MM}, v{MM}, v{MM} {st} row_mask:0xf bank_mask:0xf")
        a(f"v_sub_f32 v{F}, v{ML}, v{MM}")
        a(f"v_mul_f32 v{F}, s{H_L2E}, v{F}")
        a(f"v_exp_f32 v{F}, v{F}")
        a(f"v_lshlrev_b32 v{VT}, 3, v0")
        a(f"v_mul_f32 v{LS}, v{F}, v{ML+2}")
        for st in steps:
            fill(2)
            a(f"v_add_f32_dpp v{LS}, v{LS}, v{LS} {st} row_mask:0xf bank_mask:0xf")
        a(f"v_rcp_f32 v{LS}, v{LS}")
        fill(len(pend)) if pend else None
        a(f"v_mul_f32 v{F}, v{V_GS}, v{F}")
        a(f"v_and_b32 v{VT+1}, 3, v{VC}")
        a(f"v_mul_f32 v{F}, v{F}, v{LS}")
        a(f"v_lshlrev_b32 v{VT+1}, 7, v{VT+1}")
        a(f"v_lshl_add_u32 v{VT+1}, v{VG}, 4, v{VT+1}")
        O = VST + 4
        for i in range(4):
            a(f"v_mul_f32_dpp v{O+i}, v{F}, v{Y+i} row_newbcast:0 row_mask:0xf bank_mask:0xf")
        for p in range(1, NP):
            for i in range(4):
                a(f"v_fmac_f32_dpp v{O+i}, v{F}, v{Y+4*p+i} row_newbcast:{p} row_mask:0xf bank_mask:0xf")
        a(f"v_cvt_pk_bf16_f32 v{O}, v{O}, v{O+1}")
        a(f"v_cvt_pk_bf16_f32 v{O+1}, v{O+2}, v{O+3}")
        a(f"ds_write_b64 v{VT}, v[{O}:{O+1}] offset:{ob}")
        a("s_waitcnt lgkmcnt(0)")
        for tau in range(2):
            a(f"ds_read_b128 v[{VX+4*tau}:{VX+4*tau+3}], v{VT+1} offset:{ob + 64*tau}")
        a("s_waitcnt lgkmcnt(0)")
        for tau in range(2):
            for j in range(8):
                c = "0" if tau == 0 else f"v[{VD+4*j}:{VD+4*j+3}]"
                wr = VWQ + 32 * tau + 4 * j
                a(f"v_mfma_f32_16x16x32_bf16 v[{VD+4*j}:{VD+4*j+3}], v[{VX+4*tau}:{VX+4*tau+3}], v[{wr}:{wr+3}], {c}")

    NB = 4 + (1 if b0 else 0) + (1 if b0b else 0) + 1 + (1 if bm is not None else 0) + (1 if split else 0)
    if flags: NB -= 2 + (1 if bm is not None else 0)
    a.label("L_H")
    a("; ---------------- H waves ----------------")
    if noH:
        if flags:
            for _ in range(NB - 2): a("s_barrier")
            a("v_mov_b32 v10, 0")
            a("v_mov_b32 v11, 1")
            a(f"ds_write_b32 v10, v11 offset:{L_F}")
            a("s_waitcnt lgkmcnt(0)")
            a("s_barrier"); a("s_barrier")
        else:
            for _ in range(NB): a("s_barrier")
        a("s_branch L_end")
    srd(H_WS, P_WS, WS_USED)
    srd(H_X, P_X, 4096)
    a(f"v_mov_b32 v{VT}, {EPOCH:#x}")
    a(f"buffer_load_dword v{VT+1}, v{VT}, s[{H_WS}:{H_WS+3}], 0 offen sc1")
    a(f"s_and_b32 s{H_h}, s2, 31")
    a(f"s_mov_b32 s{H_SELLO}, {SEL_LO:#x}")
    a(f"s_mov_b32 s{H_SELHI}, {SEL_HI:#x}")
    def h_consts():
        a(f"s_mov_b32 s{H_G1}, 0xffff0000")
        a(f"s_mov_b32 s{H_G1+1}, 0")
        a(f"s_mov_b32 s{H_G2}, 0")
        a(f"s_mov_b32 s{H_G2+1}, 0x0000ffff")
        a(f"s_mov_b32 s{H_G3}, 0")
        a(f"s_mov_b32 s{H_G3+1}, 0xffff0000")
        a(f"s_mov_b32 s{H_L2E}, {LOG2E:#x}")
        a(f"s_mov_b32 s{H_MHI}, 0xffff0000")
        a(f"s_mov_b32 s{H_CNT}, {maxpoll}")
        for i in range(4): a(f"s_mov_b32 s{H_ST+i}, {0x07060500 + i:#x}")
        a(f"s_lshr_b32 s{H_b}, s2, 5")
        a(f"s_and_b32 s{H_dh}, s{H_b}, 1")
        a(f"s_and_b32 s{H_b}, s{H_b}, 3")
        a(f"s_lshr_b32 s{H_cg}, s2, 6")
        a(f"s_lshl_b32 s{H_i2}, s{H_h}, 1")
        a(f"s_add_u32 s{H_i2}, s{H_i2}, s{H_dh}")
        a(f"v_lshlrev_b32 v{V_L16}, 4, v0")
        a(f"v_mov_b32 v{V_C80}, 0x80808080")
        a(f"v_lshlrev_b32 v{V_B512}, 9, v{VG}")
        a(f"v_lshl_add_u32 v{V_B512}, v{VC}, 4, v{V_B512}")
    a(f"s_cmp_eq_u32 s3, {W}")
    a("s_cbranch_scc0 L_H1")

    VQB = VW + 16
    if split:
        qsplit_loads(0)
        if b0: a("s_barrier")
        stamp(0, HST, start=True)
        h_consts()
        qsplit_compute()
        a(f"v_lshlrev_b32 v{VT}, 5, v0")
        a("s_barrier")
        a(f"ds_read_b128 v[{VW+8}:{VW+11}], v{VT} offset:{L_QX}")
        a(f"ds_read_b128 v[{VW+12}:{VW+15}], v{VT} offset:{L_QX + 16}")
        a(f"s_lshl_b32 s95, s{H_h}, 2")
        a("s_bfe_u32 s5, s2, 0x20005")
        a("s_add_u32 s95, s95, s5")
        a("s_lshl_b32 s95, s95, 11")
        a(f"s_mov_b32 s4, {QA_G}")
        a("s_cmp_lt_u32 s2, 128")
        a(f"s_cselect_b32 s5, s4, {QBP_G}")
        a("s_add_u32 s95, s95, s5")
        a("s_waitcnt lgkmcnt(0)")
        for i in range(8): a(f"v_add_f32 v{VW+i}, v{VW+i}, v{VW+8+i}")
        for u in range(2): tag4(VQB + 4*u, [VW + 4*u + i for i in range(4)])
        a("s_cmp_lt_u32 s2, 128")
        a("s_cbranch_scc0 L_noqapub")
        for u in range(2):
            a(f"buffer_store_dwordx4 v[{VQB+4*u}:{VQB+4*u+3}], v{V_B512}, s[{H_WS}:{H_WS+3}], s95 offen offset:{u*256} {sf_qa}")
        a.label("L_noqapub")
        stamp(1, HST)
        a(f"v_lshrrev_b32 v{VT}, 5, v0")
        a(f"v_lshlrev_b32 v{VT}, 11, v{VT}")
        a(f"v_and_b32 v{VT+1}, 31, v0")
        a(f"v_lshl_add_u32 v{VT}, v{VT+1}, 4, v{VT}")
        a(f"s_lshl_b32 s4, s{H_h}, 13")
        a(f"s_lshl_b32 s5, s{H_b}, 9")
        a("s_add_u32 s4, s4, s5")
        a(f"s_add_u32 s4, s4, {QA_G}")
        a("s_add_u32 s5, s4, 4096")
        NQ = 2
    else:
        qproj_loads(P_AWQ)
        if b0 and b0pos == 0: a("s_barrier")
        stamp(0, HST, start=True)
        h_consts()
        if b0 and b0pos == 1:
            a("s_waitcnt vmcnt(16)")
            a("s_barrier")
        if b0 and b0pos == 2:
            a("s_waitcnt vmcnt(8)")
            a("s_barrier")
        qproj_rest(QA_G, True)
        stamp(1, HST)
        a(f"v_lshrrev_b32 v{VT}, 5, v0")
        a(f"v_lshlrev_b32 v{VT}, 11, v{VT}")
        a(f"v_and_b32 v{VT+1}, 31, v0")
        a(f"v_lshl_add_u32 v{VT}, v{VT+1}, 4, v{VT}")
        a(f"s_lshl_b32 s4, s{H_h}, 14")
        a(f"s_lshl_b32 s5, s{H_b}, 9")
        a("s_add_u32 s4, s4, s5")
        if QA_G: a(f"s_add_u32 s4, s4, {QA_G}")
        a("s_add_u32 s5, s4, 4096")
        a("s_add_u32 s6, s4, 8192")
        a("s_add_u32 s7, s4, 12288")
        NQ = 4
    if qaack: a("s_waitcnt vmcnt(0)")
    stamp(9, HST)
    def qa_loads():
        for k in range(NQ):
            a(f"buffer_load_dwordx4 v[{VW+4*k}:{VW+4*k+3}], v{VT}, s[{H_WS}:{H_WS+3}], s{4+k} offen {fl_qa}")
    EARLY = early and "wpre" not in skip
    if b0bpos == 0:
        qa_loads()
        if EARLY: wpre_loads(P_AWO, VW + 32)
        if b0b: a("s_barrier")
        if EARLY: a("s_waitcnt vmcnt(16)")
        else: a("s_waitcnt vmcnt(0)")
        a("s_branch L_qa_first")
        a.label("L_qa_retry")
        qa_loads()
        a("s_waitcnt vmcnt(0)")
        a.label("L_qa_first")
        check("L_qa_retry", quads=[VW + 4*k for k in range(NQ)], sleep=qsleep)
    else:
        a.label("L_qa_retry")
        qa_loads()
        a("s_waitcnt vmcnt(0)")
        check("L_qa_retry", quads=[VW + 4*k for k in range(NQ)], sleep=qsleep)
        if b0b and b0bpos in (1, 3): a("s_barrier")
        if EARLY and b0bpos != 3: wpre_loads(P_AWO, VW + 32)
        if b0b and b0bpos == 2: a("s_barrier")
    if diag:
        a(f"s_sub_u32 s72, {maxpoll}, s{H_CNT}")
        stamp(10, HST, start=True)
    untag([VW + 4*k for k in range(NQ)])
    if NQ == 4:
        for i in range(4):
            a(f"v_add_f32 v{VW+i}, v{VW+i}, v{VW+4+i}")
            a(f"v_add_f32 v{VW+8+i}, v{VW+8+i}, v{VW+12+i}")
        for i in range(4): a(f"v_add_f32 v{VW+i}, v{VW+i}, v{VW+8+i}")
    else:
        for i in range(4): a(f"v_add_f32 v{VW+i}, v{VW+i}, v{VW+4+i}")
    xsum([VW + i for i in range(4)], VW + 4, "32")
    a(f"v_lshlrev_b32 v{VT}, 4, v{VC}")
    a(f"v_bfe_u32 v{VT+1}, v0, 4, 1")
    a(f"v_lshl_add_u32 v{VT}, v{VT+1}, 3, v{VT}")
    a(f"v_cvt_pk_bf16_f32 v{VW}, v{VW}, v{VW+1}")
    a(f"v_cvt_pk_bf16_f32 v{VW+1}, v{VW+2}, v{VW+3}")
    a(f"ds_write_b64 v{VT}, v[{VW}:{VW+1}] offset:{L_QA}")
    a("s_waitcnt lgkmcnt(0)")
    stamp(2, HST)
    a("s_barrier")
    if split:
        a("s_cmp_lt_u32 s2, 128")
        a("s_cbranch_scc1 L_noqbpub")
        for u in range(2):
            a(f"buffer_store_dwordx4 v[{VQB+4*u}:{VQB+4*u+3}], v{V_B512}, s[{H_WS}:{H_WS+3}], s95 offen offset:{u*256} {sf_qbp}")
        a.label("L_noqbpub")
        if EARLY: a("s_waitcnt vmcnt(0)")
    if EARLY and b0bpos == 3: wpre_loads(P_AWO, VW + 32)
    if EARLY and split: wpre_perms(VW + 32, waits=False)
    elif EARLY: wpre_perms(VW + 32)
    elif "wpre" not in skip: wpre(P_AWO)
    perm_addr(0)
    st2_addr(2, OA_G, OA_ML)
    a("s_lshr_b32 s5, s2, 7")
    a(f"s_lshl_b32 s6, s{H_b}, 5")
    a(f"s_add_u32 s6, s6, s{H_h}")
    a("s_lshl_b32 s6, s6, 1")
    a("s_add_u32 s6, s6, s5")
    a("s_lshl_b32 s40, s6, 9")
    a(f"s_add_u32 s40, s40, {OA_G}")
    a("s_lshl_b32 s41, s6, 7")
    a(f"s_add_u32 s41, s41, {OA_ML}")
    stamp(3, HST)
    if not flags:
        if bm is not None: a("s_barrier")
        a("s_barrier")
        a(f"v_lshlrev_b32 v{VT}, 3, v{VG}")
        a(f"ds_read_b32 v{V_GS}, v{VT} offset:{L_G}")
        a("s_waitcnt lgkmcnt(0)")
        a("s_barrier")
        a("s_barrier")
    else:
        a("s_barrier")
        a(f"v_lshlrev_b32 v{VT}, 3, v{VG}")
        a(f"ds_read_b32 v{V_GS}, v{VT} offset:{L_G}")
        a("s_waitcnt lgkmcnt(0)")
    a("s_barrier")
    stamp(4, HST)
    if "tail" in skip: a("s_branch L_hend")
    merge(VW, L_SPA, L_MLA, 0)
    a("s_mov_b32 exec_hi, 0")
    a(f"buffer_store_dwordx4 v[{VW}:{VW+3}], v{V_PERM}, s[{H_WS}:{H_WS+3}], s40 offen {sf_oa}")
    a("s_mov_b64 exec, -1")
    merge_ml(VW)
    a("s_mov_b64 exec, 0xff")
    a(f"buffer_store_dwordx4 v[{VW+4}:{VW+7}], v{V_L16}, s[{H_WS}:{H_WS+3}], s41 offen {sf_oa}")
    a("s_mov_b64 exec, -1")
    stamp(5, HST)
    st2(2, L_OBA, "st2a", tailsleep, False)
    a(f"s_lshl_b32 s4, s{H_cg}, 6")
    a(f"s_add_u32 s4, s4, s{H_i2}")
    a("s_lshl_b32 s4, s4, 11")
    a(f"s_add_u32 s4, s4, {Y_G}")
    a(f"v_lshlrev_b32 v{VT}, 5, v0")
    stamp(6, HST)
    if not nob5: a("s_barrier")
    a(f"ds_read_b128 v[{VW+8}:{VW+11}], v{VT} offset:{L_YB}")
    a(f"ds_read_b128 v[{VW+12}:{VW+15}], v{VT} offset:{L_YB + 16}")
    a("s_nop 3")
    select_batch(VW)
    a("s_waitcnt lgkmcnt(0)")
    for u in range(2):
        for i in range(4): a(f"v_add_f32 v{VW+4*u+i}, v{VW+4*u+i}, v{VW+8+4*u+i}")
        tag4(VW + 4*u)
        a(f"buffer_store_dwordx4 v[{VW+4*u}:{VW+4*u+3}], v{V_B512}, s[{H_WS}:{H_WS+3}], s4 offen offset:{u*256} {sf_y}")
    stamp(7, HST)
    a(f"v_lshrrev_b32 v{VT}, 1, v0")
    a(f"v_lshlrev_b32 v{VT}, 11, v{VT}")
    a(f"v_and_b32 v{VT+1}, 1, v0")
    a(f"v_lshl_add_u32 v{VT}, v{VT+1}, 4, v{VT}")
    a("s_bfe_u32 s4, s2, 0x20004")
    a("s_lshl_b32 s4, s4, 17")
    a("s_lshr_b32 s5, s2, 6")
    a("s_lshl_b32 s5, s5, 9")
    a("s_add_u32 s4, s4, s5")
    a("s_bfe_u32 s5, s2, 0x10003")
    a("s_lshl_b32 s5, s5, 8")
    a("s_add_u32 s4, s4, s5")
    a("s_and_b32 s5, s2, 7")
    a("s_lshl_b32 s5, s5, 5")
    a("s_add_u32 s4, s4, s5")
    a(f"s_add_u32 s4, s4, {Y_G}")
    a("s_add_u32 s5, s4, 65536")
    Y = VW + 16
    a.label("L_fin")
    a(f"buffer_load_dwordx4 v[{Y}:{Y+3}], v{VT}, s[{H_WS}:{H_WS+3}], s4 offen {fl_fin}")
    a(f"buffer_load_dwordx4 v[{Y+4}:{Y+7}], v{VT}, s[{H_WS}:{H_WS+3}], s5 offen {fl_fin}")
    a("s_lshr_b32 s6, s2, 6")
    a("s_lshl_b32 s6, s6, 10")
    a("s_bfe_u32 s7, s2, 0x20004")
    a("s_lshl_b32 s7, s7, 8")
    a("s_add_u32 s6, s6, s7")
    a("s_and_b32 s7, s2, 7")
    a("s_lshl_b32 s7, s7, 5")
    a("s_add_u32 s6, s6, s7")
    a("s_bfe_u32 s7, s2, 0x10003")
    a("s_lshl_b32 s7, s7, 3")
    a("s_add_u32 s6, s6, s7")
    srd(H_W, P_OUT, 4096)
    a("s_waitcnt vmcnt(0)")
    check("L_fin", quads=[Y, Y + 4], sleep=tailsleep)
    untag([Y, Y + 4])
    for i in range(4): a(f"v_add_f32 v{Y+i}, v{Y+i}, v{Y+4+i}")
    for st in ("quad_perm:[2,3,0,1]", "row_ror:4", "row_ror:8"):
        for i in range(4): a(f"v_add_f32_dpp v{Y+i}, v{Y+i}, v{Y+i} {st} row_mask:0xf bank_mask:0xf")
    xsum([Y + i for i in range(4)], Y + 4, "16")
    xsum([Y + i for i in range(4)], Y + 4, "32")
    a(f"v_lshlrev_b32 v{VT}, 4, v{VT+1}")
    a(f"v_cvt_pk_bf16_f32 v{Y}, v{Y}, v{Y+1}")
    a(f"v_cvt_pk_bf16_f32 v{Y+1}, v{Y+2}, v{Y+3}")
    a("s_mov_b64 exec, 3")
    a(f"buffer_store_dwordx2 v[{Y}:{Y+1}], v{VT}, s[{H_W}:{H_W+3}], s6 offen {outflags}".rstrip())
    a("s_cmp_eq_u32 s2, 0")
    a("s_cbranch_scc0 L_noep")
    a("s_mov_b64 exec, 1")
    a(f"v_mov_b32 v{VT}, {EPOCH:#x}")
    a(f"buffer_store_dword v{V_TV}, v{VT}, s[{H_WS}:{H_WS+3}], 0 offen sc1")
    a.label("L_noep")
    a("s_mov_b64 exec, -1")
    stamp(8, HST)
    if lite:
        a("s_memrealtime s[74:75]")
        a("s_waitcnt lgkmcnt(0)")
        a(f"v_mov_b32 v{HST}, s72")
        a(f"v_mov_b32 v{HST+1}, s74")
        a("s_lshl_b32 s76, s2, 3")
        a(f"s_add_u32 s76, s76, {DIAG}")
        a(f"v_mov_b32 v{VT}, s76")
        a("s_mov_b64 exec, 1")
        a(f"global_store_dwordx2 v{VT}, v[{HST}:{HST+1}], s[{P_WS}:{P_WS+1}]")
        a("s_mov_b64 exec, -1")
    a("s_branch L_hend")

    a.label("L_H1")
    if touch:
        a(f"v_mov_b32 v{VX}, {Y_G + 0x70000:#x}")
        a(f"buffer_load_dword v{VX+1}, v{VX}, s[{H_WS}:{H_WS+3}], 0 offen nt")
    if split:
        qsplit_loads(1)
        if b0: a("s_barrier")
        stamp(0, HST, start=True)
        h_consts()
        qsplit_compute()
        a(f"v_lshlrev_b32 v{VT}, 5, v0")
        a(f"ds_write_b128 v{VT}, v[{VW}:{VW+3}] offset:{L_QX}")
        a(f"ds_write_b128 v{VT}, v[{VW+4}:{VW+7}] offset:{L_QX + 16}")
        a("s_waitcnt lgkmcnt(0)")
        a("s_barrier")
        if "wpre" not in skip: wpre_loads(P_BWO, VW + 32)
        if b0b: a("s_barrier")
        a("s_barrier")
        stamp(1, HST)
        if "wpre" not in skip:
            a("s_waitcnt vmcnt(0)")
            wpre_perms(VW + 32, waits=False)
    elif early == 2:
        assert b0b and b0bpos >= 1
        if b0: a("s_barrier")
        stamp(0, HST, start=True)
        h_consts()
        a("s_waitcnt vmcnt(0)")
        read_tag()
        a("s_barrier")
        if b0bpos == 3: a("s_barrier")
        qproj_loads(P_BWQ)
        wpre_loads(P_BWO, VW + 64)
        if b0bpos != 3: a("s_barrier")
        a(f"s_lshl_b32 s7, s{H_h}, 3")
        a("s_add_u32 s7, s7, s6")
        a("s_lshl_b32 s7, s7, 11")
        a(f"s_add_u32 s7, s7, {QBP_G}")
        a("s_waitcnt vmcnt(24)")
        wt_tile(VW, VX, True)
        a("s_waitcnt vmcnt(16)")
        wt_tile(VW + 32, VX + 4, False)
        a("s_nop 7")
        select_batch(VW)
        for u in range(2): tag4(VW + 4*u)
        qproj_publish()
        stamp(1, HST)
        a("s_waitcnt vmcnt(0)")
        wpre_perms(VW + 64, waits=False)
    elif early and "j2" not in skip:
        if not h1late: qproj_loads(P_BWQ)
        if b0: a("s_barrier")
        if h1late: qproj_loads(P_BWQ)
        stamp(0, HST, start=True)
        h_consts()
        qproj_rest(QBP_G, True, publish=False)
        if b0bpos == 0 or not b0b:
            if "wpre" not in skip: wpre_loads(P_BWO, VW + 32)
            if b0b: a("s_barrier")
        else:
            a("s_barrier")
            if "wpre" not in skip and b0bpos != 3: wpre_loads(P_BWO, VW + 32)
        a("s_barrier")
        if "wpre" not in skip and b0bpos == 3 and b0b: wpre_loads(P_BWO, VW + 32)
        qproj_publish()
        stamp(1, HST)
        if "wpre" not in skip:
            a("s_waitcnt vmcnt(2)") if not diag else a("s_waitcnt vmcnt(0)")
            wpre_perms(VW + 32, waits=False)
    else:
        if b0: a("s_barrier")
        stamp(0, HST, start=True)
        h_consts()
        a("s_waitcnt vmcnt(0)")
        read_tag()
        if b0b: a("s_barrier")
        a("s_barrier")
        if "j2" not in skip:
            qproj_loads(P_BWQ)
            qproj_rest(QBP_G, False)
        stamp(1, HST)
        if "wpre" not in skip: wpre(P_BWO)
    srd(H_W, P_GATE, 1024)
    for b in range(4):
        a(f"buffer_load_dwordx4 v[{VW+4*b}:{VW+4*b+3}], v{V_L16}, s[{H_X}:{H_X+3}], 0 offen offset:{b*1024} nt")
    GWR = VW + 16
    a(f"buffer_load_dwordx4 v[{GWR}:{GWR+3}], v{V_L16}, s[{H_W}:{H_W+3}], 0 offen nt")
    a("s_waitcnt vmcnt(0)")
    GW = VW + 20
    for i in range(4):
        a(f"v_lshlrev_b32 v{GW+2*i}, 16, v{GWR+i}")
        a(f"v_and_b32 v{GW+2*i+1}, s{H_MHI}, v{GWR+i}")
    XU = VW + 28
    Z = VW + 36
    for b in range(4):
        for i in range(4):
            a(f"v_lshlrev_b32 v{XU+2*i}, 16, v{VW+4*b+i}")
            a(f"v_and_b32 v{XU+2*i+1}, s{H_MHI}, v{VW+4*b+i}")
        for i in range(8): a(f"v_mul_f32 v{XU+i}, v{XU+i}, v{GW+i}")
        for i in range(4): a(f"v_cvt_pk_bf16_f32 v{VW+4*b+i}, v{XU+2*i}, v{XU+2*i+1}")
        for i in range(4):
            a(f"v_lshlrev_b32 v{XU+2*i}, 16, v{VW+4*b+i}")
            a(f"v_and_b32 v{XU+2*i+1}, s{H_MHI}, v{VW+4*b+i}")
        for i in range(4): a(f"v_add_f32 v{XU+i}, v{XU+i}, v{XU+4+i}")
        a(f"v_add_f32 v{XU}, v{XU}, v{XU+2}")
        a(f"v_add_f32 v{XU+1}, v{XU+1}, v{XU+3}")
        a(f"v_add_f32 v{Z+b}, v{XU}, v{XU+1}")
    for rot in (8, 4, 2, 1):
        a("s_nop 0")
        for b in range(4):
            a(f"v_add_f32_dpp v{Z+b}, v{Z+b}, v{Z+b} row_ror:{rot} row_mask:0xf bank_mask:0xf")
    xsum([Z + b for b in range(4)], Z + 4, "32")
    xsum([Z + b for b in range(4)], Z + 4, "16")
    for b in range(4): a(f"v_cvt_pk_bf16_f32 v{Z+b}, v{Z+b}, v{Z+b}")
    for b in range(4): a(f"v_lshlrev_b32 v{Z+b}, 16, v{Z+b}")
    for b in range(4): a(f"v_mul_f32 v{Z+b}, s{H_L2E}, v{Z+b}")
    for b in range(4): a(f"v_sub_f32 v{Z+b}, 0, v{Z+b}")
    for b in range(4): a(f"v_exp_f32 v{Z+b}, v{Z+b}")
    a("s_nop 0")
    for b in range(4): a(f"v_add_f32 v{Z+b}, 1.0, v{Z+b}")
    for b in range(4): a(f"v_rcp_f32 v{Z+b}, v{Z+b}")
    a("s_nop 0")
    for b in range(4): a(f"v_cvt_pk_bf16_f32 v{Z+b}, v{Z+b}, v{Z+b}")
    GG = Z + 8
    for b in range(4): a(f"v_lshlrev_b32 v{GG+2*b}, 16, v{Z+b}")
    for b in range(4): a(f"v_sub_f32 v{GG+2*b+1}, 1.0, v{GG+2*b}")
    for b in range(4): a(f"v_cvt_pk_bf16_f32 v{GG+2*b+1}, v{GG+2*b+1}, v{GG+2*b+1}")
    for b in range(4): a(f"v_lshlrev_b32 v{GG+2*b+1}, 16, v{GG+2*b+1}")
    a(f"v_mov_b32 v{VT}, 0")
    a("s_mov_b64 exec, 1")
    a(f"ds_write_b128 v{VT}, v[{GG}:{GG+3}] offset:{L_G}")
    a(f"ds_write_b128 v{VT}, v[{GG+4}:{GG+7}] offset:{L_G + 16}")
    a("s_mov_b64 exec, -1")
    a("s_waitcnt lgkmcnt(0)")
    a(f"v_lshlrev_b32 v{VT}, 3, v{VG}")
    a(f"ds_read_b32 v{V_GS}, v{VT} offset:{L_G + 4}")
    stamp(2, HST)
    if "j3" not in skip:
        a(f"v_lshlrev_b32 v{VT}, 11, v{VG}")
        a(f"v_lshl_add_u32 v{VT}, v{VC}, 4, v{VT}")
        a(f"s_lshl_b32 s4, s{H_h}, {13 if split else 14}")
        a(f"s_lshl_b32 s5, s{H_b}, 9")
        a("s_add_u32 s4, s4, s5")
        a("s_lshr_b32 s6, s2, 7")
        a("s_lshl_b32 s5, s6, 8")
        a("s_add_u32 s4, s4, s5")
        a(f"s_add_u32 s4, s4, {QBP_G}")
        a("s_add_u32 s5, s4, 8192")
        a.label("L_qbc")
        a(f"buffer_load_dwordx4 v[{VW}:{VW+3}], v{VT}, s[{H_WS}:{H_WS+3}], s4 offen {fl_qbc}")
        if not split:
            a(f"buffer_load_dwordx4 v[{VW+4}:{VW+7}], v{VT}, s[{H_WS}:{H_WS+3}], s5 offen {fl_qbc}")
        a("s_waitcnt vmcnt(0)")
        check("L_qbc", quads=([VW] if split else [VW, VW + 4]), sleep=midsleep)
        untag([VW] if split else [VW, VW + 4])
        if not split:
            for i in range(4): a(f"v_add_f32 v{VW+i}, v{VW+i}, v{VW+4+i}")
        xsum([VW + i for i in range(4)], VW + 4, "32")
        xsum([VW + i for i in range(4)], VW + 4, "16")
        a(f"v_cvt_pk_bf16_f32 v{VW}, v{VW}, v{VW+1}")
        a(f"v_cvt_pk_bf16_f32 v{VW+2}, v{VW+2}, v{VW+3}")
        a(f"v_mov_b32 v{VW+1}, s{H_T}")
        a(f"v_mov_b32 v{VW+3}, s{H_T}")
        a(f"s_lshl_b32 s4, s{H_h}, 11")
        a(f"s_lshl_b32 s5, s{H_b}, 9")
        a("s_add_u32 s4, s4, s5")
        a("s_lshl_b32 s5, s6, 8")
        a("s_add_u32 s4, s4, s5")
        a(f"s_add_u32 s4, s4, {QBF_G}")
        a("s_mov_b64 exec, 0xffff")
        a(f"buffer_store_dwordx4 v[{VW}:{VW+3}], v{V_L16}, s[{H_WS}:{H_WS+3}], s4 offen {sf_qbf}")
        a("s_mov_b64 exec, -1")
        stamp(3, HST)
        if bm is not None:
            if flags:
                a(f"v_mov_b32 v{VST+2}, 0")
                lds_wait(4, VST, VST + 2, sleep=16)
            else: a("s_barrier")
        a(f"v_lshlrev_b32 v{VT}, 11, v{VG}")
        a(f"v_lshl_add_u32 v{VT}, v{VC}, 4, v{VT}")
        a("s_bfe_u32 s4, s2, 0x30003")
        a("s_lshl_b32 s4, s4, 13")
        a("s_lshr_b32 s5, s2, 6")
        a("s_lshl_b32 s5, s5, 9")
        a("s_add_u32 s4, s4, s5")
        a(f"s_add_u32 s4, s4, {QBF_G}")
        a.label("L_qbg")
        for u in range(2):
            a(f"buffer_load_dwordx4 v[{VW+8+4*u}:{VW+8+4*u+3}], v{VT}, s[{H_WS}:{H_WS+3}], s4 offen offset:{u*256} {fl_qbg}")
        a("s_waitcnt vmcnt(0)")
        check("L_qbg", fulltags=[VW+9, VW+11, VW+13, VW+15], sleep=midsleep)
        a(f"v_lshlrev_b32 v{VT}, 8, v{VG}")
        a(f"v_lshl_add_u32 v{VT}, v{VC}, 4, v{VT}")
        for u in range(2):
            a(f"v_mov_b32 v{VW+8+4*u+1}, v{VW+8+4*u+2}")
            a(f"ds_write_b64 v{VT}, v[{VW+8+4*u}:{VW+8+4*u+1}] offset:{L_QB + 8*u}")
    elif bm is not None and not flags: a("s_barrier")
    a("s_waitcnt lgkmcnt(0)")
    if flags:
        a(f"v_mov_b32 v{VST+2}, 0")
        a(f"v_mov_b32 v{VST+3}, 1")
        lds_set(0, VST + 3, VST + 2)
    perm_addr(4096)
    st2_addr(8, GP_G, GP_ML)
    a("s_lshr_b32 s4, s2, 6")
    a("s_lshl_b32 s4, s4, 8")
    a("s_bfe_u32 s5, s2, 0x30003")
    a("s_lshl_b32 s5, s5, 5")
    a("s_add_u32 s4, s4, s5")
    a("s_and_b32 s5, s2, 7")
    a("s_add_u32 s4, s4, s5")
    a("s_lshl_b32 s40, s4, 9")
    a(f"s_add_u32 s40, s40, {GP_G}")
    a("s_lshl_b32 s41, s2, 7")
    a(f"s_add_u32 s41, s41, {GP_ML}")
    stamp(4, HST)
    if flags:
        a(f"v_mov_b32 v{VST+2}, 0")
        lds_wait(8, VST, VST + 2, sleep=8, n=2)
    else:
        a("s_barrier")
        a("s_barrier")
    for rr in range(2):
        merge(VW + 32 * rr, L_SPB, L_MLB, 2 * rr)
        merge_ml(VW + 32 * rr)
    a("s_mov_b32 s4, 0xaaaaaaaa")
    a("s_mov_b32 s5, 0xaaaaaaaa")
    for i in range(4): a(f"v_cndmask_b32 v{VW+4+i}, v{VW+4+i}, v{VW+32+4+i}, s[4:5]")
    a(f"v_lshrrev_b32 v{VT}, 5, v0")
    a(f"v_and_b32 v{VT+1}, 1, v0")
    a(f"v_lshl_add_u32 v{VT}, v{VT+1}, 1, v{VT}")
    a(f"v_bfe_u32 v{VT+1}, v0, 1, 1")
    a(f"v_lshl_add_u32 v{VT}, v{VT+1}, 2, v{VT}")
    a(f"v_lshlrev_b32 v{VT}, 4, v{VT}")
    stamp(5, HST)
    a("s_barrier")
    if "gp" not in skip:
        for rr in range(2):
            q0 = VW + 32 * rr
            a(f"buffer_store_dwordx4 v[{q0}:{q0+3}], v{V_PERM}, s[{H_WS}:{H_WS+3}], s40 offen {sf_gp}")
            if rr == 0: a("s_add_u32 s40, s40, 8192")
        a("s_mov_b32 exec_lo, 0xf")
        a("s_mov_b32 exec_hi, 0xf")
        a(f"buffer_store_dwordx4 v[{VW+4}:{VW+7}], v{VT}, s[{H_WS}:{H_WS+3}], s41 offen {sf_gp}")
        a("s_mov_b64 exec, -1")
    stamp(6, HST)
    if not nob5:
        a("s_barrier")
        if "tail" in skip: a("s_branch L_hend")
    if not (nob5 and "tail" in skip):
        st2(8, L_OBB, "st2b", tailsleep, True)
        a(f"v_lshlrev_b32 v{VT}, 5, v0")
        a("s_nop 6")
        select_batch(VW)
        a(f"ds_write_b128 v{VT}, v[{VW}:{VW+3}] offset:{L_YB}")
        a(f"ds_write_b128 v{VT}, v[{VW+4}:{VW+7}] offset:{L_YB + 16}")
        a("s_waitcnt lgkmcnt(0)")
    stamp(7, HST)
    a("s_barrier")
    a.label("L_hend")
    a("s_waitcnt vmcnt(0)")
    a.label("L_end")
    a("s_endpgm")
    a.label("L_code_end")
    nagpr = 32 * D
    a.raw('.section .rodata,"a"')
    a.raw(".p2align 6")
    a.raw(f".amdhsa_kernel {NAME}_kernel")
    a.raw(f"  .amdhsa_next_free_vgpr {256 + max(nagpr, 64)}")
    a.raw("  .amdhsa_next_free_sgpr 96")
    a.raw("  .amdhsa_accum_offset 256")
    a.raw("  .amdhsa_group_segment_fixed_size 0")
    a.raw("  .amdhsa_kernarg_size 112")
    a.raw("  .amdhsa_user_sgpr_count 2")
    a.raw("  .amdhsa_user_sgpr_kernarg_segment_ptr 1")
    a.raw("  .amdhsa_system_sgpr_workgroup_id_x 1")
    a.raw("  .amdhsa_float_denorm_mode_32 3")
    a.raw(".end_amdhsa_kernel")
    return a.text()

if __name__ == "__main__":
    import json
    kw = json.loads(sys.argv[2]) if len(sys.argv) > 2 else {}
    open(sys.argv[1], "w").write(gen(**kw))
```

```python
import sys

NAME = "gated_mix__mha_block_cached__gqa_block_cached__decode"

EPOCH  = 0x000000
GP_ML  = 0x001000
OA_ML  = 0x009000
QA_G   = 0x011000
QBP_G  = 0x091000
QBF_G  = 0x111000
OA_G   = 0x121000
GP_G   = 0x141000
Y_G    = 0x1C1000
DIAG   = 0x250000
WS_USED = 0x280000

L_QA, L_QB = 0, 256
L_SPA, L_SPB = 2048, 6144
L_MLA, L_MLB = 10240, 10496
L_OBA, L_OBB = 10752, 11264
L_G = 11776
L_YB = 11840
L_QX = 13888
L_F = 15936
LDS_BYTES = 16384

SCALE = 0x3db504f3
LOG2E = 0x3fb8aa3b
SEL_LO, SEL_HI = 0x05040100, 0x07060302
TAGINC = 0x9e3779b9
NEG_INF = 0xff800000
NEG_BIG = 0xf149f2ca

class Asm:
    def __init__(self):
        self.L = []
        self.n = 0
    def __call__(self, s):
        self.L.append("  " + s)
    def label(self, s):
        self.L.append(s + ":")
    def raw(self, s):
        self.L.append(s)
    def uniq(self, p):
        self.n += 1
        return f"{p}_{self.n}"
    def text(self):
        return "\n".join(self.L) + "\n"

P_X, P_AK, P_AV, P_AWQ, P_AWO = 44, 46, 48, 50, 52
P_BK, P_BV, P_BWQ, P_BWO, P_GATE, P_OUT, P_DBG, P_WS = 56, 58, 60, 62, 64, 66, 68, 70

def gen(D=4, N0=16, diag=False, kvflags="nt", maxpoll=1 << 18, b0=True, b0b=True, batch1=None,
        noH=False, nocomp=0, skip=(), mimic=True, tailsleep=1, midsleep=8, qsleep=0,
        hoflags="sc1", stflags="sc1", qaack=False, stag=False, G2=False, touch=False, b0pos=0, early=True, bm=None, itstamp=False, GB=None, h1late=False, nob5=False, b3bit=1, split=True, flags=True, lite=False, codepf=False, outflags="", b0bpos=0, k1early=False, prepoll=False, dry=(), adj=False, rot=0, rotb=None, qpipe=0, fl_qa=None, fl_qbc=None, fl_qbg=None, fl_st2a=None, fl_st2b=None, fl_fin=None, sf_qa=None, sf_qbp=None, sf_qbf=None, sf_gp=None, sf_oa=None, sf_y=None):
    a = Asm()
    W, NH = 2, 2
    NWAVES = W + NH
    TA = 128 // W
    TB = 32 // W
    if batch1 is None: batch1 = max(1, D // 2)
    assert N0 % D == 0 and TB % D == 0 and (TA - N0) % D == 0
    a.raw(f"; @launch grid=(256,1,1) block=({64*NWAVES},1,1) lds={LDS_BYTES}")
    for line in """
 out = g * MHA(x) + (1 - g) * GQA(x), decode step, one fused launch of 256 workgroups (one per CU), 4 waves each.
 Waves 0,1 (S) stream the K/V caches once with non-temporal loads: flash-decode over 32-key tiles. K goes straight
 into the MFMA A layout (AGPR ring), V is transposed with v_perm, scores are rounded to bf16 twice as the reference
 does, the running maximum is the true maximum. Per workgroup: 4096 keys of one MHA (batch, head) pair in two parts
 and, between them, 1024 keys of one GQA (batch, kv head) pair for its 4 query heads.
 Waves 2,3 (H) do the small projections and the hand-offs between workgroups through d_ws:
   qA partials -> gather -> LDS;  qB partials -> combine -> gather -> LDS;  per-pair partial (o, m, l) -> stage 2
   (normalise, gate, multiply with a 64 x 128 piece of wo) -> 64 partial outputs per column -> final sum -> d_out.
 Every hand-off word carries this launch's tag T = E + const, E being the word at d_ws[0] (rewritten by the last
 step of the launch); f32 payloads carry T in their low bytes, which the reader validates and then replaces by a
 fixed byte, so no result depends on T. All polls are bounded.
""".strip("\n").split("\n"): a.raw(";" + line)
    a.raw('.amdgcn_target "amdgcn-amd-amdhsa--gfx950"')
    a.raw(".text")
    a.raw(f".globl {NAME}_kernel")
    a.raw(".p2align 8")
    a.raw(f".type {NAME}_kernel,@function")
    a.label(f"{NAME}_kernel")
    a("s_cmp_ge_u32 s2, 256")
    a("s_cbranch_scc1 L_end")
    a("s_load_dwordx16 s[44:59], s[0:1], 0")
    a("s_load_dwordx8 s[60:67], s[0:1], 64")
    a("s_load_dwordx4 s[68:71], s[0:1], 96")
    if codepf:
        a("s_getpc_b64 s[90:91]")
        a.label("L_pc")
        a(f"s_sub_u32 s90, s90, L_pc-{NAME}_kernel")
        a("s_subb_u32 s91, s91, 0")
        a("s_lshr_b32 s92, s2, 3")
        a("s_lshl_b32 s92, s92, 10")
        a(f"s_cmp_lt_u32 s92, L_code_end-{NAME}_kernel-1024")
        a("s_cbranch_scc0 L_nopf")
        a("v_cmp_gt_u32 vcc, 64, v0")
        a("s_and_saveexec_b64 s[86:87], vcc")
        a("s_cbranch_execz L_pf_restore")
        a("v_lshl_add_u32 v250, v0, 4, s92")
        a("global_load_dwordx4 v[252:255], v250, s[90:91]")
        a.label("L_pf_restore")
        a("s_mov_b64 exec, s[86:87]")
        a.label("L_nopf")
    if diag or lite:
        a("s_memrealtime s[72:73]")
    if diag:
        a("s_memtime s[80:81]")
    a("v_lshrrev_b32 v1, 6, v0")
    a("v_and_b32 v0, 63, v0")
    a("v_and_b32 v3, 15, v0")
    a("v_readfirstlane_b32 s3, v1")
    a("v_lshrrev_b32 v2, 4, v0")
    a("s_waitcnt lgkmcnt(0)")
    if diag:
        a("s_memrealtime s[94:95]")
        a("s_waitcnt lgkmcnt(0)")
    a(f"s_cmp_ge_u32 s3, {W}")
    a("s_cbranch_scc1 L_H")

    def stamp(idx, r0, start=False):
        if not diag: return
        if not start:
            a("s_memrealtime s[74:75]")
            a("s_waitcnt lgkmcnt(0)")
            a(f"v_mov_b32 v{r0}, s74")
        else:
            a(f"v_mov_b32 v{r0}, s72")
        a(f"s_lshl_b32 s76, s2, 2")
        a("s_add_u32 s76, s76, s3")
        a("s_lshl_b32 s76, s76, 6")
        a(f"s_add_u32 s76, s76, {DIAG + idx*4}")
        a(f"v_mov_b32 v{r0+1}, s76")
        a("s_mov_b64 s[78:79], exec")
        a("s_mov_b64 exec, 1")
        a(f"global_store_dword v{r0+1}, v{r0}, s[{P_WS}:{P_WS+1}]")
        a("s_mov_b64 exec, s[78:79]")

    def lds_wait(off, vtmp, vzero, sleep=1, n=1):
        lab = a.uniq("L_spin")
        a.label(lab)
        if n == 1:
            a(f"ds_read_b32 v{vtmp}, v{vzero} offset:{L_F + off}")
            a("s_waitcnt lgkmcnt(0)")
        else:
            a(f"ds_read_b64 v[{vtmp}:{vtmp+1}], v{vzero} offset:{L_F + off}")
            a("s_waitcnt lgkmcnt(0)")
            a(f"v_and_b32 v{vtmp}, v{vtmp}, v{vtmp+1}")
            a("s_nop 0")
        a(f"v_readfirstlane_b32 s4, v{vtmp}")
        done = a.uniq("L_spun")
        a("s_nop 3")
        a("s_cmp_lg_u32 s4, 0")
        a(f"s_cbranch_scc1 {done}")
        if sleep: a(f"s_sleep {sleep}")
        a(f"s_branch {lab}")
        a.label(done)
    def lds_set(off, vone, vzero):
        a(f"ds_write_b32 v{vzero}, v{vone} offset:{L_F + off}")

    S_KC, S_VC = 8, 12
    S_KA, S_VA, S_KB, S_VB = 16, 18, 20, 22
    S_OFF, S_OFF2, S_IT, S_SEG = 24, 25, 26, 27
    S_SCALE, S_L2E, S_SELLO, S_SELHI, S_MASKHI = 28, 29, 30, 31, 32
    S_M4 = 36
    V_KO, V_VO = 4, 5
    V_P, V_ML, V_QA, V_QB = 6, 7, 8, 9
    V_Q = 12
    V_S = 28
    V_PB = 36
    V_ST = 40
    V_O = 48
    V_M, V_L, V_MN, V_AL, V_MLG = 80, 81, 82, 83, 84
    V_T = 86
    V_RING = 96
    SST = 250
    def KR(d): return 32 * d
    def VR(d): return V_RING + 32 * d
    fl = (" " + kvflags) if kvflags else ""

    a(f"; ---------------- S waves ----------------")
    GM = 2 if G2 else 1
    if GB is None: GB = GM
    import math
    LGB = int(math.log2(GB))
    STEP = GM * W * 8192
    STEPB = GB * W * 8192
    S_STEP = 35
    S_W0A, S_W0B = 33, 34
    a("s_and_b32 s4, s2, 127")
    a("s_lshl_b32 s4, s4, 21")
    a("s_lshr_b32 s5, s2, 7")
    if G2:
        a(f"s_lshl_b32 s{S_W0A}, s5, 1")
        a(f"s_add_u32 s{S_W0A}, s{S_W0A}, s3")
        a(f"s_lshl_b32 s{S_W0A}, s{S_W0A}, {13 + (int(math.log2(D)) if adj else 0)}")
    else:
        a("s_lshl_b32 s5, s5, 20")
        a("s_add_u32 s4, s4, s5")
        a(f"s_lshl_b32 s{S_W0A}, s3, 13")
    for (dst, p) in ((S_KC, P_AK), (S_VC, P_AV)):
        a(f"s_add_u32 s{dst}, s{p}, s4")
        a(f"s_addc_u32 s{dst+1}, s{p+1}, 0")
        a(f"s_and_b32 s{dst+1}, s{dst+1}, 0xffff")
        a(f"s_mov_b32 s{dst+2}, {GM << 20}")
        a(f"s_mov_b32 s{dst+3}, 0x20000")
    S_WRAP = 38
    if rotb is None: rotb = rot
    if rot:
        assert G2 and not adj
        a("s_and_b32 s5, s2, 127")
        a(f"s_mul_i32 s5, s5, {rot}")
        a("s_and_b32 s5, s5, 63")
        a(f"s_mul_i32 s5, s5, {STEP}")
        a(f"s_add_u32 s{S_W0A}, s{S_W0A}, s5")
        a(f"s_mov_b32 s{S_WRAP}, {(GM << 20) - 1}")
    a(f"s_mov_b32 s{S_OFF}, s{S_W0A}")
    a(f"s_add_u32 s{S_OFF2}, s{S_OFF}, 4096")
    a(f"v_lshlrev_b32 v{V_KO}, 8, v3")
    a(f"v_lshl_add_u32 v{V_KO}, v2, 4, v{V_KO}")
    a(f"v_lshlrev_b32 v{V_VO}, 10, v2")
    a(f"v_lshl_add_u32 v{V_VO}, v3, 4, v{V_VO}")
    def issueK(d):
        for t in range(8):
            so = S_OFF if t < 4 else S_OFF2
            r = KR(d) + 4 * t
            a(f"buffer_load_dwordx4 a[{r}:{r+3}], v{V_KO}, s[{S_KC}:{S_KC+3}], s{so} offen offset:{(t%4)*64}{fl}")
    def issueV(d):
        for t in range(8):
            so = S_OFF if t < 4 else S_OFF2
            r = VR(d) + 4 * t
            a(f"buffer_load_dwordx4 v[{r}:{r+3}], v{V_VO}, s[{S_VC}:{S_VC+3}], s{so} offen offset:{(t%4)*256}{fl}")
    def stepval(st): return (D * st - (D - 1) * 8192) if adj else st
    a(f"s_mov_b32 s{S_STEP}, {stepval(STEP)}")
    def advance(d=None):
        if adj and d is not None and d < D - 1:
            a(f"s_add_u32 s{S_OFF}, s{S_OFF}, 8192")
            a(f"s_add_u32 s{S_OFF2}, s{S_OFF2}, 8192")
        elif rot:
            a(f"s_add_u32 s{S_OFF}, s{S_OFF}, s{S_STEP}")
            a(f"s_and_b32 s{S_OFF}, s{S_OFF}, s{S_WRAP}")
            a(f"s_add_u32 s{S_OFF2}, s{S_OFF}, 4096")
        else:
            a(f"s_add_u32 s{S_OFF}, s{S_OFF}, s{S_STEP}")
            a(f"s_add_u32 s{S_OFF2}, s{S_OFF2}, s{S_STEP}")
    V_ZERO, V_ONE = 11, 94
    if flags:
        assert b0
        a(f"v_mov_b32 v{V_ZERO}, 0")
        a(f"v_mov_b32 v{V_ONE}, 1")
        a(f"v_mov_b32 v86, 0")
        a(f"v_mov_b32 v87, 0")
        a(f"v_mov_b32 v88, 0")
        a(f"v_mov_b32 v89, 0")
        a(f"ds_write_b128 v{V_ZERO}, v[86:89] offset:{L_F}")
        a("s_waitcnt lgkmcnt(0)")
    if b0: a("s_barrier")
    for d in range(batch1):
        issueK(d); issueV(d); advance(d)
    if k1early: issueK(batch1)
    a(f"s_mov_b32 s{S_KA}, s{S_KC}")
    a(f"s_mov_b32 s{S_KA+1}, s{S_KC+1}")
    a(f"s_mov_b32 s{S_VA}, s{S_VC}")
    a(f"s_mov_b32 s{S_VA+1}, s{S_VC+1}")
    if GB > 1:
        a(f"s_lshr_b32 s5, s2, {LGB}")
        a(f"s_lshl_b32 s5, s5, {18 + LGB}")
        a(f"s_and_b32 s{S_W0B}, s2, {GB - 1}")
        a(f"s_lshl_b32 s{S_W0B}, s{S_W0B}, 1")
        a(f"s_add_u32 s{S_W0B}, s{S_W0B}, s3")
        a(f"s_lshl_b32 s{S_W0B}, s{S_W0B}, {13 + (int(math.log2(D)) if adj else 0)}")
    else:
        a("s_lshl_b32 s5, s2, 18")
        a(f"s_lshl_b32 s{S_W0B}, s3, 13")
    if rot and rotb:
        a(f"s_lshr_b32 s4, s2, {LGB}")
        a(f"s_mul_i32 s4, s4, {rotb}")
        a("s_and_b32 s4, s4, 15")
        a(f"s_mul_i32 s4, s4, {STEPB}")
        a(f"s_add_u32 s{S_W0B}, s{S_W0B}, s4")
    for (dst, p) in ((S_KB, P_BK), (S_VB, P_BV)):
        a(f"s_add_u32 s{dst}, s{p}, s5")
        a(f"s_addc_u32 s{dst+1}, s{p+1}, 0")
        a(f"s_and_b32 s{dst+1}, s{dst+1}, 0xffff")
    def set_issue(kb, vb, size, tile0, w0, step):
        a(f"s_mov_b32 s{S_KC}, s{kb}")
        a(f"s_mov_b32 s{S_KC+1}, s{kb+1}")
        a(f"s_mov_b32 s{S_KC+2}, {size}")
        a(f"s_mov_b32 s{S_VC}, s{vb}")
        a(f"s_mov_b32 s{S_VC+1}, s{vb+1}")
        a(f"s_mov_b32 s{S_VC+2}, {size}")
        a(f"s_mov_b32 s{S_STEP}, {stepval(step)}")
        a(f"s_add_u32 s{S_OFF}, s{w0}, {tile0 * STEP}")
        if rot:
            a(f"s_mov_b32 s{S_WRAP}, {size - 1}")
            a(f"s_and_b32 s{S_OFF}, s{S_OFF}, s{S_WRAP}")
        a(f"s_add_u32 s{S_OFF2}, s{S_OFF}, 4096")
    a(f"s_mov_b32 s{S_SCALE}, {SCALE:#x}")
    a(f"s_mov_b32 s{S_L2E}, {LOG2E:#x}")
    a(f"s_mov_b32 s{S_SELLO}, {SEL_LO:#x}")
    a(f"s_mov_b32 s{S_SELHI}, {SEL_HI:#x}")
    a(f"s_mov_b32 s{S_MASKHI}, 0xffff0000")
    a(f"s_mov_b32 s{S_M4}, 0x000f000f")
    a(f"s_mov_b32 s{S_M4+1}, 0x000f000f")
    a(f"v_and_b32 v10, 3, v3")
    a(f"s_lshl_b32 s4, s3, 11")
    a(f"v_lshlrev_b32 v{V_P}, 9, v10")
    a(f"v_lshl_add_u32 v{V_P}, v2, 4, v{V_P}")
    a(f"v_add_u32 v{V_P}, s4, v{V_P}")
    a(f"s_lshl_b32 s4, s3, 7")
    a(f"v_lshlrev_b32 v{V_ML}, 5, v10")
    a(f"v_lshl_add_u32 v{V_ML}, v2, 2, v{V_ML}")
    a(f"v_add_u32 v{V_ML}, s4, v{V_ML}")
    a(f"v_lshlrev_b32 v{V_QA}, 4, v2")
    a(f"v_lshl_add_u32 v{V_QB}, v10, 8, v{V_QA}")
    def init_state():
        for i in range(32): a(f"v_mov_b32 v{V_O+i}, 0")
        a(f"v_mov_b32 v{V_M}, {NEG_INF:#x}")
        a(f"v_mov_b32 v{V_MLG}, {NEG_INF:#x}")
        a(f"v_mov_b32 v{V_L}, 0")
    def load_q(vaddr, base):
        for s in range(4):
            a(f"ds_read_b128 v[{V_Q+4*s}:{V_Q+4*s+3}], v{vaddr} offset:{base + 64*s}")
    init_state()
    if split: a("s_barrier")
    if b0b: a("s_barrier")
    for d in range(batch1, D):
        if stag:
            a(f"s_waitcnt vmcnt({16 * batch1 - 8})")
        if not (k1early and d == batch1): issueK(d)
        if stag:
            a(f"s_waitcnt vmcnt({16 * batch1 - 8})")
        issueV(d); advance(d)
    stamp(0, SST, start=True)
    a("s_barrier")
    load_q(V_QA, L_QA)
    a(f"s_mov_b32 s{S_SEG}, 0")
    a(f"s_mov_b32 s{S_IT}, {N0 // D}")
    a("s_waitcnt lgkmcnt(0)")
    stamp(1, SST)
    if itstamp:
        a("s_mov_b32 s39, 0")
        a("v_mov_b32 v249, 0")
    a.label("L_sloop")
    if itstamp:
        a("s_memrealtime s[84:85]")
        a("s_waitcnt lgkmcnt(0)")
        a("s_mov_b32 m0, s39")
        a("s_nop 0")
        a("v_writelane_b32 v249, s84, m0")
        a("s_add_u32 s39, s39, 1")
    if bm is not None:
        a(f"s_cmp_eq_u32 s{S_SEG}, 0")
        a("s_cbranch_scc0 L_nobm")
        a(f"s_cmp_eq_u32 s{S_IT}, {bm}")
        a("s_cbranch_scc0 L_nobm")
        if flags: lds_set(4, V_ONE, V_ZERO)
        else: a("s_barrier")
        a.label("L_nobm")
    a(f"s_cmp_eq_u32 s{S_IT}, 1")
    a("s_cbranch_scc0 L_noswitch")
    a(f"s_cmp_eq_u32 s{S_SEG}, 0")
    a("s_cbranch_scc0 L_sw1")
    set_issue(S_KB, S_VB, GB << 18, 0, S_W0B, STEPB)
    a("s_branch L_noswitch")
    a.label("L_sw1")
    a(f"s_cmp_eq_u32 s{S_SEG}, 1")
    a("s_cbranch_scc0 L_sw2")
    set_issue(S_KA, S_VA, GM << 20, N0, S_W0A, STEP)
    a("s_branch L_noswitch")
    a.label("L_sw2")
    a(f"s_mov_b32 s{S_KC+2}, 0")
    a(f"s_mov_b32 s{S_VC+2}, 0")
    if b3bit == 1: a("s_barrier")
    a.label("L_noswitch")
    if b3bit != 1:
        a(f"s_cmp_eq_u32 s{S_SEG}, 2")
        a("s_cbranch_scc0 L_nob3b")
        a(f"s_cmp_eq_u32 s{S_IT}, {b3bit}")
        a("s_cbranch_scc0 L_nob3b")
        a("s_barrier")
        a.label("L_nob3b")
    WAITN = 16 * D - 8
    T = V_T
    for d in range(D):
        a(f"; ---- tile slot {d}")
        a(f"s_waitcnt vmcnt({WAITN})")
        if nocomp:
            issueK(d)
            a(f"s_waitcnt vmcnt({WAITN})")
            issueV(d)
            advance(d)
            continue
        for s in range(4):
            for h in range(2):
                kr = KR(d) + 4 * (4 * h + s)
                c = "0" if s == 0 else f"v[{V_S+4*h}:{V_S+4*h+3}]"
                a(f"v_mfma_f32_16x16x32_bf16 v[{V_S+4*h}:{V_S+4*h+3}], a[{kr}:{kr+3}], v[{V_Q+4*s}:{V_Q+4*s+3}], {c}")
        issueK(d)
        a("s_nop 1")
        S = [V_S + i for i in range(8)]
        if mimic:
            for i in range(4): a(f"v_cvt_pk_bf16_f32 v{T+i}, v{S[2*i]}, v{S[2*i+1]}")
            for i in range(4):
                a(f"v_lshlrev_b32 v{S[2*i]}, 16, v{T+i}")
                a(f"v_and_b32 v{S[2*i+1]}, s{S_MASKHI}, v{T+i}")
            for i in range(8): a(f"v_mul_f32 v{S[i]}, s{S_SCALE}, v{S[i]}")
            for i in range(4): a(f"v_cvt_pk_bf16_f32 v{T+i}, v{S[2*i]}, v{S[2*i+1]}")
            for i in range(4):
                a(f"v_lshlrev_b32 v{S[2*i]}, 16, v{T+i}")
                a(f"v_and_b32 v{S[2*i+1]}, s{S_MASKHI}, v{T+i}")
        else:
            for i in range(8): a(f"v_mul_f32 v{S[i]}, s{S_SCALE}, v{S[i]}")
        a(f"v_max3_f32 v{T}, v{S[0]}, v{S[1]}, v{S[2]}")
        a(f"v_max3_f32 v{T+1}, v{S[3]}, v{S[4]}, v{S[5]}")
        a(f"v_max3_f32 v{T}, v{T}, v{S[6]}, v{S[7]}")
        a(f"v_max_f32 v{T}, v{T}, v{T+1}")
        a(f"v_mov_b32 v{T+1}, v{T}")
        a("s_nop 1")
        a(f"v_permlane32_swap_b32 v{T}, v{T+1}")
        a(f"v_max_f32 v{T}, v{T}, v{T+1}")
        a(f"v_mov_b32 v{T+1}, v{T}")
        a("s_nop 1")
        a(f"v_permlane16_swap_b32 v{T}, v{T+1}")
        a(f"v_max_f32 v{T}, v{T}, v{T+1}")
        a(f"v_max_f32 v{V_MN}, v{V_M}, v{T}")
        a(f"v_cmp_gt_f32 vcc, v{V_MN}, v{V_M}")
        lab = a.uniq("L_nors")
        a(f"s_cbranch_vccz {lab}")
        a(f"v_sub_f32 v{T+1}, v{V_M}, v{V_MN}")
        a(f"v_mul_f32 v{T+1}, s{S_L2E}, v{T+1}")
        a(f"v_exp_f32 v{V_AL}, v{T+1}")
        a(f"v_mov_b32 v{V_M}, v{V_MN}")
        a(f"v_mul_f32 v{V_MLG}, s{S_L2E}, v{V_MN}")
        a(f"v_mul_f32 v{V_L}, v{V_L}, v{V_AL}")
        for i in range(32): a(f"v_mul_f32 v{V_O+i}, v{V_O+i}, v{V_AL}")
        a.label(lab)
        for i in range(8): a(f"v_fma_f32 v{S[i]}, v{S[i]}, s{S_L2E}, -v{V_MLG}")
        for i in range(8): a(f"v_exp_f32 v{S[i]}, v{S[i]}")
        a(f"v_add_f32 v{T}, v{S[0]}, v{S[1]}")
        a(f"v_add_f32 v{T+1}, v{S[2]}, v{S[3]}")
        a(f"v_add_f32 v{T+2}, v{S[4]}, v{S[5]}")
        a(f"v_add_f32 v{T+3}, v{S[6]}, v{S[7]}")
        for i in range(4): a(f"v_cvt_pk_bf16_f32 v{V_PB+i}, v{S[2*i]}, v{S[2*i+1]}")
        a(f"v_add_f32 v{T}, v{T}, v{T+1}")
        a(f"v_add_f32 v{T+2}, v{T+2}, v{T+3}")
        a(f"v_add_f32 v{T}, v{T}, v{T+2}")
        a(f"v_add_f32 v{V_L}, v{V_L}, v{T}")
        a(f"s_waitcnt vmcnt({WAITN})")
        def perms(j):
            st = V_ST + 4 * (j & 1)
            r, hh = j >> 1, j & 1
            sel = S_SELHI if hh else S_SELLO
            for u in range(4):
                lo = VR(d) + 4 * (2 * u) + r
                hi = VR(d) + 4 * (2 * u + 1) + r
                a(f"v_perm_b32 v{st+u}, v{hi}, v{lo}, s{sel}")
        def pv(j):
            st = V_ST + 4 * (j & 1)
            a(f"v_mfma_f32_16x16x32_bf16 v[{V_O+4*j}:{V_O+4*j+3}], v[{st}:{st+3}], v[{V_PB}:{V_PB+3}], v[{V_O+4*j}:{V_O+4*j+3}]")
        perms(0); perms(1)
        for j in range(8):
            if j == 7: a("s_nop 0")
            pv(j)
            if j + 2 < 8: perms(j + 2)
        issueV(d)
        advance(d)
    a(f"s_sub_u32 s{S_IT}, s{S_IT}, 1")
    a(f"s_cmp_lg_u32 s{S_IT}, 0")
    a("s_cbranch_scc1 L_sloop")
    a("s_nop 7")
    a(f"s_cmp_eq_u32 s{S_SEG}, 1")
    a(f"s_cselect_b32 s4, {L_SPB - L_SPA}, 0")
    a(f"s_cselect_b32 s5, {L_MLB - L_MLA}, 0")
    a(f"v_add_u32 v{T}, s4, v{V_P}")
    a(f"v_add_u32 v{T+1}, s5, v{V_ML}")
    a(f"s_mov_b64 exec, s[{S_M4}:{S_M4+1}]")
    for j in range(8):
        a(f"ds_write_b128 v{T}, v[{V_O+4*j}:{V_O+4*j+3}] offset:{L_SPA + 64*j}")
    a(f"ds_write_b32 v{T+1}, v{V_L} offset:{L_MLA}")
    a(f"ds_write_b32 v{T+1}, v{V_M} offset:{L_MLA + 16}")
    a("s_mov_b64 exec, -1")
    a("s_waitcnt lgkmcnt(0)")
    a(f"s_cmp_eq_u32 s{S_SEG}, 0")
    a("s_cbranch_scc0 L_se1")
    stamp(2, SST)
    if flags: lds_wait(0, 86, V_ZERO)
    else: a("s_barrier")
    load_q(V_QB, L_QB)
    init_state()
    a(f"s_mov_b32 s{S_SEG}, 1")
    a(f"s_mov_b32 s{S_IT}, {TB // D}")
    a("s_waitcnt lgkmcnt(0)")
    a("s_branch L_sloop")
    a.label("L_se1")
    a(f"s_cmp_eq_u32 s{S_SEG}, 1")
    a("s_cbranch_scc0 L_se2")
    stamp(3, SST)
    if flags:
        a(f"s_lshl_b32 s4, s3, 2")
        a(f"v_mov_b32 v86, s4")
        lds_set(8, V_ONE, 86)
    else: a("s_barrier")
    load_q(V_QA, L_QA)
    for j in range(8):
        a(f"ds_read_b128 v[{V_O+4*j}:{V_O+4*j+3}], v{V_P} offset:{L_SPA + 64*j}")
    a(f"ds_read_b32 v{V_L}, v{V_ML} offset:{L_MLA}")
    a(f"ds_read_b32 v{V_M}, v{V_ML} offset:{L_MLA + 16}")
    a(f"s_mov_b32 s{S_SEG}, 2")
    a(f"s_mov_b32 s{S_IT}, {(TA - N0) // D}")
    a("s_waitcnt lgkmcnt(0)")
    a(f"v_mul_f32 v{V_MLG}, s{S_L2E}, v{V_M}")
    a("s_branch L_sloop")
    a.label("L_se2")
    if diag:
        a("s_memtime s[82:83]")
        a("s_waitcnt lgkmcnt(0)")
        a("s_sub_u32 s82, s82, s80")
        a("s_memrealtime s[74:75]")
        a("s_waitcnt lgkmcnt(0)")
        a("s_sub_u32 s74, s74, s72")
        a(f"v_mov_b32 v{SST+2}, s82")
        a(f"v_mov_b32 v{SST+3}, s74")
        a("s_lshl_b32 s76, s2, 2")
        a("s_add_u32 s76, s76, s3")
        a("s_lshl_b32 s76, s76, 6")
        a(f"s_add_u32 s76, s76, {DIAG + 5*4}")
        a(f"v_mov_b32 v{SST+4}, s76")
        a("s_mov_b64 exec, 1")
        a(f"global_store_dwordx2 v{SST+4}, v[{SST+2}:{SST+3}], s[{P_WS}:{P_WS+1}]")
        a("s_mov_b64 exec, -1")
    if itstamp:
        a("s_lshl_b32 s76, s2, 1")
        a("s_add_u32 s76, s76, s3")
        a("s_lshl_b32 s76, s76, 8")
        a(f"s_add_u32 s76, s76, {DIAG + 0x10000}")
        a(f"v_lshl_add_u32 v248, v0, 2, s76")
        a(f"global_store_dword v248, v249, s[{P_WS}:{P_WS+1}]")
    stamp(4, SST)
    a("s_barrier")
    a("s_waitcnt vmcnt(0)")
    a("s_endpgm")

    H_WS, H_W, H_X = 8, 12, 16
    H_T = 20
    H_G1, H_G2, H_G3 = 22, 24, 26
    H_SELLO, H_SELHI, H_L2E = 28, 29, 30
    H_SO = 31
    H_CNT = 32
    H_h, H_b = 34, 35
    H_dh, H_cg, H_i2 = 36, 37, 38
    H_MHI = 39
    H_DRY = 95
    H_TB = 84
    H_ST = 88
    VC, VG = 3, 2
    V_L16 = 4
    V_WOFF = 5
    VT = 6
    VX = 8
    V_TV = 16
    V_PERM = 17
    V_GS = 18
    V_B512 = 19
    V_MR = 20
    V_MM = 21
    V_C80 = 1
    HST = 22
    VW = 24
    VST = 152
    VD = 160
    VWQ = 192
    ho = hoflags; sf = stflags
    fl_qa = fl_qa or ho; fl_qbc = fl_qbc or ho; fl_qbg = fl_qbg or ho; fl_st2a = fl_st2a or ho; fl_st2b = fl_st2b or ho; fl_fin = fl_fin or ho
    sf_qa = sf_qa or sf; sf_qbp = sf_qbp or sf; sf_qbf = sf_qbf or sf; sf_gp = sf_gp or sf; sf_oa = sf_oa or sf; sf_y = sf_y or sf

    def srd(dst, p, size):
        a(f"s_mov_b32 s{dst}, s{p}")
        a(f"s_and_b32 s{dst+1}, s{p+1}, 0xffff")
        a(f"s_mov_b32 s{dst+2}, {size}")
        a(f"s_mov_b32 s{dst+3}, 0x20000")

    def check(lab, quads=(), fulltags=(), sleep=0):
        acc, accf = VST, VST + 1
        done = a.uniq("L_ok")
        first = True
        for q in quads:
            for i in range(4):
                if first: a(f"v_xor_b32 v{acc}, s{H_TB+i}, v{q+i}"); first = False
                else: a(f"v_bitop3_b32 v{acc}, v{acc}, v{q+i}, s{H_TB+i} bitop3:0xf6")
        if quads: a(f"v_and_b32 v{acc}, 0xff, v{acc}")
        for r in fulltags:
            if first: a(f"v_xor_b32 v{acc}, s{H_T}, v{r}"); first = False
            else: a(f"v_bitop3_b32 v{acc}, v{acc}, v{r}, s{H_T} bitop3:0xf6")
        a(f"v_cmp_ne_u32 vcc, 0, v{acc}")
        a(f"s_cbranch_vccz {done}")
        if dry:
            a(f"s_cmp_eq_u32 s{H_DRY}, 1")
            a(f"s_cbranch_scc1 {done}")
        a(f"s_sub_u32 s{H_CNT}, s{H_CNT}, 1")
        a(f"s_cmp_eq_u32 s{H_CNT}, 0")
        a(f"s_cbranch_scc1 {done}")
        if sleep: a(f"s_sleep {sleep}")
        a(f"s_branch {lab}")
        a.label(done)

    def tag4(dst, src=None):
        src = [dst + i for i in range(4)] if src is None else src
        for i in range(4):
            a(f"v_perm_b32 v{dst+i}, v{src[i]}, v{V_TV}, s{H_ST+i}")

    def untag(quads):
        for q in quads:
            for i in range(4):
                a(f"v_perm_b32 v{q+i}, v{q+i}, v{V_C80}, s{H_ST}")

    def wt_tile(wbase, areg, first):
        def perms(j):
            st = VST + 4 * (j & 1)
            r, hh = j >> 1, j & 1
            sel = H_SELHI if hh else H_SELLO
            for u in range(4):
                lo = wbase + 4 * (2 * u) + r
                hi = wbase + 4 * (2 * u + 1) + r
                a(f"v_perm_b32 v{st+u}, v{hi}, v{lo}, s{sel}")
        def mm(j):
            st = VST + 4 * (j & 1)
            c = "0" if first else f"v[{VD+4*j}:{VD+4*j+3}]"
            a(f"v_mfma_f32_16x16x32_bf16 v[{VD+4*j}:{VD+4*j+3}], v[{areg}:{areg+3}], v[{st}:{st+3}], {c}")
        perms(0); perms(1)
        for j in range(8):
            if j == 7: a("s_nop 0")
            mm(j)
            if j + 2 < 8: perms(j + 2)

    def select_batch(dst):
        for j in range(8): a(f"v_cndmask_b32 v{dst+j}, v{VD+4*j}, v{VD+4*j+1}, s[{H_G1}:{H_G1+1}]")
        for j in range(8): a(f"v_cndmask_b32 v{dst+j}, v{dst+j}, v{VD+4*j+2}, s[{H_G2}:{H_G2+1}]")
        for j in range(8): a(f"v_cndmask_b32 v{dst+j}, v{dst+j}, v{VD+4*j+3}, s[{H_G3}:{H_G3+1}]")

    def xsum(regs, tmp, sw):
        for i, r in enumerate(regs): a(f"v_mov_b32 v{tmp+i}, v{r}")
        if len(regs) < 3: a("s_nop 1")
        for i, r in enumerate(regs): a(f"v_permlane{sw}_swap_b32 v{r}, v{tmp+i}")
        for i, r in enumerate(regs): a(f"v_add_f32 v{r}, v{r}, v{tmp+i}")

    def read_tag():
        a(f"v_readfirstlane_b32 s{H_T}, v{VT+1}")
        a("s_nop 3")
        a(f"s_add_u32 s{H_T}, s{H_T}, {TAGINC:#x}")
        for i in range(4): a(f"s_bfe_u32 s{H_TB+i}, s{H_T}, {0x80000 + 8*i:#x}")
        a(f"v_mov_b32 v{V_TV}, s{H_T}")

    def qproj_loads(pw):
        srd(H_W, pw, 4 << 20)
        a(f"s_lshr_b32 s6, s2, 5")
        a(f"v_and_b32 v{VT}, 3, v{VC}")
        a(f"v_lshlrev_b32 v{VT}, 10, v{VT}")
        a(f"v_lshl_add_u32 v{VT}, v{VG}, 4, v{VT}")
        a(f"v_lshlrev_b32 v{V_WOFF}, 16, v{VG}")
        a(f"v_lshl_add_u32 v{V_WOFF}, v{VC}, 4, v{V_WOFF}")
        a(f"s_lshl_b32 s7, s6, 7")
        a(f"s_lshl_b32 s{H_SO}, s6, 19")
        a(f"s_lshl_b32 s4, s{H_h}, 8")
        a(f"s_add_u32 s{H_SO}, s{H_SO}, s4")
        a(f"buffer_load_dwordx4 v[{VX}:{VX+3}], v{VT}, s[{H_X}:{H_X+3}], s7 offen nt")
        a(f"buffer_load_dwordx4 v[{VX+4}:{VX+7}], v{VT}, s[{H_X}:{H_X+3}], s7 offen offset:64 nt")
        for tau in range(2):
            for t in range(8):
                r = VW + 32 * tau + 4 * t
                a(f"buffer_load_dwordx4 v[{r}:{r+3}], v{V_WOFF}, s[{H_W}:{H_W+3}], s{H_SO} offen nt")
                if not (tau == 1 and t == 7):
                    step = 8192 if t < 7 else (32 - 7) * 8192
                    a(f"s_add_u32 s{H_SO}, s{H_SO}, {step}")
    def qsplit_loads(hw):
        a("s_cmp_lt_u32 s2, 128")
        a(f"s_cselect_b32 s4, s{P_AWQ}, s{P_BWQ}")
        a(f"s_cselect_b32 s5, s{P_AWQ+1}, s{P_BWQ+1}")
        srd(H_W, 4, 4 << 20)
        a("s_bfe_u32 s6, s2, 0x20005")
        a("s_lshl_b32 s6, s6, 1")
        if hw: a("s_add_u32 s6, s6, 1")
        a(f"v_and_b32 v{VT}, 3, v{VC}")
        a(f"v_lshlrev_b32 v{VT}, 10, v{VT}")
        a(f"v_lshl_add_u32 v{VT}, v{VG}, 4, v{VT}")
        a(f"v_lshlrev_b32 v{V_WOFF}, 16, v{VG}")
        a(f"v_lshl_add_u32 v{V_WOFF}, v{VC}, 4, v{V_WOFF}")
        a(f"s_lshl_b32 s7, s6, 7")
        a(f"s_lshl_b32 s{H_SO}, s6, 19")
        a(f"s_lshl_b32 s4, s{H_h}, 8")
        a(f"s_add_u32 s{H_SO}, s{H_SO}, s4")
        a(f"buffer_load_dwordx4 v[{VX}:{VX+3}], v{VT}, s[{H_X}:{H_X+3}], s7 offen nt")
        a(f"buffer_load_dwordx4 v[{VX+4}:{VX+7}], v{VT}, s[{H_X}:{H_X+3}], s7 offen offset:64 nt")
        for tau in range(2):
            for t in range(8):
                r = VW + 32 * tau + 4 * t
                a(f"buffer_load_dwordx4 v[{r}:{r+3}], v{V_WOFF}, s[{H_W}:{H_W+3}], s{H_SO} offen nt")
                if not (tau == 1 and t == 7):
                    step = 8192 if t < 7 else (32 - 7) * 8192
                    a(f"s_add_u32 s{H_SO}, s{H_SO}, {step}")
    def qsplit_compute():
        a("s_waitcnt vmcnt(8)")
        wt_tile(VW, VX, True)
        a("s_waitcnt vmcnt(0)")
        wt_tile(VW + 32, VX + 4, False)
        read_tag()
        select_batch(VW)
    def qproj_rest(dst, first, publish=True):
        a(f"s_lshl_b32 s7, s{H_h}, 3")
        a("s_add_u32 s7, s7, s6")
        a("s_lshl_b32 s7, s7, 11")
        if dst: a(f"s_add_u32 s7, s7, {dst}")
        a("s_waitcnt vmcnt(8)")
        if diag and first and dst == QA_G:
            a("s_memrealtime s[92:93]")
        wt_tile(VW, VX, True)
        a("s_waitcnt vmcnt(0)")
        wt_tile(VW + 32, VX + 4, False)
        if diag and first and dst == QA_G:
            a("s_waitcnt lgkmcnt(0)")
            a("s_mov_b32 s96, s92") if False else None
        if first: read_tag()
        else: a("s_nop 7")
        select_batch(VW)
        for u in range(2):
            tag4(VW + 4*u)
            if publish:
                a(f"buffer_store_dwordx4 v[{VW+4*u}:{VW+4*u+3}], v{V_B512}, s[{H_WS}:{H_WS+3}], s7 offen offset:{u*256} {sf_qa if dst == QA_G else sf_qbp}")
    def qproj_publish():
        for u in range(2):
            a(f"buffer_store_dwordx4 v[{VW+4*u}:{VW+4*u+3}], v{V_B512}, s[{H_WS}:{H_WS+3}], s7 offen offset:{u*256} {sf_qbp}")

    def merge(q0, sp, ml, r0):
        for w in range(W):
            a(f"ds_read_b128 v[{q0+8+4*w}:{q0+8+4*w+3}], v{V_MR} offset:{sp + w*2048 + r0*512}")
            a(f"ds_read_b128 v[{q0+16+4*w}:{q0+16+4*w+3}], v{V_MM} offset:{ml + w*128 + r0*32}")
            a(f"ds_read_b32 v{q0+24+w}, v{V_MM} offset:{ml + w*128 + r0*32 + 16}")
        a("s_waitcnt lgkmcnt(0)")
        M = q0 + 4; F = q0 + 26; LL = q0 + 6
        a(f"v_max_f32 v{M}, v{q0+24}, v{q0+25}")
        for w in range(W): a(f"v_sub_f32 v{F+w}, v{q0+24+w}, v{M}")
        for w in range(W): a(f"v_mul_f32 v{F+w}, s{H_L2E}, v{F+w}")
        for w in range(W): a(f"v_exp_f32 v{F+w}, v{F+w}")
        for w in range(W):
            l0 = q0 + 16 + 4 * w
            a(f"v_add_f32 v{l0}, v{l0}, v{l0+1}")
            a(f"v_add_f32 v{l0+2}, v{l0+2}, v{l0+3}")
        for i in range(4): a(f"v_mul_f32 v{q0+i}, v{F}, v{q0+8+i}")
        for i in range(4): a(f"v_fmac_f32 v{q0+i}, v{F+1}, v{q0+12+i}")
        tag4(q0)
    def merge_ml(q0):
        M = q0 + 4; F = q0 + 26; LL = q0 + 6
        for w in range(W):
            l0 = q0 + 16 + 4 * w
            a(f"v_add_f32 v{l0}, v{l0}, v{l0+2}")
        a(f"v_mov_b32 v{M+1}, s{H_T}")
        a(f"v_mul_f32 v{LL}, v{F}, v{q0+16}")
        a(f"v_mov_b32 v{M+3}, s{H_T}")
        a(f"v_fmac_f32 v{LL}, v{F+1}, v{q0+20}")

    def perm_addr(headstep):
        a(f"v_bfe_u32 v{VST}, v0, 1, 1")
        a(f"v_lshlrev_b32 v{V_PERM}, 8, v{VST}")
        a(f"v_bfe_u32 v{VST}, v0, 2, 3")
        a(f"v_lshl_add_u32 v{V_PERM}, v{VST}, 5, v{V_PERM}")
        a(f"v_and_b32 v{VST}, 1, v0")
        a(f"v_lshl_add_u32 v{V_PERM}, v{VST}, 4, v{V_PERM}")
        a(f"v_lshrrev_b32 v{VST}, 5, v0")
        a(f"v_and_b32 v{VST+1}, 31, v0")
        a(f"v_lshlrev_b32 v{V_MR}, 4, v{VST+1}")
        if headstep:
            a(f"v_mul_u32_u24 v{VST+1}, {headstep}, v{VST}")
            a(f"v_add_u32 v{V_PERM}, v{V_PERM}, v{VST+1}")
            a(f"v_lshl_add_u32 v{V_MR}, v{VST}, 9, v{V_MR}")
            a(f"v_lshlrev_b32 v{V_MM}, 5, v{VST}")
        else:
            a(f"v_mov_b32 v{V_MM}, 0")

    def wpre_loads(pw, stage):
        srd(H_W, pw, 4 << 20)
        a(f"v_lshlrev_b32 v{V_WOFF}, 10, v{VG}")
        a(f"v_lshl_add_u32 v{V_WOFF}, v{VC}, 4, v{V_WOFF}")
        a(f"s_lshl_b32 s92, s{H_h}, 17")
        a(f"s_lshl_b32 s93, s{H_dh}, 16")
        a("s_add_u32 s92, s92, s93")
        a(f"s_lshl_b32 s93, s{H_cg}, 8")
        a("s_add_u32 s92, s92, s93")
        for tau in range(2):
            for t in range(8):
                r = stage + 32 * tau + 4 * t
                a(f"s_add_u32 s{H_SO}, s92, {(8*t + 4*tau)*1024}")
                a(f"buffer_load_dwordx4 v[{r}:{r+3}], v{V_WOFF}, s[{H_W}:{H_W+3}], s{H_SO} offen nt")
    def wpre_perms(stage, waits=True):
        for tau in range(2):
            if waits: a(f"s_waitcnt vmcnt({8 * (1 - tau)})")
            for j in range(8):
                r, hh = j >> 1, j & 1
                sel = H_SELHI if hh else H_SELLO
                for u in range(4):
                    lo = stage + 32 * tau + 4 * (2 * u) + r
                    hi = stage + 32 * tau + 4 * (2 * u + 1) + r
                    a(f"v_perm_b32 v{VWQ + 32*tau + 4*j + u}, v{hi}, v{lo}, s{sel}")
    def wpre(pw):
        wpre_loads(pw, VW)
        wpre_perms(VW)

    VGP, VGM = VX, VX + 1
    def st2_addr(NP, pbase, mlbase):
        a(f"v_mul_u32_u24 v{VGP}, {32*NP*512}, v{VG}")
        a(f"v_lshl_add_u32 v{VGP}, v{VC}, 4, v{VGP}")
        a(f"v_lshlrev_b32 v{VGM}, 13, v{VG}")
        a(f"v_and_b32 v{VST}, {NP-1}, v{VC}")
        a(f"v_lshl_add_u32 v{VGM}, v{VST}, 7, v{VGM}")
        a(f"s_mul_i32 s42, s{H_h}, {NP*512}")
        a(f"s_lshl_b32 s5, s{H_dh}, 8")
        a("s_add_u32 s42, s42, s5")
        a(f"s_add_u32 s42, s42, {pbase}")
        if NP == 2:
            a(f"s_lshl_b32 s43, s{H_h}, 8")
        else:
            a(f"s_lshr_b32 s43, s{H_h}, 2")
            a("s_lshl_b32 s43, s43, 10")
            a(f"s_and_b32 s5, s{H_h}, 3")
            a("s_lshl_b32 s5, s5, 4")
            a("s_add_u32 s43, s43, s5")
        a(f"s_add_u32 s43, s43, {mlbase}")

    def st2(NP, ob, name, sleep, light):
        Y = VW
        ML = VW + 4 * NP
        ho = fl_st2a if NP == 2 else fl_st2b
        if light and prepoll:
            a("s_cmp_eq_u32 s21, 1")
            a(f"s_cbranch_scc1 L_{name}_have")
        if light:
            lab = f"L_{name}_lp"
            a.label(lab)
            a(f"buffer_load_dwordx4 v[{ML}:{ML+3}], v{VGM}, s[{H_WS}:{H_WS+3}], s43 offen {ho}")
            a("s_waitcnt vmcnt(0)")
            check(lab, fulltags=[ML+1, ML+3], sleep=sleep)
        lab = f"L_{name}_g"
        a.label(lab)
        if not light:
            a(f"buffer_load_dwordx4 v[{ML}:{ML+3}], v{VGM}, s[{H_WS}:{H_WS+3}], s43 offen {ho}")
        for p in range(NP):
            a(f"buffer_load_dwordx4 v[{Y+4*p}:{Y+4*p+3}], v{VGP}, s[{H_WS}:{H_WS+3}], s42 offen offset:{p*512} {ho}")
        if light and prepoll: a.label(f"L_{name}_have")
        a("s_waitcnt vmcnt(0)")
        check(lab, quads=[Y + 4*p for p in range(NP)], fulltags=([] if light else [ML+1, ML+3]), sleep=sleep)
        UNTAG_LATER = [Y + 4*p for p in range(NP)]
        MM, F, LS = VST + 2, VST + 3, VST + 4
        steps = ["quad_perm:[1,0,3,2]"] + (["quad_perm:[2,3,0,1]", "row_half_mirror"] if NP == 8 else [])
        a(f"v_mov_b32 v{MM}, v{ML}")
        pend = [q + i for q in UNTAG_LATER for i in range(4)]
        def fill(n):
            k = 0
            while k < n and pend:
                r = pend.pop(0)
                a(f"v_perm_b32 v{r}, v{r}, v{V_C80}, s{H_ST}"); k += 1
            if k < n: a(f"s_nop {n - k - 1}")
        for st in steps:
            fill(2)
            a(f"v_max_f32_dpp v{MM}, v{MM}, v{MM} {st} row_mask:0xf bank_mask:0xf")
        a(f"v_sub_f32 v{F}, v{ML}, v{MM}")
        a(f"v_mul_f32 v{F}, s{H_L2E}, v{F}")
        a(f"v_exp_f32 v{F}, v{F}")
        a(f"v_lshlrev_b32 v{VT}, 3, v0")
        a(f"v_mul_f32 v{LS}, v{F}, v{ML+2}")
        for st in steps:
            fill(2)
            a(f"v_add_f32_dpp v{LS}, v{LS}, v{LS} {st} row_mask:0xf bank_mask:0xf")
        a(f"v_rcp_f32 v{LS}, v{LS}")
        fill(len(pend)) if pend else None
        a(f"v_mul_f32 v{F}, v{V_GS}, v{F}")
        a(f"v_and_b32 v{VT+1}, 3, v{VC}")
        a(f"v_mul_f32 v{F}, v{F}, v{LS}")
        a(f"v_lshlrev_b32 v{VT+1}, 7, v{VT+1}")
        a(f"v_lshl_add_u32 v{VT+1}, v{VG}, 4, v{VT+1}")
        O = VST + 4
        for i in range(4):
            a(f"v_mul_f32_dpp v{O+i}, v{F}, v{Y+i} row_newbcast:0 row_mask:0xf bank_mask:0xf")
        for p in range(1, NP):
            for i in range(4):
                a(f"v_fmac_f32_dpp v{O+i}, v{F}, v{Y+4*p+i} row_newbcast:{p} row_mask:0xf bank_mask:0xf")
        a(f"v_cvt_pk_bf16_f32 v{O}, v{O}, v{O+1}")
        a(f"v_cvt_pk_bf16_f32 v{O+1}, v{O+2}, v{O+3}")
        a(f"ds_write_b64 v{VT}, v[{O}:{O+1}] offset:{ob}")
        a("s_waitcnt lgkmcnt(0)")
        for tau in range(2):
            a(f"ds_read_b128 v[{VX+4*tau}:{VX+4*tau+3}], v{VT+1} offset:{ob + 64*tau}")
        a("s_waitcnt lgkmcnt(0)")
        for tau in range(2):
            for j in range(8):
                c = "0" if tau == 0 else f"v[{VD+4*j}:{VD+4*j+3}]"
                wr = VWQ + 32 * tau + 4 * j
                a(f"v_mfma_f32_16x16x32_bf16 v[{VD+4*j}:{VD+4*j+3}], v[{VX+4*tau}:{VX+4*tau+3}], v[{wr}:{wr+3}], {c}")

    NB = 4 + (1 if b0 else 0) + (1 if b0b else 0) + 1 + (1 if bm is not None else 0) + (1 if split else 0)
    if flags: NB -= 2 + (1 if bm is not None else 0)
    a.label("L_H")
    a("; ---------------- H waves ----------------")
    if noH:
        if flags:
            for _ in range(NB - 2): a("s_barrier")
            a("v_mov_b32 v10, 0")
            a("v_mov_b32 v11, 1")
            a(f"ds_write_b32 v10, v11 offset:{L_F}")
            a("s_waitcnt lgkmcnt(0)")
            a("s_barrier"); a("s_barrier")
        else:
            for _ in range(NB): a("s_barrier")
        a("s_branch L_end")
    srd(H_WS, P_WS, WS_USED)
    srd(H_X, P_X, 4096)
    a(f"v_mov_b32 v{VT}, {EPOCH:#x}")
    a(f"buffer_load_dword v{VT+1}, v{VT}, s[{H_WS}:{H_WS+3}], 0 offen sc1")
    a(f"s_and_b32 s{H_h}, s2, 31")
    a(f"s_mov_b32 s{H_SELLO}, {SEL_LO:#x}")
    a(f"s_mov_b32 s{H_SELHI}, {SEL_HI:#x}")
    def h_consts():
        a(f"s_mov_b32 s{H_G1}, 0xffff0000")
        a(f"s_mov_b32 s{H_G1+1}, 0")
        a(f"s_mov_b32 s{H_G2}, 0")
        a(f"s_mov_b32 s{H_G2+1}, 0x0000ffff")
        a(f"s_mov_b32 s{H_G3}, 0")
        a(f"s_mov_b32 s{H_G3+1}, 0xffff0000")
        a(f"s_mov_b32 s{H_L2E}, {LOG2E:#x}")
        a(f"s_mov_b32 s{H_MHI}, 0xffff0000")
        a(f"s_mov_b32 s{H_CNT}, {maxpoll}")
        if dry: a(f"s_mov_b32 s{H_DRY}, 0")
        for i in range(4): a(f"s_mov_b32 s{H_ST+i}, {0x07060500 + i:#x}")
        a(f"s_lshr_b32 s{H_b}, s2, 5")
        a(f"s_and_b32 s{H_dh}, s{H_b}, 1")
        a(f"s_and_b32 s{H_b}, s{H_b}, 3")
        a(f"s_lshr_b32 s{H_cg}, s2, 6")
        a(f"s_lshl_b32 s{H_i2}, s{H_h}, 1")
        a(f"s_add_u32 s{H_i2}, s{H_i2}, s{H_dh}")
        a(f"v_lshlrev_b32 v{V_L16}, 4, v0")
        a(f"v_mov_b32 v{V_C80}, 0x80808080")
        a(f"v_lshlrev_b32 v{V_B512}, 9, v{VG}")
        a(f"v_lshl_add_u32 v{V_B512}, v{VC}, 4, v{V_B512}")
    a(f"s_cmp_eq_u32 s3, {W}")
    a("s_cbranch_scc0 L_H1")

    VQB = VW + 16
    if split:
        qsplit_loads(0)
        if b0: a("s_barrier")
        stamp(0, HST, start=True)
        h_consts()
        qsplit_compute()
        a(f"v_lshlrev_b32 v{VT}, 5, v0")
        a("s_barrier")
        a(f"ds_read_b128 v[{VW+8}:{VW+11}], v{VT} offset:{L_QX}")
        a(f"ds_read_b128 v[{VW+12}:{VW+15}], v{VT} offset:{L_QX + 16}")
        a(f"s_lshl_b32 s95, s{H_h}, 2")
        a("s_bfe_u32 s5, s2, 0x20005")
        a("s_add_u32 s95, s95, s5")
        a("s_lshl_b32 s95, s95, 11")
        a(f"s_mov_b32 s4, {QA_G}")
        a("s_cmp_lt_u32 s2, 128")
        a(f"s_cselect_b32 s5, s4, {QBP_G}")
        a("s_add_u32 s95, s95, s5")
        a("s_waitcnt lgkmcnt(0)")
        for i in range(8): a(f"v_add_f32 v{VW+i}, v{VW+i}, v{VW+8+i}")
        for u in range(2): tag4(VQB + 4*u, [VW + 4*u + i for i in range(4)])
        a("s_cmp_lt_u32 s2, 128")
        a("s_cbranch_scc0 L_noqapub")
        for u in range(2):
            a(f"buffer_store_dwordx4 v[{VQB+4*u}:{VQB+4*u+3}], v{V_B512}, s[{H_WS}:{H_WS+3}], s95 offen offset:{u*256} {sf_qa}")
        a.label("L_noqapub")
        stamp(1, HST)
        a(f"v_lshrrev_b32 v{VT}, 5, v0")
        a(f"v_lshlrev_b32 v{VT}, 11, v{VT}")
        a(f"v_and_b32 v{VT+1}, 31, v0")
        a(f"v_lshl_add_u32 v{VT}, v{VT+1}, 4, v{VT}")
        a(f"s_lshl_b32 s4, s{H_h}, 13")
        a(f"s_lshl_b32 s5, s{H_b}, 9")
        a("s_add_u32 s4, s4, s5")
        a(f"s_add_u32 s4, s4, {QA_G}")
        a("s_add_u32 s5, s4, 4096")
        NQ = 2
    else:
        qproj_loads(P_AWQ)
        if b0 and b0pos == 0: a("s_barrier")
        stamp(0, HST, start=True)
        h_consts()
        if b0 and b0pos == 1:
            a("s_waitcnt vmcnt(16)")
            a("s_barrier")
        if b0 and b0pos == 2:
            a("s_waitcnt vmcnt(8)")
            a("s_barrier")
        qproj_rest(QA_G, True)
        stamp(1, HST)
        if diag:
            a("s_mov_b32 s73, s72")
            a("s_mov_b32 s72, s94"); stamp(11, HST, start=True)
            a("s_mov_b32 s72, s92"); stamp(12, HST, start=True)
            a("s_mov_b32 s72, s73")
        a(f"v_lshrrev_b32 v{VT}, 5, v0")
        a(f"v_lshlrev_b32 v{VT}, 11, v{VT}")
        a(f"v_and_b32 v{VT+1}, 31, v0")
        a(f"v_lshl_add_u32 v{VT}, v{VT+1}, 4, v{VT}")
        a(f"s_lshl_b32 s4, s{H_h}, 14")
        a(f"s_lshl_b32 s5, s{H_b}, 9")
        a("s_add_u32 s4, s4, s5")
        if QA_G: a(f"s_add_u32 s4, s4, {QA_G}")
        a("s_add_u32 s5, s4, 4096")
        a("s_add_u32 s6, s4, 8192")
        a("s_add_u32 s7, s4, 12288")
        NQ = 4
    if qaack: a("s_waitcnt vmcnt(0)")
    stamp(9, HST)
    def qa_loads():
        for k in range(NQ):
            a(f"buffer_load_dwordx4 v[{VW+4*k}:{VW+4*k+3}], v{VT}, s[{H_WS}:{H_WS+3}], s{4+k} offen {fl_qa}")
    EARLY = early and "wpre" not in skip
    if b0bpos == 0:
        qa_loads()
        if EARLY: wpre_loads(P_AWO, VW + 32)
        if b0b: a("s_barrier")
        if EARLY: a("s_waitcnt vmcnt(16)")
        else: a("s_waitcnt vmcnt(0)")
        a("s_branch L_qa_first")
        a.label("L_qa_retry")
        qa_loads()
        a("s_waitcnt vmcnt(0)")
        a.label("L_qa_first")
        check("L_qa_retry", quads=[VW + 4*k for k in range(NQ)], sleep=qsleep)
    else:
        if not qpipe:
            a.label("L_qa_retry")
            qa_loads()
            a("s_waitcnt vmcnt(0)")
            check("L_qa_retry", quads=[VW + 4*k for k in range(NQ)], sleep=qsleep)
        else:
            QB2 = VW + 16
            def loads_to(base):
                for k in range(NQ):
                    a(f"buffer_load_dwordx4 v[{base+4*k}:{base+4*k+3}], v{VT}, s[{H_WS}:{H_WS+3}], s{4+k} offen {fl_qa}")
            def valid(base, lab_ok):
                acc = VST
                first = True
                for k in range(NQ):
                    for i in range(4):
                        if first: a(f"v_xor_b32 v{acc}, s{H_TB+i}, v{base+4*k+i}"); first = False
                        else: a(f"v_bitop3_b32 v{acc}, v{acc}, v{base+4*k+i}, s{H_TB+i} bitop3:0xf6")
                a(f"v_and_b32 v{acc}, 0xff, v{acc}")
                a(f"v_cmp_ne_u32 vcc, 0, v{acc}")
                a(f"s_cbranch_vccz {lab_ok}")
            loads_to(VW)
            a("s_waitcnt vmcnt(0)")
            valid(VW, "L_qa_okA")
            loads_to(VW)
            a(f"s_sleep {qpipe}")
            a.label("L_qa_loop")
            loads_to(QB2)
            a(f"s_waitcnt vmcnt({NQ})")
            valid(VW, "L_qa_okA_drain")
            loads_to(VW)
            a(f"s_waitcnt vmcnt({NQ})")
            valid(QB2, "L_qa_okB")
            a(f"s_sub_u32 s{H_CNT}, s{H_CNT}, 1")
            a(f"s_cmp_eq_u32 s{H_CNT}, 0")
            a("s_cbranch_scc0 L_qa_loop")
            QC = VW + 96
            a.label("L_qa_okB")
            for i in range(4 * NQ): a(f"v_perm_b32 v{QC+i}, v{QB2+i}, v{V_C80}, s{H_ST}")
            a("s_branch L_qa_have")
            a.label("L_qa_okA_drain")
            a.label("L_qa_okA")
            for i in range(4 * NQ): a(f"v_perm_b32 v{QC+i}, v{VW+i}, v{V_C80}, s{H_ST}")
            a.label("L_qa_have")
        if b0b and b0bpos in (1, 3): a("s_barrier")
        if EARLY and b0bpos != 3: wpre_loads(P_AWO, VW + 32)
        if b0b and b0bpos == 2: a("s_barrier")
    if diag:
        a(f"s_sub_u32 s72, {maxpoll}, s{H_CNT}")
        stamp(10, HST, start=True)
    QF = (VW + 96) if (qpipe and b0bpos != 0) else VW
    if QF == VW: untag([VW + 4*k for k in range(NQ)])
    if NQ == 4:
        for i in range(4):
            a(f"v_add_f32 v{QF+i}, v{QF+i}, v{QF+4+i}")
            a(f"v_add_f32 v{QF+8+i}, v{QF+8+i}, v{QF+12+i}")
        for i in range(4): a(f"v_add_f32 v{QF+i}, v{QF+i}, v{QF+8+i}")
    else:
        for i in range(4): a(f"v_add_f32 v{QF+i}, v{QF+i}, v{QF+4+i}")
    xsum([QF + i for i in range(4)], QF + 4, "32")
    a(f"v_lshlrev_b32 v{VT}, 4, v{VC}")
    a(f"v_bfe_u32 v{VT+1}, v0, 4, 1")
    a(f"v_lshl_add_u32 v{VT}, v{VT+1}, 3, v{VT}")
    a(f"v_cvt_pk_bf16_f32 v{QF}, v{QF}, v{QF+1}")
    a(f"v_cvt_pk_bf16_f32 v{QF+1}, v{QF+2}, v{QF+3}")
    a(f"ds_write_b64 v{VT}, v[{QF}:{QF+1}] offset:{L_QA}")
    a("s_waitcnt lgkmcnt(0)")
    stamp(2, HST)
    a("s_barrier")
    if split:
        a("s_cmp_lt_u32 s2, 128")
        a("s_cbranch_scc1 L_noqbpub")
        for u in range(2):
            a(f"buffer_store_dwordx4 v[{VQB+4*u}:{VQB+4*u+3}], v{V_B512}, s[{H_WS}:{H_WS+3}], s95 offen offset:{u*256} {sf_qbp}")
        a.label("L_noqbpub")
        if EARLY: a("s_waitcnt vmcnt(0)")
    if EARLY and b0bpos == 3: wpre_loads(P_AWO, VW + 32)
    if EARLY and split: wpre_perms(VW + 32, waits=False)
    elif EARLY: wpre_perms(VW + 32)
    elif "wpre" not in skip: wpre(P_AWO)
    perm_addr(0)
    st2_addr(2, OA_G, OA_ML)
    a("s_lshr_b32 s5, s2, 7")
    a(f"s_lshl_b32 s6, s{H_b}, 5")
    a(f"s_add_u32 s6, s6, s{H_h}")
    a("s_lshl_b32 s6, s6, 1")
    a("s_add_u32 s6, s6, s5")
    a("s_lshl_b32 s40, s6, 9")
    a(f"s_add_u32 s40, s40, {OA_G}")
    a("s_lshl_b32 s41, s6, 7")
    a(f"s_add_u32 s41, s41, {OA_ML}")
    stamp(3, HST)
    if "t0" in dry:
        a(f"s_mov_b32 s{H_DRY}, 1")
        a(f"s_mov_b32 s{H_WS+2}, 0")
        a("s_branch L_tail_h0")
        a.label("L_after_dry_h0")
        a(f"s_mov_b32 s{H_DRY}, 0")
        a(f"s_mov_b32 s{H_WS+2}, {WS_USED}")
        st2_addr(2, OA_G, OA_ML)
    if not flags:
        if bm is not None: a("s_barrier")
        a("s_barrier")
        a(f"v_lshlrev_b32 v{VT}, 3, v{VG}")
        a(f"ds_read_b32 v{V_GS}, v{VT} offset:{L_G}")
        a("s_waitcnt lgkmcnt(0)")
        a("s_barrier")
        a("s_barrier")
    else:
        a("s_barrier")
        a(f"v_lshlrev_b32 v{VT}, 3, v{VG}")
        a(f"ds_read_b32 v{V_GS}, v{VT} offset:{L_G}")
        a("s_waitcnt lgkmcnt(0)")
    a("s_barrier")
    stamp(4, HST)
    if "tail" in skip: a("s_branch L_hend")
    a.label("L_tail_h0")
    merge(VW, L_SPA, L_MLA, 0)
    a("s_mov_b32 exec_hi, 0")
    a(f"buffer_store_dwordx4 v[{VW}:{VW+3}], v{V_PERM}, s[{H_WS}:{H_WS+3}], s40 offen {sf_oa}")
    a("s_mov_b64 exec, -1")
    merge_ml(VW)
    a("s_mov_b64 exec, 0xff")
    a(f"buffer_store_dwordx4 v[{VW+4}:{VW+7}], v{V_L16}, s[{H_WS}:{H_WS+3}], s41 offen {sf_oa}")
    a("s_mov_b64 exec, -1")
    stamp(5, HST)
    st2(2, L_OBA, "st2a", tailsleep, False)
    a(f"s_lshl_b32 s4, s{H_cg}, 6")
    a(f"s_add_u32 s4, s4, s{H_i2}")
    a("s_lshl_b32 s4, s4, 11")
    a(f"s_add_u32 s4, s4, {Y_G}")
    a(f"v_lshlrev_b32 v{VT}, 5, v0")
    stamp(6, HST)
    if not nob5:
        if "t0" in dry:
            a(f"s_cmp_eq_u32 s{H_DRY}, 1")
            a("s_cbranch_scc1 L_nob5_h0")
        a("s_barrier")
        if "t0" in dry: a.label("L_nob5_h0")
    a(f"ds_read_b128 v[{VW+8}:{VW+11}], v{VT} offset:{L_YB}")
    a(f"ds_read_b128 v[{VW+12}:{VW+15}], v{VT} offset:{L_YB + 16}")
    a("s_nop 3")
    select_batch(VW)
    a("s_waitcnt lgkmcnt(0)")
    for u in range(2):
        for i in range(4): a(f"v_add_f32 v{VW+4*u+i}, v{VW+4*u+i}, v{VW+8+4*u+i}")
        tag4(VW + 4*u)
        a(f"buffer_store_dwordx4 v[{VW+4*u}:{VW+4*u+3}], v{V_B512}, s[{H_WS}:{H_WS+3}], s4 offen offset:{u*256} {sf_y}")
    stamp(7, HST)
    a(f"v_lshrrev_b32 v{VT}, 1, v0")
    a(f"v_lshlrev_b32 v{VT}, 11, v{VT}")
    a(f"v_and_b32 v{VT+1}, 1, v0")
    a(f"v_lshl_add_u32 v{VT}, v{VT+1}, 4, v{VT}")
    a("s_bfe_u32 s4, s2, 0x20004")
    a("s_lshl_b32 s4, s4, 17")
    a("s_lshr_b32 s5, s2, 6")
    a("s_lshl_b32 s5, s5, 9")
    a("s_add_u32 s4, s4, s5")
    a("s_bfe_u32 s5, s2, 0x10003")
    a("s_lshl_b32 s5, s5, 8")
    a("s_add_u32 s4, s4, s5")
    a("s_and_b32 s5, s2, 7")
    a("s_lshl_b32 s5, s5, 5")
    a("s_add_u32 s4, s4, s5")
    a(f"s_add_u32 s4, s4, {Y_G}")
    a("s_add_u32 s5, s4, 65536")
    Y = VW + 16
    a.label("L_fin")
    a(f"buffer_load_dwordx4 v[{Y}:{Y+3}], v{VT}, s[{H_WS}:{H_WS+3}], s4 offen {fl_fin}")
    a(f"buffer_load_dwordx4 v[{Y+4}:{Y+7}], v{VT}, s[{H_WS}:{H_WS+3}], s5 offen {fl_fin}")
    a("s_lshr_b32 s6, s2, 6")
    a("s_lshl_b32 s6, s6, 10")
    a("s_bfe_u32 s7, s2, 0x20004")
    a("s_lshl_b32 s7, s7, 8")
    a("s_add_u32 s6, s6, s7")
    a("s_and_b32 s7, s2, 7")
    a("s_lshl_b32 s7, s7, 5")
    a("s_add_u32 s6, s6, s7")
    a("s_bfe_u32 s7, s2, 0x10003")
    a("s_lshl_b32 s7, s7, 3")
    a("s_add_u32 s6, s6, s7")
    srd(H_W, P_OUT, 4096)
    if "t0" in dry:
        a(f"s_cmp_eq_u32 s{H_DRY}, 1")
        a(f"s_cselect_b32 s{H_W+2}, 0, 4096")
    a("s_waitcnt vmcnt(0)")
    check("L_fin", quads=[Y, Y + 4], sleep=tailsleep)
    untag([Y, Y + 4])
    for i in range(4): a(f"v_add_f32 v{Y+i}, v{Y+i}, v{Y+4+i}")
    for st in ("quad_perm:[2,3,0,1]", "row_ror:4", "row_ror:8"):
        for i in range(4): a(f"v_add_f32_dpp v{Y+i}, v{Y+i}, v{Y+i} {st} row_mask:0xf bank_mask:0xf")
    xsum([Y + i for i in range(4)], Y + 4, "16")
    xsum([Y + i for i in range(4)], Y + 4, "32")
    a(f"v_lshlrev_b32 v{VT}, 4, v{VT+1}")
    a(f"v_cvt_pk_bf16_f32 v{Y}, v{Y}, v{Y+1}")
    a(f"v_cvt_pk_bf16_f32 v{Y+1}, v{Y+2}, v{Y+3}")
    a("s_mov_b64 exec, 3")
    a(f"buffer_store_dwordx2 v[{Y}:{Y+1}], v{VT}, s[{H_W}:{H_W+3}], s6 offen {outflags}".rstrip())
    a("s_cmp_eq_u32 s2, 0")
    a("s_cbranch_scc0 L_noep")
    a("s_mov_b64 exec, 1")
    a(f"v_mov_b32 v{VT}, {EPOCH:#x}")
    a(f"buffer_store_dword v{V_TV}, v{VT}, s[{H_WS}:{H_WS+3}], 0 offen sc1")
    a.label("L_noep")
    a("s_mov_b64 exec, -1")
    stamp(8, HST)
    if "t0" in dry:
        a(f"s_cmp_eq_u32 s{H_DRY}, 1")
        a("s_cbranch_scc1 L_after_dry_h0")
    if lite:
        a("s_memrealtime s[74:75]")
        a("s_waitcnt lgkmcnt(0)")
        a(f"v_mov_b32 v{HST}, s72")
        a(f"v_mov_b32 v{HST+1}, s74")
        a("s_lshl_b32 s76, s2, 3")
        a(f"s_add_u32 s76, s76, {DIAG}")
        a(f"v_mov_b32 v{VT}, s76")
        a("s_mov_b64 exec, 1")
        a(f"global_store_dwordx2 v{VT}, v[{HST}:{HST+1}], s[{P_WS}:{P_WS+1}]")
        a("s_mov_b64 exec, -1")
    a("s_branch L_hend")

    a.label("L_H1")
    if touch:
        a(f"v_mov_b32 v{VX}, {Y_G + 0x70000:#x}")
        a(f"buffer_load_dword v{VX+1}, v{VX}, s[{H_WS}:{H_WS+3}], 0 offen nt")
    if split:
        qsplit_loads(1)
        if b0: a("s_barrier")
        stamp(0, HST, start=True)
        h_consts()
        qsplit_compute()
        a(f"v_lshlrev_b32 v{VT}, 5, v0")
        a(f"ds_write_b128 v{VT}, v[{VW}:{VW+3}] offset:{L_QX}")
        a(f"ds_write_b128 v{VT}, v[{VW+4}:{VW+7}] offset:{L_QX + 16}")
        a("s_waitcnt lgkmcnt(0)")
        a("s_barrier")
        if "wpre" not in skip: wpre_loads(P_BWO, VW + 32)
        if b0b: a("s_barrier")
        a("s_barrier")
        stamp(1, HST)
        if "wpre" not in skip:
            a("s_waitcnt vmcnt(0)")
            wpre_perms(VW + 32, waits=False)
    elif early == 2:
        assert b0b and b0bpos >= 1
        if b0: a("s_barrier")
        stamp(0, HST, start=True)
        h_consts()
        a("s_waitcnt vmcnt(0)")
        read_tag()
        a("s_barrier")
        if b0bpos == 3: a("s_barrier")
        qproj_loads(P_BWQ)
        wpre_loads(P_BWO, VW + 64)
        if b0bpos != 3: a("s_barrier")
        a(f"s_lshl_b32 s7, s{H_h}, 3")
        a("s_add_u32 s7, s7, s6")
        a("s_lshl_b32 s7, s7, 11")
        a(f"s_add_u32 s7, s7, {QBP_G}")
        a("s_waitcnt vmcnt(24)")
        wt_tile(VW, VX, True)
        a("s_waitcnt vmcnt(16)")
        wt_tile(VW + 32, VX + 4, False)
        a("s_nop 7")
        select_batch(VW)
        for u in range(2): tag4(VW + 4*u)
        qproj_publish()
        stamp(1, HST)
        a("s_waitcnt vmcnt(0)")
        wpre_perms(VW + 64, waits=False)
    elif early and "j2" not in skip:
        if not h1late: qproj_loads(P_BWQ)
        if b0: a("s_barrier")
        if h1late: qproj_loads(P_BWQ)
        stamp(0, HST, start=True)
        h_consts()
        qproj_rest(QBP_G, True, publish=False)
        if b0bpos == 0 or not b0b:
            if "wpre" not in skip: wpre_loads(P_BWO, VW + 32)
            if b0b: a("s_barrier")
        else:
            a("s_barrier")
            if "wpre" not in skip and b0bpos != 3: wpre_loads(P_BWO, VW + 32)
        a("s_barrier")
        if "wpre" not in skip and b0bpos == 3 and b0b: wpre_loads(P_BWO, VW + 32)
        qproj_publish()
        stamp(1, HST)
        if "wpre" not in skip:
            a("s_waitcnt vmcnt(2)") if not diag else a("s_waitcnt vmcnt(0)")
            wpre_perms(VW + 32, waits=False)
    else:
        if b0: a("s_barrier")
        stamp(0, HST, start=True)
        h_consts()
        a("s_waitcnt vmcnt(0)")
        read_tag()
        if b0b: a("s_barrier")
        a("s_barrier")
        if "j2" not in skip:
            qproj_loads(P_BWQ)
            qproj_rest(QBP_G, False)
        stamp(1, HST)
        if "wpre" not in skip: wpre(P_BWO)
    srd(H_W, P_GATE, 1024)
    for b in range(4):
        a(f"buffer_load_dwordx4 v[{VW+4*b}:{VW+4*b+3}], v{V_L16}, s[{H_X}:{H_X+3}], 0 offen offset:{b*1024} nt")
    GWR = VW + 16
    a(f"buffer_load_dwordx4 v[{GWR}:{GWR+3}], v{V_L16}, s[{H_W}:{H_W+3}], 0 offen nt")
    a("s_waitcnt vmcnt(0)")
    GW = VW + 20
    for i in range(4):
        a(f"v_lshlrev_b32 v{GW+2*i}, 16, v{GWR+i}")
        a(f"v_and_b32 v{GW+2*i+1}, s{H_MHI}, v{GWR+i}")
    XU = VW + 28
    Z = VW + 36
    for b in range(4):
        for i in range(4):
            a(f"v_lshlrev_b32 v{XU+2*i}, 16, v{VW+4*b+i}")
            a(f"v_and_b32 v{XU+2*i+1}, s{H_MHI}, v{VW+4*b+i}")
        for i in range(8): a(f"v_mul_f32 v{XU+i}, v{XU+i}, v{GW+i}")
        for i in range(4): a(f"v_cvt_pk_bf16_f32 v{VW+4*b+i}, v{XU+2*i}, v{XU+2*i+1}")
        for i in range(4):
            a(f"v_lshlrev_b32 v{XU+2*i}, 16, v{VW+4*b+i}")
            a(f"v_and_b32 v{XU+2*i+1}, s{H_MHI}, v{VW+4*b+i}")
        for i in range(4): a(f"v_add_f32 v{XU+i}, v{XU+i}, v{XU+4+i}")
        a(f"v_add_f32 v{XU}, v{XU}, v{XU+2}")
        a(f"v_add_f32 v{XU+1}, v{XU+1}, v{XU+3}")
        a(f"v_add_f32 v{Z+b}, v{XU}, v{XU+1}")
    for rot in (8, 4, 2, 1):
        a("s_nop 0")
        for b in range(4):
            a(f"v_add_f32_dpp v{Z+b}, v{Z+b}, v{Z+b} row_ror:{rot} row_mask:0xf bank_mask:0xf")
    xsum([Z + b for b in range(4)], Z + 4, "32")
    xsum([Z + b for b in range(4)], Z + 4, "16")
    for b in range(4): a(f"v_cvt_pk_bf16_f32 v{Z+b}, v{Z+b}, v{Z+b}")
    for b in range(4): a(f"v_lshlrev_b32 v{Z+b}, 16, v{Z+b}")
    for b in range(4): a(f"v_mul_f32 v{Z+b}, s{H_L2E}, v{Z+b}")
    for b in range(4): a(f"v_sub_f32 v{Z+b}, 0, v{Z+b}")
    for b in range(4): a(f"v_exp_f32 v{Z+b}, v{Z+b}")
    a("s_nop 0")
    for b in range(4): a(f"v_add_f32 v{Z+b}, 1.0, v{Z+b}")
    for b in range(4): a(f"v_rcp_f32 v{Z+b}, v{Z+b}")
    a("s_nop 0")
    for b in range(4): a(f"v_cvt_pk_bf16_f32 v{Z+b}, v{Z+b}, v{Z+b}")
    GG = Z + 8
    for b in range(4): a(f"v_lshlrev_b32 v{GG+2*b}, 16, v{Z+b}")
    for b in range(4): a(f"v_sub_f32 v{GG+2*b+1}, 1.0, v{GG+2*b}")
    for b in range(4): a(f"v_cvt_pk_bf16_f32 v{GG+2*b+1}, v{GG+2*b+1}, v{GG+2*b+1}")
    for b in range(4): a(f"v_lshlrev_b32 v{GG+2*b+1}, 16, v{GG+2*b+1}")
    a(f"v_mov_b32 v{VT}, 0")
    a("s_mov_b64 exec, 1")
    a(f"ds_write_b128 v{VT}, v[{GG}:{GG+3}] offset:{L_G}")
    a(f"ds_write_b128 v{VT}, v[{GG+4}:{GG+7}] offset:{L_G + 16}")
    a("s_mov_b64 exec, -1")
    a("s_waitcnt lgkmcnt(0)")
    a(f"v_lshlrev_b32 v{VT}, 3, v{VG}")
    a(f"ds_read_b32 v{V_GS}, v{VT} offset:{L_G + 4}")
    stamp(2, HST)
    if "j3" not in skip:
        a(f"v_lshlrev_b32 v{VT}, 11, v{VG}")
        a(f"v_lshl_add_u32 v{VT}, v{VC}, 4, v{VT}")
        a(f"s_lshl_b32 s4, s{H_h}, {13 if split else 14}")
        a(f"s_lshl_b32 s5, s{H_b}, 9")
        a("s_add_u32 s4, s4, s5")
        a("s_lshr_b32 s6, s2, 7")
        a("s_lshl_b32 s5, s6, 8")
        a("s_add_u32 s4, s4, s5")
        a(f"s_add_u32 s4, s4, {QBP_G}")
        a("s_add_u32 s5, s4, 8192")
        a.label("L_qbc")
        a(f"buffer_load_dwordx4 v[{VW}:{VW+3}], v{VT}, s[{H_WS}:{H_WS+3}], s4 offen {fl_qbc}")
        if not split:
            a(f"buffer_load_dwordx4 v[{VW+4}:{VW+7}], v{VT}, s[{H_WS}:{H_WS+3}], s5 offen {fl_qbc}")
        a("s_waitcnt vmcnt(0)")
        check("L_qbc", quads=([VW] if split else [VW, VW + 4]), sleep=midsleep)
        untag([VW] if split else [VW, VW + 4])
        if not split:
            for i in range(4): a(f"v_add_f32 v{VW+i}, v{VW+i}, v{VW+4+i}")
        xsum([VW + i for i in range(4)], VW + 4, "32")
        xsum([VW + i for i in range(4)], VW + 4, "16")
        a(f"v_cvt_pk_bf16_f32 v{VW}, v{VW}, v{VW+1}")
        a(f"v_cvt_pk_bf16_f32 v{VW+2}, v{VW+2}, v{VW+3}")
        a(f"v_mov_b32 v{VW+1}, s{H_T}")
        a(f"v_mov_b32 v{VW+3}, s{H_T}")
        a(f"s_lshl_b32 s4, s{H_h}, 11")
        a(f"s_lshl_b32 s5, s{H_b}, 9")
        a("s_add_u32 s4, s4, s5")
        a("s_lshl_b32 s5, s6, 8")
        a("s_add_u32 s4, s4, s5")
        a(f"s_add_u32 s4, s4, {QBF_G}")
        a("s_mov_b64 exec, 0xffff")
        a(f"buffer_store_dwordx4 v[{VW}:{VW+3}], v{V_L16}, s[{H_WS}:{H_WS+3}], s4 offen {sf_qbf}")
        a("s_mov_b64 exec, -1")
        stamp(3, HST)
        if bm is not None:
            if flags:
                a(f"v_mov_b32 v{VST+2}, 0")
                lds_wait(4, VST, VST + 2, sleep=16)
            else: a("s_barrier")
        a(f"v_lshlrev_b32 v{VT}, 11, v{VG}")
        a(f"v_lshl_add_u32 v{VT}, v{VC}, 4, v{VT}")
        a("s_bfe_u32 s4, s2, 0x30003")
        a("s_lshl_b32 s4, s4, 13")
        a("s_lshr_b32 s5, s2, 6")
        a("s_lshl_b32 s5, s5, 9")
        a("s_add_u32 s4, s4, s5")
        a(f"s_add_u32 s4, s4, {QBF_G}")
        a.label("L_qbg")
        for u in range(2):
            a(f"buffer_load_dwordx4 v[{VW+8+4*u}:{VW+8+4*u+3}], v{VT}, s[{H_WS}:{H_WS+3}], s4 offen offset:{u*256} {fl_qbg}")
        a("s_waitcnt vmcnt(0)")
        check("L_qbg", fulltags=[VW+9, VW+11, VW+13, VW+15], sleep=midsleep)
        a(f"v_lshlrev_b32 v{VT}, 8, v{VG}")
        a(f"v_lshl_add_u32 v{VT}, v{VC}, 4, v{VT}")
        for u in range(2):
            a(f"v_mov_b32 v{VW+8+4*u+1}, v{VW+8+4*u+2}")
            a(f"ds_write_b64 v{VT}, v[{VW+8+4*u}:{VW+8+4*u+1}] offset:{L_QB + 8*u}")
    elif bm is not None and not flags: a("s_barrier")
    a("s_waitcnt lgkmcnt(0)")
    if flags:
        a(f"v_mov_b32 v{VST+2}, 0")
        a(f"v_mov_b32 v{VST+3}, 1")
        lds_set(0, VST + 3, VST + 2)
    perm_addr(4096)
    st2_addr(8, GP_G, GP_ML)
    a("s_lshr_b32 s4, s2, 6")
    a("s_lshl_b32 s4, s4, 8")
    a("s_bfe_u32 s5, s2, 0x30003")
    a("s_lshl_b32 s5, s5, 5")
    a("s_add_u32 s4, s4, s5")
    a("s_and_b32 s5, s2, 7")
    a("s_add_u32 s4, s4, s5")
    a("s_lshl_b32 s40, s4, 9")
    a(f"s_add_u32 s40, s40, {GP_G}")
    a("s_lshl_b32 s41, s2, 7")
    a(f"s_add_u32 s41, s41, {GP_ML}")
    stamp(4, HST)
    if "t1" in dry:
        a(f"s_mov_b32 s{H_DRY}, 1")
        a(f"s_mov_b32 s{H_WS+2}, 0")
        a("s_mov_b32 s21, 0")
        a("s_branch L_tail_h1")
        a.label("L_after_dry_h1")
        a(f"s_mov_b32 s{H_DRY}, 0")
        a(f"s_mov_b32 s{H_WS+2}, {WS_USED}")
        st2_addr(8, GP_G, GP_ML)
    if flags:
        a(f"v_mov_b32 v{VST+2}, 0")
        lds_wait(8, VST, VST + 2, sleep=8, n=2)
    else:
        a("s_barrier")
        a("s_barrier")
    for rr in range(2):
        merge(VW + 32 * rr, L_SPB, L_MLB, 2 * rr)
        merge_ml(VW + 32 * rr)
    a("s_mov_b32 s4, 0xaaaaaaaa")
    a("s_mov_b32 s5, 0xaaaaaaaa")
    for i in range(4): a(f"v_cndmask_b32 v{VW+4+i}, v{VW+4+i}, v{VW+32+4+i}, s[4:5]")
    a(f"v_lshrrev_b32 v{VT}, 5, v0")
    a(f"v_and_b32 v{VT+1}, 1, v0")
    a(f"v_lshl_add_u32 v{VT}, v{VT+1}, 1, v{VT}")
    a(f"v_bfe_u32 v{VT+1}, v0, 1, 1")
    a(f"v_lshl_add_u32 v{VT}, v{VT+1}, 2, v{VT}")
    a(f"v_lshlrev_b32 v{VT}, 4, v{VT}")
    stamp(5, HST)
    a("s_barrier")
    if "gp" not in skip:
        for rr in range(2):
            q0 = VW + 32 * rr
            a(f"buffer_store_dwordx4 v[{q0}:{q0+3}], v{V_PERM}, s[{H_WS}:{H_WS+3}], s40 offen {sf_gp}")
            if rr == 0: a("s_add_u32 s40, s40, 8192")
        a("s_mov_b32 exec_lo, 0xf")
        a("s_mov_b32 exec_hi, 0xf")
        a(f"buffer_store_dwordx4 v[{VW+4}:{VW+7}], v{VT}, s[{H_WS}:{H_WS+3}], s41 offen {sf_gp}")
        a("s_mov_b64 exec, -1")
    stamp(6, HST)
    if prepoll and not nob5 and "tail" not in skip:
        NPB = 8; Yb = VW; MLb = VW + 4 * NPB
        a(f"buffer_load_dwordx4 v[{MLb+32}:{MLb+35}], v{VGM}, s[{H_WS}:{H_WS+3}], s43 offen {fl_st2b}")
        a("s_waitcnt vmcnt(0)")
        a(f"v_xor_b32 v{VST}, s{H_T}, v{MLb+33}")
        a(f"v_bitop3_b32 v{VST}, v{VST}, v{MLb+35}, s{H_T} bitop3:0xf6")
        a(f"v_cmp_ne_u32 vcc, 0, v{VST}")
        a("s_mov_b32 s21, 0")
        a("s_cbranch_vccnz L_pre_done")
        a("s_mov_b32 s21, 1")
        for i in range(4): a(f"v_mov_b32 v{MLb+i}, v{MLb+32+i}")
        for p in range(NPB):
            a(f"buffer_load_dwordx4 v[{Yb+4*p}:{Yb+4*p+3}], v{VGP}, s[{H_WS}:{H_WS+3}], s42 offen offset:{p*512} {fl_st2b}")
        a.label("L_pre_done")
    if not nob5:
        a("s_barrier")
        if "tail" in skip: a("s_branch L_hend")
    if not (nob5 and "tail" in skip):
        a.label("L_tail_h1")
        st2(8, L_OBB, "st2b", tailsleep, True)
        a(f"v_lshlrev_b32 v{VT}, 5, v0")
        a("s_nop 6")
        select_batch(VW)
        a(f"ds_write_b128 v{VT}, v[{VW}:{VW+3}] offset:{L_YB}")
        a(f"ds_write_b128 v{VT}, v[{VW+4}:{VW+7}] offset:{L_YB + 16}")
        a("s_waitcnt lgkmcnt(0)")
    stamp(7, HST)
    if "t1" in dry:
        a(f"s_cmp_eq_u32 s{H_DRY}, 1")
        a("s_cbranch_scc1 L_after_dry_h1")
    a("s_barrier")
    a.label("L_hend")
    a("s_waitcnt vmcnt(0)")
    a.label("L_end")
    a("s_endpgm")
    a.label("L_code_end")
    nagpr = 32 * D
    a.raw('.section .rodata,"a"')
    a.raw(".p2align 6")
    a.raw(f".amdhsa_kernel {NAME}_kernel")
    a.raw(f"  .amdhsa_next_free_vgpr {256 + max(nagpr, 64)}")
    a.raw("  .amdhsa_next_free_sgpr 96")
    a.raw("  .amdhsa_accum_offset 256")
    a.raw("  .amdhsa_group_segment_fixed_size 0")
    a.raw("  .amdhsa_kernarg_size 112")
    a.raw("  .amdhsa_user_sgpr_count 2")
    a.raw("  .amdhsa_user_sgpr_kernarg_segment_ptr 1")
    a.raw("  .amdhsa_system_sgpr_workgroup_id_x 1")
    a.raw("  .amdhsa_float_denorm_mode_32 3")
    a.raw(".end_amdhsa_kernel")
    return a.text()

if __name__ == "__main__":
    import json
    kw = json.loads(sys.argv[2]) if len(sys.argv) > 2 else {}
    open(sys.argv[1], "w").write(gen(**kw))
```

```python
import sys

NAME = "gated_mix__mha_block_cached__gqa_block_cached__decode"

EPOCH  = 0x000000
GP_ML  = 0x001000
OA_ML  = 0x009000
QA_G   = 0x011000
QBP_G  = 0x091000
QBF_G  = 0x111000
OA_G   = 0x121000
GP_G   = 0x141000
Y_G    = 0x1C1000
DIAG   = 0x250000
WS_USED = 0x280000

L_QA, L_QB = 0, 256
L_SPA, L_SPB = 2048, 6144
L_MLA, L_MLB = 10240, 10496
L_OBA, L_OBB = 10752, 11264
L_G = 11776
L_YB = 11840
L_QX = 13888
L_F = 15936
LDS_BYTES = 16384

SCALE = 0x3db504f3
LOG2E = 0x3fb8aa3b
SEL_LO, SEL_HI = 0x05040100, 0x07060302
TAGINC = 0x9e3779b9
NEG_INF = 0xff800000
NEG_BIG = 0xf149f2ca

class Asm:
    def __init__(self):
        self.L = []
        self.n = 0
    def __call__(self, s):
        self.L.append("  " + s)
    def label(self, s):
        self.L.append(s + ":")
    def raw(self, s):
        self.L.append(s)
    def uniq(self, p):
        self.n += 1
        return f"{p}_{self.n}"
    def text(self):
        return "\n".join(self.L) + "\n"

P_X, P_AK, P_AV, P_AWQ, P_AWO = 44, 46, 48, 50, 52
P_BK, P_BV, P_BWQ, P_BWO, P_GATE, P_OUT, P_DBG, P_WS = 56, 58, 60, 62, 64, 66, 68, 70

def gen(D=4, N0=16, diag=False, kvflags="nt", maxpoll=1 << 18, b0=True, b0b=True, batch1=None,
        noH=False, nocomp=0, skip=(), mimic=True, tailsleep=1, midsleep=8, qsleep=0,
        hoflags="sc1", stflags="sc1", qaack=False, stag=False, G2=False, touch=False, b0pos=0, early=True, bm=None, itstamp=False, GB=None, h1late=False, nob5=False, b3bit=1, split=True, flags=True, lite=False, codepf=False, outflags="", b0bpos=0, k1early=False, prepoll=False, dry=(), adj=False, rot=0, rotb=None, qpipe=0, b0a=0, fl_qa=None, fl_qbc=None, fl_qbg=None, fl_st2a=None, fl_st2b=None, fl_fin=None, sf_qa=None, sf_qbp=None, sf_qbf=None, sf_gp=None, sf_oa=None, sf_y=None):
    a = Asm()
    W, NH = 2, 2
    NWAVES = W + NH
    TA = 128 // W
    TB = 32 // W
    if batch1 is None: batch1 = max(1, D // 2)
    assert N0 % D == 0 and TB % D == 0 and (TA - N0) % D == 0
    a.raw(f"; @launch grid=(256,1,1) block=({64*NWAVES},1,1) lds={LDS_BYTES}")
    for line in """
 out = g * MHA(x) + (1 - g) * GQA(x), decode step, one fused launch of 256 workgroups (one per CU), 4 waves each.
 Waves 0,1 (S) stream the K/V caches once with non-temporal loads: flash-decode over 32-key tiles. K goes straight
 into the MFMA A layout (AGPR ring), V is transposed with v_perm, scores are rounded to bf16 twice as the reference
 does, the running maximum is the true maximum. Per workgroup: 4096 keys of one MHA (batch, head) pair in two parts
 and, between them, 1024 keys of one GQA (batch, kv head) pair for its 4 query heads.
 Waves 2,3 (H) do the small projections and the hand-offs between workgroups through d_ws:
   qA partials -> gather -> LDS;  qB partials -> combine -> gather -> LDS;  per-pair partial (o, m, l) -> stage 2
   (normalise, gate, multiply with a 64 x 128 piece of wo) -> 64 partial outputs per column -> final sum -> d_out.
 Every hand-off word carries this launch's tag T = E + const, E being the word at d_ws[0] (rewritten by the last
 step of the launch); f32 payloads carry T in their low bytes, which the reader validates and then replaces by a
 fixed byte, so no result depends on T. All polls are bounded.
""".strip("\n").split("\n"): a.raw(";" + line)
    a.raw('.amdgcn_target "amdgcn-amd-amdhsa--gfx950"')
    a.raw(".text")
    a.raw(f".globl {NAME}_kernel")
    a.raw(".p2align 8")
    a.raw(f".type {NAME}_kernel,@function")
    a.label(f"{NAME}_kernel")
    a("s_cmp_ge_u32 s2, 256")
    a("s_cbranch_scc1 L_end")
    a("s_load_dwordx16 s[44:59], s[0:1], 0")
    a("s_load_dwordx8 s[60:67], s[0:1], 64")
    a("s_load_dwordx4 s[68:71], s[0:1], 96")
    if codepf:
        a("s_getpc_b64 s[90:91]")
        a.label("L_pc")
        a(f"s_sub_u32 s90, s90, L_pc-{NAME}_kernel")
        a("s_subb_u32 s91, s91, 0")
        a("s_lshr_b32 s92, s2, 3")
        a("s_lshl_b32 s92, s92, 10")
        a(f"s_cmp_lt_u32 s92, L_code_end-{NAME}_kernel-1024")
        a("s_cbranch_scc0 L_nopf")
        a("v_cmp_gt_u32 vcc, 64, v0")
        a("s_and_saveexec_b64 s[86:87], vcc")
        a("s_cbranch_execz L_pf_restore")
        a("v_lshl_add_u32 v250, v0, 4, s92")
        a("global_load_dwordx4 v[252:255], v250, s[90:91]")
        a.label("L_pf_restore")
        a("s_mov_b64 exec, s[86:87]")
        a.label("L_nopf")
    if diag or lite:
        a("s_memrealtime s[72:73]")
    if diag:
        a("s_memtime s[80:81]")
    a("v_lshrrev_b32 v1, 6, v0")
    a("v_and_b32 v0, 63, v0")
    a("v_and_b32 v3, 15, v0")
    a("v_readfirstlane_b32 s3, v1")
    a("v_lshrrev_b32 v2, 4, v0")
    a("s_waitcnt lgkmcnt(0)")
    if diag:
        a("s_memrealtime s[94:95]")
        a("s_waitcnt lgkmcnt(0)")
    a(f"s_cmp_ge_u32 s3, {W}")
    a("s_cbranch_scc1 L_H")

    def stamp(idx, r0, start=False):
        if not diag: return
        if not start:
            a("s_memrealtime s[74:75]")
            a("s_waitcnt lgkmcnt(0)")
            a(f"v_mov_b32 v{r0}, s74")
        else:
            a(f"v_mov_b32 v{r0}, s72")
        a(f"s_lshl_b32 s76, s2, 2")
        a("s_add_u32 s76, s76, s3")
        a("s_lshl_b32 s76, s76, 6")
        a(f"s_add_u32 s76, s76, {DIAG + idx*4}")
        a(f"v_mov_b32 v{r0+1}, s76")
        a("s_mov_b64 s[78:79], exec")
        a("s_mov_b64 exec, 1")
        a(f"global_store_dword v{r0+1}, v{r0}, s[{P_WS}:{P_WS+1}]")
        a("s_mov_b64 exec, s[78:79]")

    def lds_wait(off, vtmp, vzero, sleep=1, n=1):
        lab = a.uniq("L_spin")
        a.label(lab)
        if n == 1:
            a(f"ds_read_b32 v{vtmp}, v{vzero} offset:{L_F + off}")
            a("s_waitcnt lgkmcnt(0)")
        else:
            a(f"ds_read_b64 v[{vtmp}:{vtmp+1}], v{vzero} offset:{L_F + off}")
            a("s_waitcnt lgkmcnt(0)")
            a(f"v_and_b32 v{vtmp}, v{vtmp}, v{vtmp+1}")
            a("s_nop 0")
        a(f"v_readfirstlane_b32 s4, v{vtmp}")
        done = a.uniq("L_spun")
        a("s_nop 3")
        a("s_cmp_lg_u32 s4, 0")
        a(f"s_cbranch_scc1 {done}")
        if sleep: a(f"s_sleep {sleep}")
        a(f"s_branch {lab}")
        a.label(done)
    def lds_set(off, vone, vzero):
        a(f"ds_write_b32 v{vzero}, v{vone} offset:{L_F + off}")

    S_KC, S_VC = 8, 12
    S_KA, S_VA, S_KB, S_VB = 16, 18, 20, 22
    S_OFF, S_OFF2, S_IT, S_SEG = 24, 25, 26, 27
    S_SCALE, S_L2E, S_SELLO, S_SELHI, S_MASKHI = 28, 29, 30, 31, 32
    S_M4 = 36
    V_KO, V_VO = 4, 5
    V_P, V_ML, V_QA, V_QB = 6, 7, 8, 9
    V_Q = 12
    V_S = 28
    V_PB = 36
    V_ST = 40
    V_O = 48
    V_M, V_L, V_MN, V_AL, V_MLG = 80, 81, 82, 83, 84
    V_T = 86
    V_RING = 96
    SST = 250
    def KR(d): return 32 * d
    def VR(d): return V_RING + 32 * d
    fl = (" " + kvflags) if kvflags else ""

    a(f"; ---------------- S waves ----------------")
    GM = 2 if G2 else 1
    if GB is None: GB = GM
    import math
    LGB = int(math.log2(GB))
    STEP = GM * W * 8192
    STEPB = GB * W * 8192
    S_STEP = 35
    S_W0A, S_W0B = 33, 34
    a("s_and_b32 s4, s2, 127")
    a("s_lshl_b32 s4, s4, 21")
    a("s_lshr_b32 s5, s2, 7")
    if G2:
        a(f"s_lshl_b32 s{S_W0A}, s5, 1")
        a(f"s_add_u32 s{S_W0A}, s{S_W0A}, s3")
        a(f"s_lshl_b32 s{S_W0A}, s{S_W0A}, {13 + (int(math.log2(D)) if adj else 0)}")
    else:
        a("s_lshl_b32 s5, s5, 20")
        a("s_add_u32 s4, s4, s5")
        a(f"s_lshl_b32 s{S_W0A}, s3, 13")
    for (dst, p) in ((S_KC, P_AK), (S_VC, P_AV)):
        a(f"s_add_u32 s{dst}, s{p}, s4")
        a(f"s_addc_u32 s{dst+1}, s{p+1}, 0")
        a(f"s_and_b32 s{dst+1}, s{dst+1}, 0xffff")
        a(f"s_mov_b32 s{dst+2}, {GM << 20}")
        a(f"s_mov_b32 s{dst+3}, 0x20000")
    S_WRAP = 38
    if rotb is None: rotb = rot
    if rot:
        assert G2 and not adj
        a("s_and_b32 s5, s2, 127")
        a(f"s_mul_i32 s5, s5, {rot}")
        a("s_and_b32 s5, s5, 63")
        a(f"s_mul_i32 s5, s5, {STEP}")
        a(f"s_add_u32 s{S_W0A}, s{S_W0A}, s5")
        a(f"s_mov_b32 s{S_WRAP}, {(GM << 20) - 1}")
    a(f"s_mov_b32 s{S_OFF}, s{S_W0A}")
    a(f"s_add_u32 s{S_OFF2}, s{S_OFF}, 4096")
    a(f"v_lshlrev_b32 v{V_KO}, 8, v3")
    a(f"v_lshl_add_u32 v{V_KO}, v2, 4, v{V_KO}")
    a(f"v_lshlrev_b32 v{V_VO}, 10, v2")
    a(f"v_lshl_add_u32 v{V_VO}, v3, 4, v{V_VO}")
    def issueK(d):
        for t in range(8):
            so = S_OFF if t < 4 else S_OFF2
            r = KR(d) + 4 * t
            a(f"buffer_load_dwordx4 a[{r}:{r+3}], v{V_KO}, s[{S_KC}:{S_KC+3}], s{so} offen offset:{(t%4)*64}{fl}")
    def issueV(d):
        for t in range(8):
            so = S_OFF if t < 4 else S_OFF2
            r = VR(d) + 4 * t
            a(f"buffer_load_dwordx4 v[{r}:{r+3}], v{V_VO}, s[{S_VC}:{S_VC+3}], s{so} offen offset:{(t%4)*256}{fl}")
    def stepval(st): return (D * st - (D - 1) * 8192) if adj else st
    a(f"s_mov_b32 s{S_STEP}, {stepval(STEP)}")
    def advance(d=None):
        if adj and d is not None and d < D - 1:
            a(f"s_add_u32 s{S_OFF}, s{S_OFF}, 8192")
            a(f"s_add_u32 s{S_OFF2}, s{S_OFF2}, 8192")
        elif rot:
            a(f"s_add_u32 s{S_OFF}, s{S_OFF}, s{S_STEP}")
            a(f"s_and_b32 s{S_OFF}, s{S_OFF}, s{S_WRAP}")
            a(f"s_add_u32 s{S_OFF2}, s{S_OFF}, 4096")
        else:
            a(f"s_add_u32 s{S_OFF}, s{S_OFF}, s{S_STEP}")
            a(f"s_add_u32 s{S_OFF2}, s{S_OFF2}, s{S_STEP}")
    V_ZERO, V_ONE = 11, 94
    if flags:
        assert b0
        a(f"v_mov_b32 v{V_ZERO}, 0")
        a(f"v_mov_b32 v{V_ONE}, 1")
        a(f"v_mov_b32 v86, 0")
        a(f"v_mov_b32 v87, 0")
        a(f"v_mov_b32 v88, 0")
        a(f"v_mov_b32 v89, 0")
        a(f"ds_write_b128 v{V_ZERO}, v[86:89] offset:{L_F}")
        a("s_waitcnt lgkmcnt(0)")
    if b0: a("s_barrier")
    for d in range(batch1):
        issueK(d); issueV(d); advance(d)
    if k1early: issueK(batch1)
    a(f"s_mov_b32 s{S_KA}, s{S_KC}")
    a(f"s_mov_b32 s{S_KA+1}, s{S_KC+1}")
    a(f"s_mov_b32 s{S_VA}, s{S_VC}")
    a(f"s_mov_b32 s{S_VA+1}, s{S_VC+1}")
    if GB > 1:
        a(f"s_lshr_b32 s5, s2, {LGB}")
        a(f"s_lshl_b32 s5, s5, {18 + LGB}")
        a(f"s_and_b32 s{S_W0B}, s2, {GB - 1}")
        a(f"s_lshl_b32 s{S_W0B}, s{S_W0B}, 1")
        a(f"s_add_u32 s{S_W0B}, s{S_W0B}, s3")
        a(f"s_lshl_b32 s{S_W0B}, s{S_W0B}, {13 + (int(math.log2(D)) if adj else 0)}")
    else:
        a("s_lshl_b32 s5, s2, 18")
        a(f"s_lshl_b32 s{S_W0B}, s3, 13")
    if rot and rotb:
        a(f"s_lshr_b32 s4, s2, {LGB}")
        a(f"s_mul_i32 s4, s4, {rotb}")
        a("s_and_b32 s4, s4, 15")
        a(f"s_mul_i32 s4, s4, {STEPB}")
        a(f"s_add_u32 s{S_W0B}, s{S_W0B}, s4")
    for (dst, p) in ((S_KB, P_BK), (S_VB, P_BV)):
        a(f"s_add_u32 s{dst}, s{p}, s5")
        a(f"s_addc_u32 s{dst+1}, s{p+1}, 0")
        a(f"s_and_b32 s{dst+1}, s{dst+1}, 0xffff")
    def set_issue(kb, vb, size, tile0, w0, step):
        a(f"s_mov_b32 s{S_KC}, s{kb}")
        a(f"s_mov_b32 s{S_KC+1}, s{kb+1}")
        a(f"s_mov_b32 s{S_KC+2}, {size}")
        a(f"s_mov_b32 s{S_VC}, s{vb}")
        a(f"s_mov_b32 s{S_VC+1}, s{vb+1}")
        a(f"s_mov_b32 s{S_VC+2}, {size}")
        a(f"s_mov_b32 s{S_STEP}, {stepval(step)}")
        a(f"s_add_u32 s{S_OFF}, s{w0}, {tile0 * STEP}")
        if rot:
            a(f"s_mov_b32 s{S_WRAP}, {size - 1}")
            a(f"s_and_b32 s{S_OFF}, s{S_OFF}, s{S_WRAP}")
        a(f"s_add_u32 s{S_OFF2}, s{S_OFF}, 4096")
    a(f"s_mov_b32 s{S_SCALE}, {SCALE:#x}")
    a(f"s_mov_b32 s{S_L2E}, {LOG2E:#x}")
    a(f"s_mov_b32 s{S_SELLO}, {SEL_LO:#x}")
    a(f"s_mov_b32 s{S_SELHI}, {SEL_HI:#x}")
    a(f"s_mov_b32 s{S_MASKHI}, 0xffff0000")
    a(f"s_mov_b32 s{S_M4}, 0x000f000f")
    a(f"s_mov_b32 s{S_M4+1}, 0x000f000f")
    a(f"v_and_b32 v10, 3, v3")
    a(f"s_lshl_b32 s4, s3, 11")
    a(f"v_lshlrev_b32 v{V_P}, 9, v10")
    a(f"v_lshl_add_u32 v{V_P}, v2, 4, v{V_P}")
    a(f"v_add_u32 v{V_P}, s4, v{V_P}")
    a(f"s_lshl_b32 s4, s3, 7")
    a(f"v_lshlrev_b32 v{V_ML}, 5, v10")
    a(f"v_lshl_add_u32 v{V_ML}, v2, 2, v{V_ML}")
    a(f"v_add_u32 v{V_ML}, s4, v{V_ML}")
    a(f"v_lshlrev_b32 v{V_QA}, 4, v2")
    a(f"v_lshl_add_u32 v{V_QB}, v10, 8, v{V_QA}")
    def init_state():
        for i in range(32): a(f"v_mov_b32 v{V_O+i}, 0")
        a(f"v_mov_b32 v{V_M}, {NEG_INF:#x}")
        a(f"v_mov_b32 v{V_MLG}, {NEG_INF:#x}")
        a(f"v_mov_b32 v{V_L}, 0")
    def load_q(vaddr, base):
        for s in range(4):
            a(f"ds_read_b128 v[{V_Q+4*s}:{V_Q+4*s+3}], v{vaddr} offset:{base + 64*s}")
    init_state()
    if split: a("s_barrier")
    if b0a: a("s_barrier")
    if b0b: a("s_barrier")
    for d in range(batch1, D):
        if stag:
            a(f"s_waitcnt vmcnt({16 * batch1 - 8})")
        if not (k1early and d == batch1): issueK(d)
        if stag:
            a(f"s_waitcnt vmcnt({16 * batch1 - 8})")
        issueV(d); advance(d)
    stamp(0, SST, start=True)
    a("s_barrier")
    load_q(V_QA, L_QA)
    a(f"s_mov_b32 s{S_SEG}, 0")
    a(f"s_mov_b32 s{S_IT}, {N0 // D}")
    a("s_waitcnt lgkmcnt(0)")
    stamp(1, SST)
    if itstamp:
        a("s_mov_b32 s39, 0")
        a("v_mov_b32 v249, 0")
    a.label("L_sloop")
    if itstamp:
        a("s_memrealtime s[84:85]")
        a("s_waitcnt lgkmcnt(0)")
        a("s_mov_b32 m0, s39")
        a("s_nop 0")
        a("v_writelane_b32 v249, s84, m0")
        a("s_add_u32 s39, s39, 1")
    if bm is not None:
        a(f"s_cmp_eq_u32 s{S_SEG}, 0")
        a("s_cbranch_scc0 L_nobm")
        a(f"s_cmp_eq_u32 s{S_IT}, {bm}")
        a("s_cbranch_scc0 L_nobm")
        if flags: lds_set(4, V_ONE, V_ZERO)
        else: a("s_barrier")
        a.label("L_nobm")
    a(f"s_cmp_eq_u32 s{S_IT}, 1")
    a("s_cbranch_scc0 L_noswitch")
    a(f"s_cmp_eq_u32 s{S_SEG}, 0")
    a("s_cbranch_scc0 L_sw1")
    set_issue(S_KB, S_VB, GB << 18, 0, S_W0B, STEPB)
    a("s_branch L_noswitch")
    a.label("L_sw1")
    a(f"s_cmp_eq_u32 s{S_SEG}, 1")
    a("s_cbranch_scc0 L_sw2")
    set_issue(S_KA, S_VA, GM << 20, N0, S_W0A, STEP)
    a("s_branch L_noswitch")
    a.label("L_sw2")
    a(f"s_mov_b32 s{S_KC+2}, 0")
    a(f"s_mov_b32 s{S_VC+2}, 0")
    if b3bit == 1: a("s_barrier")
    a.label("L_noswitch")
    if b3bit != 1:
        a(f"s_cmp_eq_u32 s{S_SEG}, 2")
        a("s_cbranch_scc0 L_nob3b")
        a(f"s_cmp_eq_u32 s{S_IT}, {b3bit}")
        a("s_cbranch_scc0 L_nob3b")
        a("s_barrier")
        a.label("L_nob3b")
    WAITN = 16 * D - 8
    T = V_T
    for d in range(D):
        a(f"; ---- tile slot {d}")
        a(f"s_waitcnt vmcnt({WAITN})")
        if nocomp:
            issueK(d)
            a(f"s_waitcnt vmcnt({WAITN})")
            issueV(d)
            advance(d)
            continue
        for s in range(4):
            for h in range(2):
                kr = KR(d) + 4 * (4 * h + s)
                c = "0" if s == 0 else f"v[{V_S+4*h}:{V_S+4*h+3}]"
                a(f"v_mfma_f32_16x16x32_bf16 v[{V_S+4*h}:{V_S+4*h+3}], a[{kr}:{kr+3}], v[{V_Q+4*s}:{V_Q+4*s+3}], {c}")
        issueK(d)
        a("s_nop 1")
        S = [V_S + i for i in range(8)]
        if mimic:
            for i in range(4): a(f"v_cvt_pk_bf16_f32 v{T+i}, v{S[2*i]}, v{S[2*i+1]}")
            for i in range(4):
                a(f"v_lshlrev_b32 v{S[2*i]}, 16, v{T+i}")
                a(f"v_and_b32 v{S[2*i+1]}, s{S_MASKHI}, v{T+i}")
            for i in range(8): a(f"v_mul_f32 v{S[i]}, s{S_SCALE}, v{S[i]}")
            for i in range(4): a(f"v_cvt_pk_bf16_f32 v{T+i}, v{S[2*i]}, v{S[2*i+1]}")
            for i in range(4):
                a(f"v_lshlrev_b32 v{S[2*i]}, 16, v{T+i}")
                a(f"v_and_b32 v{S[2*i+1]}, s{S_MASKHI}, v{T+i}")
        else:
            for i in range(8): a(f"v_mul_f32 v{S[i]}, s{S_SCALE}, v{S[i]}")
        a(f"v_max3_f32 v{T}, v{S[0]}, v{S[1]}, v{S[2]}")
        a(f"v_max3_f32 v{T+1}, v{S[3]}, v{S[4]}, v{S[5]}")
        a(f"v_max3_f32 v{T}, v{T}, v{S[6]}, v{S[7]}")
        a(f"v_max_f32 v{T}, v{T}, v{T+1}")
        a(f"v_mov_b32 v{T+1}, v{T}")
        a("s_nop 1")
        a(f"v_permlane32_swap_b32 v{T}, v{T+1}")
        a(f"v_max_f32 v{T}, v{T}, v{T+1}")
        a(f"v_mov_b32 v{T+1}, v{T}")
        a("s_nop 1")
        a(f"v_permlane16_swap_b32 v{T}, v{T+1}")
        a(f"v_max_f32 v{T}, v{T}, v{T+1}")
        a(f"v_max_f32 v{V_MN}, v{V_M}, v{T}")
        a(f"v_cmp_gt_f32 vcc, v{V_MN}, v{V_M}")
        lab = a.uniq("L_nors")
        a(f"s_cbranch_vccz {lab}")
        a(f"v_sub_f32 v{T+1}, v{V_M}, v{V_MN}")
        a(f"v_mul_f32 v{T+1}, s{S_L2E}, v{T+1}")
        a(f"v_exp_f32 v{V_AL}, v{T+1}")
        a(f"v_mov_b32 v{V_M}, v{V_MN}")
        a(f"v_mul_f32 v{V_MLG}, s{S_L2E}, v{V_MN}")
        a(f"v_mul_f32 v{V_L}, v{V_L}, v{V_AL}")
        for i in range(32): a(f"v_mul_f32 v{V_O+i}, v{V_O+i}, v{V_AL}")
        a.label(lab)
        for i in range(8): a(f"v_fma_f32 v{S[i]}, v{S[i]}, s{S_L2E}, -v{V_MLG}")
        for i in range(8): a(f"v_exp_f32 v{S[i]}, v{S[i]}")
        a(f"v_add_f32 v{T}, v{S[0]}, v{S[1]}")
        a(f"v_add_f32 v{T+1}, v{S[2]}, v{S[3]}")
        a(f"v_add_f32 v{T+2}, v{S[4]}, v{S[5]}")
        a(f"v_add_f32 v{T+3}, v{S[6]}, v{S[7]}")
        for i in range(4): a(f"v_cvt_pk_bf16_f32 v{V_PB+i}, v{S[2*i]}, v{S[2*i+1]}")
        a(f"v_add_f32 v{T}, v{T}, v{T+1}")
        a(f"v_add_f32 v{T+2}, v{T+2}, v{T+3}")
        a(f"v_add_f32 v{T}, v{T}, v{T+2}")
        a(f"v_add_f32 v{V_L}, v{V_L}, v{T}")
        a(f"s_waitcnt vmcnt({WAITN})")
        def perms(j):
            st = V_ST + 4 * (j & 1)
            r, hh = j >> 1, j & 1
            sel = S_SELHI if hh else S_SELLO
            for u in range(4):
                lo = VR(d) + 4 * (2 * u) + r
                hi = VR(d) + 4 * (2 * u + 1) + r
                a(f"v_perm_b32 v{st+u}, v{hi}, v{lo}, s{sel}")
        def pv(j):
            st = V_ST + 4 * (j & 1)
            a(f"v_mfma_f32_16x16x32_bf16 v[{V_O+4*j}:{V_O+4*j+3}], v[{st}:{st+3}], v[{V_PB}:{V_PB+3}], v[{V_O+4*j}:{V_O+4*j+3}]")
        perms(0); perms(1)
        for j in range(8):
            if j == 7: a("s_nop 0")
            pv(j)
            if j + 2 < 8: perms(j + 2)
        issueV(d)
        advance(d)
    a(f"s_sub_u32 s{S_IT}, s{S_IT}, 1")
    a(f"s_cmp_lg_u32 s{S_IT}, 0")
    a("s_cbranch_scc1 L_sloop")
    a("s_nop 7")
    a(f"s_cmp_eq_u32 s{S_SEG}, 1")
    a(f"s_cselect_b32 s4, {L_SPB - L_SPA}, 0")
    a(f"s_cselect_b32 s5, {L_MLB - L_MLA}, 0")
    a(f"v_add_u32 v{T}, s4, v{V_P}")
    a(f"v_add_u32 v{T+1}, s5, v{V_ML}")
    a(f"s_mov_b64 exec, s[{S_M4}:{S_M4+1}]")
    for j in range(8):
        a(f"ds_write_b128 v{T}, v[{V_O+4*j}:{V_O+4*j+3}] offset:{L_SPA + 64*j}")
    a(f"ds_write_b32 v{T+1}, v{V_L} offset:{L_MLA}")
    a(f"ds_write_b32 v{T+1}, v{V_M} offset:{L_MLA + 16}")
    a("s_mov_b64 exec, -1")
    a("s_waitcnt lgkmcnt(0)")
    a(f"s_cmp_eq_u32 s{S_SEG}, 0")
    a("s_cbranch_scc0 L_se1")
    stamp(2, SST)
    if flags: lds_wait(0, 86, V_ZERO)
    else: a("s_barrier")
    load_q(V_QB, L_QB)
    init_state()
    a(f"s_mov_b32 s{S_SEG}, 1")
    a(f"s_mov_b32 s{S_IT}, {TB // D}")
    a("s_waitcnt lgkmcnt(0)")
    a("s_branch L_sloop")
    a.label("L_se1")
    a(f"s_cmp_eq_u32 s{S_SEG}, 1")
    a("s_cbranch_scc0 L_se2")
    stamp(3, SST)
    if flags:
        a(f"s_lshl_b32 s4, s3, 2")
        a(f"v_mov_b32 v86, s4")
        lds_set(8, V_ONE, 86)
    else: a("s_barrier")
    load_q(V_QA, L_QA)
    for j in range(8):
        a(f"ds_read_b128 v[{V_O+4*j}:{V_O+4*j+3}], v{V_P} offset:{L_SPA + 64*j}")
    a(f"ds_read_b32 v{V_L}, v{V_ML} offset:{L_MLA}")
    a(f"ds_read_b32 v{V_M}, v{V_ML} offset:{L_MLA + 16}")
    a(f"s_mov_b32 s{S_SEG}, 2")
    a(f"s_mov_b32 s{S_IT}, {(TA - N0) // D}")
    a("s_waitcnt lgkmcnt(0)")
    a(f"v_mul_f32 v{V_MLG}, s{S_L2E}, v{V_M}")
    a("s_branch L_sloop")
    a.label("L_se2")
    if diag:
        a("s_memtime s[82:83]")
        a("s_waitcnt lgkmcnt(0)")
        a("s_sub_u32 s82, s82, s80")
        a("s_memrealtime s[74:75]")
        a("s_waitcnt lgkmcnt(0)")
        a("s_sub_u32 s74, s74, s72")
        a(f"v_mov_b32 v{SST+2}, s82")
        a(f"v_mov_b32 v{SST+3}, s74")
        a("s_lshl_b32 s76, s2, 2")
        a("s_add_u32 s76, s76, s3")
        a("s_lshl_b32 s76, s76, 6")
        a(f"s_add_u32 s76, s76, {DIAG + 5*4}")
        a(f"v_mov_b32 v{SST+4}, s76")
        a("s_mov_b64 exec, 1")
        a(f"global_store_dwordx2 v{SST+4}, v[{SST+2}:{SST+3}], s[{P_WS}:{P_WS+1}]")
        a("s_mov_b64 exec, -1")
    if itstamp:
        a("s_lshl_b32 s76, s2, 1")
        a("s_add_u32 s76, s76, s3")
        a("s_lshl_b32 s76, s76, 8")
        a(f"s_add_u32 s76, s76, {DIAG + 0x10000}")
        a(f"v_lshl_add_u32 v248, v0, 2, s76")
        a(f"global_store_dword v248, v249, s[{P_WS}:{P_WS+1}]")
    stamp(4, SST)
    a("s_barrier")
    a("s_waitcnt vmcnt(0)")
    a("s_endpgm")

    H_WS, H_W, H_X = 8, 12, 16
    H_T = 20
    H_G1, H_G2, H_G3 = 22, 24, 26
    H_SELLO, H_SELHI, H_L2E = 28, 29, 30
    H_SO = 31
    H_CNT = 32
    H_h, H_b = 34, 35
    H_dh, H_cg, H_i2 = 36, 37, 38
    H_MHI = 39
    H_DRY = 95
    H_TB = 84
    H_ST = 88
    VC, VG = 3, 2
    V_L16 = 4
    V_WOFF = 5
    VT = 6
    VX = 8
    V_TV = 16
    V_PERM = 17
    V_GS = 18
    V_B512 = 19
    V_MR = 20
    V_MM = 21
    V_C80 = 1
    HST = 22
    VW = 24
    VST = 152
    VD = 160
    VWQ = 192
    ho = hoflags; sf = stflags
    fl_qa = fl_qa or ho; fl_qbc = fl_qbc or ho; fl_qbg = fl_qbg or ho; fl_st2a = fl_st2a or ho; fl_st2b = fl_st2b or ho; fl_fin = fl_fin or ho
    sf_qa = sf_qa or sf; sf_qbp = sf_qbp or sf; sf_qbf = sf_qbf or sf; sf_gp = sf_gp or sf; sf_oa = sf_oa or sf; sf_y = sf_y or sf

    def srd(dst, p, size):
        a(f"s_mov_b32 s{dst}, s{p}")
        a(f"s_and_b32 s{dst+1}, s{p+1}, 0xffff")
        a(f"s_mov_b32 s{dst+2}, {size}")
        a(f"s_mov_b32 s{dst+3}, 0x20000")

    def check(lab, quads=(), fulltags=(), sleep=0):
        acc, accf = VST, VST + 1
        done = a.uniq("L_ok")
        first = True
        for q in quads:
            for i in range(4):
                if first: a(f"v_xor_b32 v{acc}, s{H_TB+i}, v{q+i}"); first = False
                else: a(f"v_bitop3_b32 v{acc}, v{acc}, v{q+i}, s{H_TB+i} bitop3:0xf6")
        if quads: a(f"v_and_b32 v{acc}, 0xff, v{acc}")
        for r in fulltags:
            if first: a(f"v_xor_b32 v{acc}, s{H_T}, v{r}"); first = False
            else: a(f"v_bitop3_b32 v{acc}, v{acc}, v{r}, s{H_T} bitop3:0xf6")
        a(f"v_cmp_ne_u32 vcc, 0, v{acc}")
        a(f"s_cbranch_vccz {done}")
        if dry:
            a(f"s_cmp_eq_u32 s{H_DRY}, 1")
            a(f"s_cbranch_scc1 {done}")
        a(f"s_sub_u32 s{H_CNT}, s{H_CNT}, 1")
        a(f"s_cmp_eq_u32 s{H_CNT}, 0")
        a(f"s_cbranch_scc1 {done}")
        if sleep: a(f"s_sleep {sleep}")
        a(f"s_branch {lab}")
        a.label(done)

    def tag4(dst, src=None):
        src = [dst + i for i in range(4)] if src is None else src
        for i in range(4):
            a(f"v_perm_b32 v{dst+i}, v{src[i]}, v{V_TV}, s{H_ST+i}")

    def untag(quads):
        for q in quads:
            for i in range(4):
                a(f"v_perm_b32 v{q+i}, v{q+i}, v{V_C80}, s{H_ST}")

    def wt_tile(wbase, areg, first):
        def perms(j):
            st = VST + 4 * (j & 1)
            r, hh = j >> 1, j & 1
            sel = H_SELHI if hh else H_SELLO
            for u in range(4):
                lo = wbase + 4 * (2 * u) + r
                hi = wbase + 4 * (2 * u + 1) + r
                a(f"v_perm_b32 v{st+u}, v{hi}, v{lo}, s{sel}")
        def mm(j):
            st = VST + 4 * (j & 1)
            c = "0" if first else f"v[{VD+4*j}:{VD+4*j+3}]"
            a(f"v_mfma_f32_16x16x32_bf16 v[{VD+4*j}:{VD+4*j+3}], v[{areg}:{areg+3}], v[{st}:{st+3}], {c}")
        perms(0); perms(1)
        for j in range(8):
            if j == 7: a("s_nop 0")
            mm(j)
            if j + 2 < 8: perms(j + 2)

    def select_batch(dst):
        for j in range(8): a(f"v_cndmask_b32 v{dst+j}, v{VD+4*j}, v{VD+4*j+1}, s[{H_G1}:{H_G1+1}]")
        for j in range(8): a(f"v_cndmask_b32 v{dst+j}, v{dst+j}, v{VD+4*j+2}, s[{H_G2}:{H_G2+1}]")
        for j in range(8): a(f"v_cndmask_b32 v{dst+j}, v{dst+j}, v{VD+4*j+3}, s[{H_G3}:{H_G3+1}]")

    def xsum(regs, tmp, sw):
        for i, r in enumerate(regs): a(f"v_mov_b32 v{tmp+i}, v{r}")
        if len(regs) < 3: a("s_nop 1")
        for i, r in enumerate(regs): a(f"v_permlane{sw}_swap_b32 v{r}, v{tmp+i}")
        for i, r in enumerate(regs): a(f"v_add_f32 v{r}, v{r}, v{tmp+i}")

    def read_tag():
        a(f"v_readfirstlane_b32 s{H_T}, v{VT+1}")
        a("s_nop 3")
        a(f"s_add_u32 s{H_T}, s{H_T}, {TAGINC:#x}")
        for i in range(4): a(f"s_bfe_u32 s{H_TB+i}, s{H_T}, {0x80000 + 8*i:#x}")
        a(f"v_mov_b32 v{V_TV}, s{H_T}")

    def qproj_loads(pw):
        srd(H_W, pw, 4 << 20)
        a(f"s_lshr_b32 s6, s2, 5")
        a(f"v_and_b32 v{VT}, 3, v{VC}")
        a(f"v_lshlrev_b32 v{VT}, 10, v{VT}")
        a(f"v_lshl_add_u32 v{VT}, v{VG}, 4, v{VT}")
        a(f"v_lshlrev_b32 v{V_WOFF}, 16, v{VG}")
        a(f"v_lshl_add_u32 v{V_WOFF}, v{VC}, 4, v{V_WOFF}")
        a(f"s_lshl_b32 s7, s6, 7")
        a(f"s_lshl_b32 s{H_SO}, s6, 19")
        a(f"s_lshl_b32 s4, s{H_h}, 8")
        a(f"s_add_u32 s{H_SO}, s{H_SO}, s4")
        a(f"buffer_load_dwordx4 v[{VX}:{VX+3}], v{VT}, s[{H_X}:{H_X+3}], s7 offen nt")
        a(f"buffer_load_dwordx4 v[{VX+4}:{VX+7}], v{VT}, s[{H_X}:{H_X+3}], s7 offen offset:64 nt")
        for tau in range(2):
            for t in range(8):
                r = VW + 32 * tau + 4 * t
                a(f"buffer_load_dwordx4 v[{r}:{r+3}], v{V_WOFF}, s[{H_W}:{H_W+3}], s{H_SO} offen nt")
                if not (tau == 1 and t == 7):
                    step = 8192 if t < 7 else (32 - 7) * 8192
                    a(f"s_add_u32 s{H_SO}, s{H_SO}, {step}")
    def qsplit_loads(hw):
        a("s_cmp_lt_u32 s2, 128")
        a(f"s_cselect_b32 s4, s{P_AWQ}, s{P_BWQ}")
        a(f"s_cselect_b32 s5, s{P_AWQ+1}, s{P_BWQ+1}")
        srd(H_W, 4, 4 << 20)
        a("s_bfe_u32 s6, s2, 0x20005")
        a("s_lshl_b32 s6, s6, 1")
        if hw: a("s_add_u32 s6, s6, 1")
        a(f"v_and_b32 v{VT}, 3, v{VC}")
        a(f"v_lshlrev_b32 v{VT}, 10, v{VT}")
        a(f"v_lshl_add_u32 v{VT}, v{VG}, 4, v{VT}")
        a(f"v_lshlrev_b32 v{V_WOFF}, 16, v{VG}")
        a(f"v_lshl_add_u32 v{V_WOFF}, v{VC}, 4, v{V_WOFF}")
        a(f"s_lshl_b32 s7, s6, 7")
        a(f"s_lshl_b32 s{H_SO}, s6, 19")
        a(f"s_lshl_b32 s4, s{H_h}, 8")
        a(f"s_add_u32 s{H_SO}, s{H_SO}, s4")
        a(f"buffer_load_dwordx4 v[{VX}:{VX+3}], v{VT}, s[{H_X}:{H_X+3}], s7 offen nt")
        a(f"buffer_load_dwordx4 v[{VX+4}:{VX+7}], v{VT}, s[{H_X}:{H_X+3}], s7 offen offset:64 nt")
        for tau in range(2):
            for t in range(8):
                r = VW + 32 * tau + 4 * t
                a(f"buffer_load_dwordx4 v[{r}:{r+3}], v{V_WOFF}, s[{H_W}:{H_W+3}], s{H_SO} offen nt")
                if not (tau == 1 and t == 7):
                    step = 8192 if t < 7 else (32 - 7) * 8192
                    a(f"s_add_u32 s{H_SO}, s{H_SO}, {step}")
    def qsplit_compute():
        a("s_waitcnt vmcnt(8)")
        wt_tile(VW, VX, True)
        a("s_waitcnt vmcnt(0)")
        wt_tile(VW + 32, VX + 4, False)
        read_tag()
        select_batch(VW)
    def qproj_rest(dst, first, publish=True):
        a(f"s_lshl_b32 s7, s{H_h}, 3")
        a("s_add_u32 s7, s7, s6")
        a("s_lshl_b32 s7, s7, 11")
        if dst: a(f"s_add_u32 s7, s7, {dst}")
        a("s_waitcnt vmcnt(8)")
        if diag and first and dst == QA_G:
            a("s_memrealtime s[92:93]")
        wt_tile(VW, VX, True)
        a("s_waitcnt vmcnt(0)")
        wt_tile(VW + 32, VX + 4, False)
        if diag and first and dst == QA_G:
            a("s_waitcnt lgkmcnt(0)")
            a("s_mov_b32 s96, s92") if False else None
        if first: read_tag()
        else: a("s_nop 7")
        select_batch(VW)
        for u in range(2):
            tag4(VW + 4*u)
            if publish:
                a(f"buffer_store_dwordx4 v[{VW+4*u}:{VW+4*u+3}], v{V_B512}, s[{H_WS}:{H_WS+3}], s7 offen offset:{u*256} {sf_qa if dst == QA_G else sf_qbp}")
    def qproj_publish():
        for u in range(2):
            a(f"buffer_store_dwordx4 v[{VW+4*u}:{VW+4*u+3}], v{V_B512}, s[{H_WS}:{H_WS+3}], s7 offen offset:{u*256} {sf_qbp}")

    def merge(q0, sp, ml, r0):
        for w in range(W):
            a(f"ds_read_b128 v[{q0+8+4*w}:{q0+8+4*w+3}], v{V_MR} offset:{sp + w*2048 + r0*512}")
            a(f"ds_read_b128 v[{q0+16+4*w}:{q0+16+4*w+3}], v{V_MM} offset:{ml + w*128 + r0*32}")
            a(f"ds_read_b32 v{q0+24+w}, v{V_MM} offset:{ml + w*128 + r0*32 + 16}")
        a("s_waitcnt lgkmcnt(0)")
        M = q0 + 4; F = q0 + 26; LL = q0 + 6
        a(f"v_max_f32 v{M}, v{q0+24}, v{q0+25}")
        for w in range(W): a(f"v_sub_f32 v{F+w}, v{q0+24+w}, v{M}")
        for w in range(W): a(f"v_mul_f32 v{F+w}, s{H_L2E}, v{F+w}")
        for w in range(W): a(f"v_exp_f32 v{F+w}, v{F+w}")
        for w in range(W):
            l0 = q0 + 16 + 4 * w
            a(f"v_add_f32 v{l0}, v{l0}, v{l0+1}")
            a(f"v_add_f32 v{l0+2}, v{l0+2}, v{l0+3}")
        for i in range(4): a(f"v_mul_f32 v{q0+i}, v{F}, v{q0+8+i}")
        for i in range(4): a(f"v_fmac_f32 v{q0+i}, v{F+1}, v{q0+12+i}")
        tag4(q0)
    def merge_ml(q0):
        M = q0 + 4; F = q0 + 26; LL = q0 + 6
        for w in range(W):
            l0 = q0 + 16 + 4 * w
            a(f"v_add_f32 v{l0}, v{l0}, v{l0+2}")
        a(f"v_mov_b32 v{M+1}, s{H_T}")
        a(f"v_mul_f32 v{LL}, v{F}, v{q0+16}")
        a(f"v_mov_b32 v{M+3}, s{H_T}")
        a(f"v_fmac_f32 v{LL}, v{F+1}, v{q0+20}")

    def perm_addr(headstep):
        a(f"v_bfe_u32 v{VST}, v0, 1, 1")
        a(f"v_lshlrev_b32 v{V_PERM}, 8, v{VST}")
        a(f"v_bfe_u32 v{VST}, v0, 2, 3")
        a(f"v_lshl_add_u32 v{V_PERM}, v{VST}, 5, v{V_PERM}")
        a(f"v_and_b32 v{VST}, 1, v0")
        a(f"v_lshl_add_u32 v{V_PERM}, v{VST}, 4, v{V_PERM}")
        a(f"v_lshrrev_b32 v{VST}, 5, v0")
        a(f"v_and_b32 v{VST+1}, 31, v0")
        a(f"v_lshlrev_b32 v{V_MR}, 4, v{VST+1}")
        if headstep:
            a(f"v_mul_u32_u24 v{VST+1}, {headstep}, v{VST}")
            a(f"v_add_u32 v{V_PERM}, v{V_PERM}, v{VST+1}")
            a(f"v_lshl_add_u32 v{V_MR}, v{VST}, 9, v{V_MR}")
            a(f"v_lshlrev_b32 v{V_MM}, 5, v{VST}")
        else:
            a(f"v_mov_b32 v{V_MM}, 0")

    def wpre_loads(pw, stage):
        srd(H_W, pw, 4 << 20)
        a(f"v_lshlrev_b32 v{V_WOFF}, 10, v{VG}")
        a(f"v_lshl_add_u32 v{V_WOFF}, v{VC}, 4, v{V_WOFF}")
        a(f"s_lshl_b32 s92, s{H_h}, 17")
        a(f"s_lshl_b32 s93, s{H_dh}, 16")
        a("s_add_u32 s92, s92, s93")
        a(f"s_lshl_b32 s93, s{H_cg}, 8")
        a("s_add_u32 s92, s92, s93")
        for tau in range(2):
            for t in range(8):
                r = stage + 32 * tau + 4 * t
                a(f"s_add_u32 s{H_SO}, s92, {(8*t + 4*tau)*1024}")
                a(f"buffer_load_dwordx4 v[{r}:{r+3}], v{V_WOFF}, s[{H_W}:{H_W+3}], s{H_SO} offen nt")
    def wpre_perms(stage, waits=True):
        for tau in range(2):
            if waits: a(f"s_waitcnt vmcnt({8 * (1 - tau)})")
            for j in range(8):
                r, hh = j >> 1, j & 1
                sel = H_SELHI if hh else H_SELLO
                for u in range(4):
                    lo = stage + 32 * tau + 4 * (2 * u) + r
                    hi = stage + 32 * tau + 4 * (2 * u + 1) + r
                    a(f"v_perm_b32 v{VWQ + 32*tau + 4*j + u}, v{hi}, v{lo}, s{sel}")
    def wpre(pw):
        wpre_loads(pw, VW)
        wpre_perms(VW)

    VGP, VGM = VX, VX + 1
    def st2_addr(NP, pbase, mlbase):
        a(f"v_mul_u32_u24 v{VGP}, {32*NP*512}, v{VG}")
        a(f"v_lshl_add_u32 v{VGP}, v{VC}, 4, v{VGP}")
        a(f"v_lshlrev_b32 v{VGM}, 13, v{VG}")
        a(f"v_and_b32 v{VST}, {NP-1}, v{VC}")
        a(f"v_lshl_add_u32 v{VGM}, v{VST}, 7, v{VGM}")
        a(f"s_mul_i32 s42, s{H_h}, {NP*512}")
        a(f"s_lshl_b32 s5, s{H_dh}, 8")
        a("s_add_u32 s42, s42, s5")
        a(f"s_add_u32 s42, s42, {pbase}")
        if NP == 2:
            a(f"s_lshl_b32 s43, s{H_h}, 8")
        else:
            a(f"s_lshr_b32 s43, s{H_h}, 2")
            a("s_lshl_b32 s43, s43, 10")
            a(f"s_and_b32 s5, s{H_h}, 3")
            a("s_lshl_b32 s5, s5, 4")
            a("s_add_u32 s43, s43, s5")
        a(f"s_add_u32 s43, s43, {mlbase}")

    def st2(NP, ob, name, sleep, light):
        Y = VW
        ML = VW + 4 * NP
        ho = fl_st2a if NP == 2 else fl_st2b
        if light and prepoll:
            a("s_cmp_eq_u32 s21, 1")
            a(f"s_cbranch_scc1 L_{name}_have")
        if light:
            lab = f"L_{name}_lp"
            a.label(lab)
            a(f"buffer_load_dwordx4 v[{ML}:{ML+3}], v{VGM}, s[{H_WS}:{H_WS+3}], s43 offen {ho}")
            a("s_waitcnt vmcnt(0)")
            check(lab, fulltags=[ML+1, ML+3], sleep=sleep)
        lab = f"L_{name}_g"
        a.label(lab)
        if not light:
            a(f"buffer_load_dwordx4 v[{ML}:{ML+3}], v{VGM}, s[{H_WS}:{H_WS+3}], s43 offen {ho}")
        for p in range(NP):
            a(f"buffer_load_dwordx4 v[{Y+4*p}:{Y+4*p+3}], v{VGP}, s[{H_WS}:{H_WS+3}], s42 offen offset:{p*512} {ho}")
        if light and prepoll: a.label(f"L_{name}_have")
        a("s_waitcnt vmcnt(0)")
        check(lab, quads=[Y + 4*p for p in range(NP)], fulltags=([] if light else [ML+1, ML+3]), sleep=sleep)
        UNTAG_LATER = [Y + 4*p for p in range(NP)]
        MM, F, LS = VST + 2, VST + 3, VST + 4
        steps = ["quad_perm:[1,0,3,2]"] + (["quad_perm:[2,3,0,1]", "row_half_mirror"] if NP == 8 else [])
        a(f"v_mov_b32 v{MM}, v{ML}")
        pend = [q + i for q in UNTAG_LATER for i in range(4)]
        def fill(n):
            k = 0
            while k < n and pend:
                r = pend.pop(0)
                a(f"v_perm_b32 v{r}, v{r}, v{V_C80}, s{H_ST}"); k += 1
            if k < n: a(f"s_nop {n - k - 1}")
        for st in steps:
            fill(2)
            a(f"v_max_f32_dpp v{MM}, v{MM}, v{MM} {st} row_mask:0xf bank_mask:0xf")
        a(f"v_sub_f32 v{F}, v{ML}, v{MM}")
        a(f"v_mul_f32 v{F}, s{H_L2E}, v{F}")
        a(f"v_exp_f32 v{F}, v{F}")
        a(f"v_lshlrev_b32 v{VT}, 3, v0")
        a(f"v_mul_f32 v{LS}, v{F}, v{ML+2}")
        for st in steps:
            fill(2)
            a(f"v_add_f32_dpp v{LS}, v{LS}, v{LS} {st} row_mask:0xf bank_mask:0xf")
        a(f"v_rcp_f32 v{LS}, v{LS}")
        fill(len(pend)) if pend else None
        a(f"v_mul_f32 v{F}, v{V_GS}, v{F}")
        a(f"v_and_b32 v{VT+1}, 3, v{VC}")
        a(f"v_mul_f32 v{F}, v{F}, v{LS}")
        a(f"v_lshlrev_b32 v{VT+1}, 7, v{VT+1}")
        a(f"v_lshl_add_u32 v{VT+1}, v{VG}, 4, v{VT+1}")
        O = VST + 4
        for i in range(4):
            a(f"v_mul_f32_dpp v{O+i}, v{F}, v{Y+i} row_newbcast:0 row_mask:0xf bank_mask:0xf")
        for p in range(1, NP):
            for i in range(4):
                a(f"v_fmac_f32_dpp v{O+i}, v{F}, v{Y+4*p+i} row_newbcast:{p} row_mask:0xf bank_mask:0xf")
        a(f"v_cvt_pk_bf16_f32 v{O}, v{O}, v{O+1}")
        a(f"v_cvt_pk_bf16_f32 v{O+1}, v{O+2}, v{O+3}")
        a(f"ds_write_b64 v{VT}, v[{O}:{O+1}] offset:{ob}")
        a("s_waitcnt lgkmcnt(0)")
        for tau in range(2):
            a(f"ds_read_b128 v[{VX+4*tau}:{VX+4*tau+3}], v{VT+1} offset:{ob + 64*tau}")
        a("s_waitcnt lgkmcnt(0)")
        for tau in range(2):
            for j in range(8):
                c = "0" if tau == 0 else f"v[{VD+4*j}:{VD+4*j+3}]"
                wr = VWQ + 32 * tau + 4 * j
                a(f"v_mfma_f32_16x16x32_bf16 v[{VD+4*j}:{VD+4*j+3}], v[{VX+4*tau}:{VX+4*tau+3}], v[{wr}:{wr+3}], {c}")

    NB = 4 + (1 if b0 else 0) + (1 if b0b else 0) + 1 + (1 if bm is not None else 0) + (1 if split else 0)
    if flags: NB -= 2 + (1 if bm is not None else 0)
    if b0a: NB += 1
    a.label("L_H")
    a("; ---------------- H waves ----------------")
    if noH:
        if flags:
            for _ in range(NB - 2): a("s_barrier")
            a("v_mov_b32 v10, 0")
            a("v_mov_b32 v11, 1")
            a(f"ds_write_b32 v10, v11 offset:{L_F}")
            a("s_waitcnt lgkmcnt(0)")
            a("s_barrier"); a("s_barrier")
        else:
            for _ in range(NB): a("s_barrier")
        a("s_branch L_end")
    srd(H_WS, P_WS, WS_USED)
    srd(H_X, P_X, 4096)
    a(f"v_mov_b32 v{VT}, {EPOCH:#x}")
    a(f"buffer_load_dword v{VT+1}, v{VT}, s[{H_WS}:{H_WS+3}], 0 offen sc1")
    a(f"s_and_b32 s{H_h}, s2, 31")
    a(f"s_mov_b32 s{H_SELLO}, {SEL_LO:#x}")
    a(f"s_mov_b32 s{H_SELHI}, {SEL_HI:#x}")
    def h_consts():
        a(f"s_mov_b32 s{H_G1}, 0xffff0000")
        a(f"s_mov_b32 s{H_G1+1}, 0")
        a(f"s_mov_b32 s{H_G2}, 0")
        a(f"s_mov_b32 s{H_G2+1}, 0x0000ffff")
        a(f"s_mov_b32 s{H_G3}, 0")
        a(f"s_mov_b32 s{H_G3+1}, 0xffff0000")
        a(f"s_mov_b32 s{H_L2E}, {LOG2E:#x}")
        a(f"s_mov_b32 s{H_MHI}, 0xffff0000")
        a(f"s_mov_b32 s{H_CNT}, {maxpoll}")
        if dry: a(f"s_mov_b32 s{H_DRY}, 0")
        for i in range(4): a(f"s_mov_b32 s{H_ST+i}, {0x07060500 + i:#x}")
        a(f"s_lshr_b32 s{H_b}, s2, 5")
        a(f"s_and_b32 s{H_dh}, s{H_b}, 1")
        a(f"s_and_b32 s{H_b}, s{H_b}, 3")
        a(f"s_lshr_b32 s{H_cg}, s2, 6")
        a(f"s_lshl_b32 s{H_i2}, s{H_h}, 1")
        a(f"s_add_u32 s{H_i2}, s{H_i2}, s{H_dh}")
        a(f"v_lshlrev_b32 v{V_L16}, 4, v0")
        a(f"v_mov_b32 v{V_C80}, 0x80808080")
        a(f"v_lshlrev_b32 v{V_B512}, 9, v{VG}")
        a(f"v_lshl_add_u32 v{V_B512}, v{VC}, 4, v{V_B512}")
    a(f"s_cmp_eq_u32 s3, {W}")
    a("s_cbranch_scc0 L_H1")

    VQB = VW + 16
    if split:
        qsplit_loads(0)
        if b0: a("s_barrier")
        stamp(0, HST, start=True)
        h_consts()
        qsplit_compute()
        a(f"v_lshlrev_b32 v{VT}, 5, v0")
        a("s_barrier")
        a(f"ds_read_b128 v[{VW+8}:{VW+11}], v{VT} offset:{L_QX}")
        a(f"ds_read_b128 v[{VW+12}:{VW+15}], v{VT} offset:{L_QX + 16}")
        a(f"s_lshl_b32 s95, s{H_h}, 2")
        a("s_bfe_u32 s5, s2, 0x20005")
        a("s_add_u32 s95, s95, s5")
        a("s_lshl_b32 s95, s95, 11")
        a(f"s_mov_b32 s4, {QA_G}")
        a("s_cmp_lt_u32 s2, 128")
        a(f"s_cselect_b32 s5, s4, {QBP_G}")
        a("s_add_u32 s95, s95, s5")
        a("s_waitcnt lgkmcnt(0)")
        for i in range(8): a(f"v_add_f32 v{VW+i}, v{VW+i}, v{VW+8+i}")
        for u in range(2): tag4(VQB + 4*u, [VW + 4*u + i for i in range(4)])
        a("s_cmp_lt_u32 s2, 128")
        a("s_cbranch_scc0 L_noqapub")
        for u in range(2):
            a(f"buffer_store_dwordx4 v[{VQB+4*u}:{VQB+4*u+3}], v{V_B512}, s[{H_WS}:{H_WS+3}], s95 offen offset:{u*256} {sf_qa}")
        a.label("L_noqapub")
        stamp(1, HST)
        a(f"v_lshrrev_b32 v{VT}, 5, v0")
        a(f"v_lshlrev_b32 v{VT}, 11, v{VT}")
        a(f"v_and_b32 v{VT+1}, 31, v0")
        a(f"v_lshl_add_u32 v{VT}, v{VT+1}, 4, v{VT}")
        a(f"s_lshl_b32 s4, s{H_h}, 13")
        a(f"s_lshl_b32 s5, s{H_b}, 9")
        a("s_add_u32 s4, s4, s5")
        a(f"s_add_u32 s4, s4, {QA_G}")
        a("s_add_u32 s5, s4, 4096")
        NQ = 2
    else:
        qproj_loads(P_AWQ)
        if b0 and b0pos == 0: a("s_barrier")
        stamp(0, HST, start=True)
        h_consts()
        if b0 and b0pos == 1:
            a("s_waitcnt vmcnt(16)")
            a("s_barrier")
        if b0 and b0pos == 2:
            a("s_waitcnt vmcnt(8)")
            a("s_barrier")
        qproj_rest(QA_G, True)
        stamp(1, HST)
        if diag:
            a("s_mov_b32 s73, s72")
            a("s_mov_b32 s72, s94"); stamp(11, HST, start=True)
            a("s_mov_b32 s72, s92"); stamp(12, HST, start=True)
            a("s_mov_b32 s72, s73")
        a(f"v_lshrrev_b32 v{VT}, 5, v0")
        a(f"v_lshlrev_b32 v{VT}, 11, v{VT}")
        a(f"v_and_b32 v{VT+1}, 31, v0")
        a(f"v_lshl_add_u32 v{VT}, v{VT+1}, 4, v{VT}")
        a(f"s_lshl_b32 s4, s{H_h}, 14")
        a(f"s_lshl_b32 s5, s{H_b}, 9")
        a("s_add_u32 s4, s4, s5")
        if QA_G: a(f"s_add_u32 s4, s4, {QA_G}")
        a("s_add_u32 s5, s4, 4096")
        a("s_add_u32 s6, s4, 8192")
        a("s_add_u32 s7, s4, 12288")
        NQ = 4
    if qaack: a("s_waitcnt vmcnt(0)")
    stamp(9, HST)
    def qa_loads():
        for k in range(NQ):
            a(f"buffer_load_dwordx4 v[{VW+4*k}:{VW+4*k+3}], v{VT}, s[{H_WS}:{H_WS+3}], s{4+k} offen {fl_qa}")
    EARLY = early and "wpre" not in skip
    if b0bpos == 0:
        qa_loads()
        if EARLY: wpre_loads(P_AWO, VW + 32)
        if b0b: a("s_barrier")
        if EARLY: a("s_waitcnt vmcnt(16)")
        else: a("s_waitcnt vmcnt(0)")
        a("s_branch L_qa_first")
        a.label("L_qa_retry")
        qa_loads()
        a("s_waitcnt vmcnt(0)")
        a.label("L_qa_first")
        check("L_qa_retry", quads=[VW + 4*k for k in range(NQ)], sleep=qsleep)
    else:
        if not qpipe and b0a:
            qa_loads()
            a("s_barrier")
            a("s_branch L_qa_first")
            a.label("L_qa_retry")
            qa_loads()
            a.label("L_qa_first")
            a("s_waitcnt vmcnt(0)")
            check("L_qa_retry", quads=[VW + 4*k for k in range(NQ)], sleep=qsleep)
        elif not qpipe:
            a.label("L_qa_retry")
            qa_loads()
            a("s_waitcnt vmcnt(0)")
            check("L_qa_retry", quads=[VW + 4*k for k in range(NQ)], sleep=qsleep)
        else:
            QB2 = VW + 16
            def loads_to(base):
                for k in range(NQ):
                    a(f"buffer_load_dwordx4 v[{base+4*k}:{base+4*k+3}], v{VT}, s[{H_WS}:{H_WS+3}], s{4+k} offen {fl_qa}")
            def valid(base, lab_ok):
                acc = VST
                first = True
                for k in range(NQ):
                    for i in range(4):
                        if first: a(f"v_xor_b32 v{acc}, s{H_TB+i}, v{base+4*k+i}"); first = False
                        else: a(f"v_bitop3_b32 v{acc}, v{acc}, v{base+4*k+i}, s{H_TB+i} bitop3:0xf6")
                a(f"v_and_b32 v{acc}, 0xff, v{acc}")
                a(f"v_cmp_ne_u32 vcc, 0, v{acc}")
                a(f"s_cbranch_vccz {lab_ok}")
            loads_to(VW)
            a("s_waitcnt vmcnt(0)")
            valid(VW, "L_qa_okA")
            loads_to(VW)
            a(f"s_sleep {qpipe}")
            a.label("L_qa_loop")
            loads_to(QB2)
            a(f"s_waitcnt vmcnt({NQ})")
            valid(VW, "L_qa_okA_drain")
            loads_to(VW)
            a(f"s_waitcnt vmcnt({NQ})")
            valid(QB2, "L_qa_okB")
            a(f"s_sub_u32 s{H_CNT}, s{H_CNT}, 1")
            a(f"s_cmp_eq_u32 s{H_CNT}, 0")
            a("s_cbranch_scc0 L_qa_loop")
            QC = VW + 96
            a.label("L_qa_okB")
            for i in range(4 * NQ): a(f"v_perm_b32 v{QC+i}, v{QB2+i}, v{V_C80}, s{H_ST}")
            a("s_branch L_qa_have")
            a.label("L_qa_okA_drain")
            a.label("L_qa_okA")
            for i in range(4 * NQ): a(f"v_perm_b32 v{QC+i}, v{VW+i}, v{V_C80}, s{H_ST}")
            a.label("L_qa_have")
        if b0b and b0bpos in (1, 3): a("s_barrier")
        if EARLY and b0bpos != 3: wpre_loads(P_AWO, VW + 32)
        if b0b and b0bpos == 2: a("s_barrier")
    if diag:
        a(f"s_sub_u32 s72, {maxpoll}, s{H_CNT}")
        stamp(10, HST, start=True)
    QF = (VW + 96) if (qpipe and b0bpos != 0) else VW
    if QF == VW: untag([VW + 4*k for k in range(NQ)])
    if NQ == 4:
        for i in range(4):
            a(f"v_add_f32 v{QF+i}, v{QF+i}, v{QF+4+i}")
            a(f"v_add_f32 v{QF+8+i}, v{QF+8+i}, v{QF+12+i}")
        for i in range(4): a(f"v_add_f32 v{QF+i}, v{QF+i}, v{QF+8+i}")
    else:
        for i in range(4): a(f"v_add_f32 v{QF+i}, v{QF+i}, v{QF+4+i}")
    xsum([QF + i for i in range(4)], QF + 4, "32")
    a(f"v_lshlrev_b32 v{VT}, 4, v{VC}")
    a(f"v_bfe_u32 v{VT+1}, v0, 4, 1")
    a(f"v_lshl_add_u32 v{VT}, v{VT+1}, 3, v{VT}")
    a(f"v_cvt_pk_bf16_f32 v{QF}, v{QF}, v{QF+1}")
    a(f"v_cvt_pk_bf16_f32 v{QF+1}, v{QF+2}, v{QF+3}")
    a(f"ds_write_b64 v{VT}, v[{QF}:{QF+1}] offset:{L_QA}")
    a("s_waitcnt lgkmcnt(0)")
    stamp(2, HST)
    a("s_barrier")
    if split:
        a("s_cmp_lt_u32 s2, 128")
        a("s_cbranch_scc1 L_noqbpub")
        for u in range(2):
            a(f"buffer_store_dwordx4 v[{VQB+4*u}:{VQB+4*u+3}], v{V_B512}, s[{H_WS}:{H_WS+3}], s95 offen offset:{u*256} {sf_qbp}")
        a.label("L_noqbpub")
        if EARLY: a("s_waitcnt vmcnt(0)")
    if EARLY and b0bpos == 3: wpre_loads(P_AWO, VW + 32)
    if EARLY and split: wpre_perms(VW + 32, waits=False)
    elif EARLY: wpre_perms(VW + 32)
    elif "wpre" not in skip: wpre(P_AWO)
    perm_addr(0)
    st2_addr(2, OA_G, OA_ML)
    a("s_lshr_b32 s5, s2, 7")
    a(f"s_lshl_b32 s6, s{H_b}, 5")
    a(f"s_add_u32 s6, s6, s{H_h}")
    a("s_lshl_b32 s6, s6, 1")
    a("s_add_u32 s6, s6, s5")
    a("s_lshl_b32 s40, s6, 9")
    a(f"s_add_u32 s40, s40, {OA_G}")
    a("s_lshl_b32 s41, s6, 7")
    a(f"s_add_u32 s41, s41, {OA_ML}")
    stamp(3, HST)
    if "t0" in dry:
        a(f"s_mov_b32 s{H_DRY}, 1")
        a(f"s_mov_b32 s{H_WS+2}, 0")
        a("s_branch L_tail_h0")
        a.label("L_after_dry_h0")
        a(f"s_mov_b32 s{H_DRY}, 0")
        a(f"s_mov_b32 s{H_WS+2}, {WS_USED}")
        st2_addr(2, OA_G, OA_ML)
    if not flags:
        if bm is not None: a("s_barrier")
        a("s_barrier")
        a(f"v_lshlrev_b32 v{VT}, 3, v{VG}")
        a(f"ds_read_b32 v{V_GS}, v{VT} offset:{L_G}")
        a("s_waitcnt lgkmcnt(0)")
        a("s_barrier")
        a("s_barrier")
    else:
        a("s_barrier")
        a(f"v_lshlrev_b32 v{VT}, 3, v{VG}")
        a(f"ds_read_b32 v{V_GS}, v{VT} offset:{L_G}")
        a("s_waitcnt lgkmcnt(0)")
    a("s_barrier")
    stamp(4, HST)
    if "tail" in skip: a("s_branch L_hend")
    a.label("L_tail_h0")
    merge(VW, L_SPA, L_MLA, 0)
    a("s_mov_b32 exec_hi, 0")
    a(f"buffer_store_dwordx4 v[{VW}:{VW+3}], v{V_PERM}, s[{H_WS}:{H_WS+3}], s40 offen {sf_oa}")
    a("s_mov_b64 exec, -1")
    merge_ml(VW)
    a("s_mov_b64 exec, 0xff")
    a(f"buffer_store_dwordx4 v[{VW+4}:{VW+7}], v{V_L16}, s[{H_WS}:{H_WS+3}], s41 offen {sf_oa}")
    a("s_mov_b64 exec, -1")
    stamp(5, HST)
    st2(2, L_OBA, "st2a", tailsleep, False)
    a(f"s_lshl_b32 s4, s{H_cg}, 6")
    a(f"s_add_u32 s4, s4, s{H_i2}")
    a("s_lshl_b32 s4, s4, 11")
    a(f"s_add_u32 s4, s4, {Y_G}")
    a(f"v_lshlrev_b32 v{VT}, 5, v0")
    stamp(6, HST)
    if not nob5:
        if "t0" in dry:
            a(f"s_cmp_eq_u32 s{H_DRY}, 1")
            a("s_cbranch_scc1 L_nob5_h0")
        a("s_barrier")
        if "t0" in dry: a.label("L_nob5_h0")
    a(f"ds_read_b128 v[{VW+8}:{VW+11}], v{VT} offset:{L_YB}")
    a(f"ds_read_b128 v[{VW+12}:{VW+15}], v{VT} offset:{L_YB + 16}")
    a("s_nop 3")
    select_batch(VW)
    a("s_waitcnt lgkmcnt(0)")
    for u in range(2):
        for i in range(4): a(f"v_add_f32 v{VW+4*u+i}, v{VW+4*u+i}, v{VW+8+4*u+i}")
        tag4(VW + 4*u)
        a(f"buffer_store_dwordx4 v[{VW+4*u}:{VW+4*u+3}], v{V_B512}, s[{H_WS}:{H_WS+3}], s4 offen offset:{u*256} {sf_y}")
    stamp(7, HST)
    a(f"v_lshrrev_b32 v{VT}, 1, v0")
    a(f"v_lshlrev_b32 v{VT}, 11, v{VT}")
    a(f"v_and_b32 v{VT+1}, 1, v0")
    a(f"v_lshl_add_u32 v{VT}, v{VT+1}, 4, v{VT}")
    a("s_bfe_u32 s4, s2, 0x20004")
    a("s_lshl_b32 s4, s4, 17")
    a("s_lshr_b32 s5, s2, 6")
    a("s_lshl_b32 s5, s5, 9")
    a("s_add_u32 s4, s4, s5")
    a("s_bfe_u32 s5, s2, 0x10003")
    a("s_lshl_b32 s5, s5, 8")
    a("s_add_u32 s4, s4, s5")
    a("s_and_b32 s5, s2, 7")
    a("s_lshl_b32 s5, s5, 5")
    a("s_add_u32 s4, s4, s5")
    a(f"s_add_u32 s4, s4, {Y_G}")
    a("s_add_u32 s5, s4, 65536")
    Y = VW + 16
    a.label("L_fin")
    a(f"buffer_load_dwordx4 v[{Y}:{Y+3}], v{VT}, s[{H_WS}:{H_WS+3}], s4 offen {fl_fin}")
    a(f"buffer_load_dwordx4 v[{Y+4}:{Y+7}], v{VT}, s[{H_WS}:{H_WS+3}], s5 offen {fl_fin}")
    a("s_lshr_b32 s6, s2, 6")
    a("s_lshl_b32 s6, s6, 10")
    a("s_bfe_u32 s7, s2, 0x20004")
    a("s_lshl_b32 s7, s7, 8")
    a("s_add_u32 s6, s6, s7")
    a("s_and_b32 s7, s2, 7")
    a("s_lshl_b32 s7, s7, 5")
    a("s_add_u32 s6, s6, s7")
    a("s_bfe_u32 s7, s2, 0x10003")
    a("s_lshl_b32 s7, s7, 3")
    a("s_add_u32 s6, s6, s7")
    srd(H_W, P_OUT, 4096)
    if "t0" in dry:
        a(f"s_cmp_eq_u32 s{H_DRY}, 1")
        a(f"s_cselect_b32 s{H_W+2}, 0, 4096")
    a("s_waitcnt vmcnt(0)")
    check("L_fin", quads=[Y, Y + 4], sleep=tailsleep)
    untag([Y, Y + 4])
    for i in range(4): a(f"v_add_f32 v{Y+i}, v{Y+i}, v{Y+4+i}")
    for st in ("quad_perm:[2,3,0,1]", "row_ror:4", "row_ror:8"):
        for i in range(4): a(f"v_add_f32_dpp v{Y+i}, v{Y+i}, v{Y+i} {st} row_mask:0xf bank_mask:0xf")
    xsum([Y + i for i in range(4)], Y + 4, "16")
    xsum([Y + i for i in range(4)], Y + 4, "32")
    a(f"v_lshlrev_b32 v{VT}, 4, v{VT+1}")
    a(f"v_cvt_pk_bf16_f32 v{Y}, v{Y}, v{Y+1}")
    a(f"v_cvt_pk_bf16_f32 v{Y+1}, v{Y+2}, v{Y+3}")
    a("s_mov_b64 exec, 3")
    a(f"buffer_store_dwordx2 v[{Y}:{Y+1}], v{VT}, s[{H_W}:{H_W+3}], s6 offen {outflags}".rstrip())
    a("s_cmp_eq_u32 s2, 0")
    a("s_cbranch_scc0 L_noep")
    a("s_mov_b64 exec, 1")
    a(f"v_mov_b32 v{VT}, {EPOCH:#x}")
    a(f"buffer_store_dword v{V_TV}, v{VT}, s[{H_WS}:{H_WS+3}], 0 offen sc1")
    a.label("L_noep")
    a("s_mov_b64 exec, -1")
    stamp(8, HST)
    if "t0" in dry:
        a(f"s_cmp_eq_u32 s{H_DRY}, 1")
        a("s_cbranch_scc1 L_after_dry_h0")
    if lite:
        a("s_memrealtime s[74:75]")
        a("s_waitcnt lgkmcnt(0)")
        a(f"v_mov_b32 v{HST}, s72")
        a(f"v_mov_b32 v{HST+1}, s74")
        a("s_lshl_b32 s76, s2, 3")
        a(f"s_add_u32 s76, s76, {DIAG}")
        a(f"v_mov_b32 v{VT}, s76")
        a("s_mov_b64 exec, 1")
        a(f"global_store_dwordx2 v{VT}, v[{HST}:{HST+1}], s[{P_WS}:{P_WS+1}]")
        a("s_mov_b64 exec, -1")
    a("s_branch L_hend")

    a.label("L_H1")
    if touch:
        a(f"v_mov_b32 v{VX}, {Y_G + 0x70000:#x}")
        a(f"buffer_load_dword v{VX+1}, v{VX}, s[{H_WS}:{H_WS+3}], 0 offen nt")
    if split:
        qsplit_loads(1)
        if b0: a("s_barrier")
        stamp(0, HST, start=True)
        h_consts()
        qsplit_compute()
        a(f"v_lshlrev_b32 v{VT}, 5, v0")
        a(f"ds_write_b128 v{VT}, v[{VW}:{VW+3}] offset:{L_QX}")
        a(f"ds_write_b128 v{VT}, v[{VW+4}:{VW+7}] offset:{L_QX + 16}")
        a("s_waitcnt lgkmcnt(0)")
        a("s_barrier")
        if "wpre" not in skip: wpre_loads(P_BWO, VW + 32)
        if b0b: a("s_barrier")
        a("s_barrier")
        stamp(1, HST)
        if "wpre" not in skip:
            a("s_waitcnt vmcnt(0)")
            wpre_perms(VW + 32, waits=False)
    elif early == 2:
        assert b0b and b0bpos >= 1
        if b0: a("s_barrier")
        stamp(0, HST, start=True)
        h_consts()
        a("s_waitcnt vmcnt(0)")
        read_tag()
        if b0a:
            a("s_barrier")
            qproj_loads(P_BWQ)
            if b0a == 2: wpre_loads(P_BWO, VW + 64)
            a("s_barrier")
            if b0a == 1: wpre_loads(P_BWO, VW + 64)
            a("s_barrier")
        else:
            a("s_barrier")
            if b0bpos == 3: a("s_barrier")
            qproj_loads(P_BWQ)
            wpre_loads(P_BWO, VW + 64)
            if b0bpos != 3: a("s_barrier")
        a(f"s_lshl_b32 s7, s{H_h}, 3")
        a("s_add_u32 s7, s7, s6")
        a("s_lshl_b32 s7, s7, 11")
        a(f"s_add_u32 s7, s7, {QBP_G}")
        a("s_waitcnt vmcnt(24)")
        wt_tile(VW, VX, True)
        a("s_waitcnt vmcnt(16)")
        wt_tile(VW + 32, VX + 4, False)
        a("s_nop 7")
        select_batch(VW)
        for u in range(2): tag4(VW + 4*u)
        qproj_publish()
        stamp(1, HST)
        a("s_waitcnt vmcnt(0)")
        wpre_perms(VW + 64, waits=False)
    elif early and "j2" not in skip:
        if not h1late: qproj_loads(P_BWQ)
        if b0: a("s_barrier")
        if h1late: qproj_loads(P_BWQ)
        stamp(0, HST, start=True)
        h_consts()
        qproj_rest(QBP_G, True, publish=False)
        if b0bpos == 0 or not b0b:
            if "wpre" not in skip: wpre_loads(P_BWO, VW + 32)
            if b0b: a("s_barrier")
        else:
            a("s_barrier")
            if "wpre" not in skip and b0bpos != 3: wpre_loads(P_BWO, VW + 32)
        a("s_barrier")
        if "wpre" not in skip and b0bpos == 3 and b0b: wpre_loads(P_BWO, VW + 32)
        qproj_publish()
        stamp(1, HST)
        if "wpre" not in skip:
            a("s_waitcnt vmcnt(2)") if not diag else a("s_waitcnt vmcnt(0)")
            wpre_perms(VW + 32, waits=False)
    else:
        if b0: a("s_barrier")
        stamp(0, HST, start=True)
        h_consts()
        a("s_waitcnt vmcnt(0)")
        read_tag()
        if b0b: a("s_barrier")
        a("s_barrier")
        if "j2" not in skip:
            qproj_loads(P_BWQ)
            qproj_rest(QBP_G, False)
        stamp(1, HST)
        if "wpre" not in skip: wpre(P_BWO)
    srd(H_W, P_GATE, 1024)
    for b in range(4):
        a(f"buffer_load_dwordx4 v[{VW+4*b}:{VW+4*b+3}], v{V_L16}, s[{H_X}:{H_X+3}], 0 offen offset:{b*1024} nt")
    GWR = VW + 16
    a(f"buffer_load_dwordx4 v[{GWR}:{GWR+3}], v{V_L16}, s[{H_W}:{H_W+3}], 0 offen nt")
    a("s_waitcnt vmcnt(0)")
    GW = VW + 20
    for i in range(4):
        a(f"v_lshlrev_b32 v{GW+2*i}, 16, v{GWR+i}")
        a(f"v_and_b32 v{GW+2*i+1}, s{H_MHI}, v{GWR+i}")
    XU = VW + 28
    Z = VW + 36
    for b in range(4):
        for i in range(4):
            a(f"v_lshlrev_b32 v{XU+2*i}, 16, v{VW+4*b+i}")
            a(f"v_and_b32 v{XU+2*i+1}, s{H_MHI}, v{VW+4*b+i}")
        for i in range(8): a(f"v_mul_f32 v{XU+i}, v{XU+i}, v{GW+i}")
        for i in range(4): a(f"v_cvt_pk_bf16_f32 v{VW+4*b+i}, v{XU+2*i}, v{XU+2*i+1}")
        for i in range(4):
            a(f"v_lshlrev_b32 v{XU+2*i}, 16, v{VW+4*b+i}")
            a(f"v_and_b32 v{XU+2*i+1}, s{H_MHI}, v{VW+4*b+i}")
        for i in range(4): a(f"v_add_f32 v{XU+i}, v{XU+i}, v{XU+4+i}")
        a(f"v_add_f32 v{XU}, v{XU}, v{XU+2}")
        a(f"v_add_f32 v{XU+1}, v{XU+1}, v{XU+3}")
        a(f"v_add_f32 v{Z+b}, v{XU}, v{XU+1}")
    for rot in (8, 4, 2, 1):
        a("s_nop 0")
        for b in range(4):
            a(f"v_add_f32_dpp v{Z+b}, v{Z+b}, v{Z+b} row_ror:{rot} row_mask:0xf bank_mask:0xf")
    xsum([Z + b for b in range(4)], Z + 4, "32")
    xsum([Z + b for b in range(4)], Z + 4, "16")
    for b in range(4): a(f"v_cvt_pk_bf16_f32 v{Z+b}, v{Z+b}, v{Z+b}")
    for b in range(4): a(f"v_lshlrev_b32 v{Z+b}, 16, v{Z+b}")
    for b in range(4): a(f"v_mul_f32 v{Z+b}, s{H_L2E}, v{Z+b}")
    for b in range(4): a(f"v_sub_f32 v{Z+b}, 0, v{Z+b}")
    for b in range(4): a(f"v_exp_f32 v{Z+b}, v{Z+b}")
    a("s_nop 0")
    for b in range(4): a(f"v_add_f32 v{Z+b}, 1.0, v{Z+b}")
    for b in range(4): a(f"v_rcp_f32 v{Z+b}, v{Z+b}")
    a("s_nop 0")
    for b in range(4): a(f"v_cvt_pk_bf16_f32 v{Z+b}, v{Z+b}, v{Z+b}")
    GG = Z + 8
    for b in range(4): a(f"v_lshlrev_b32 v{GG+2*b}, 16, v{Z+b}")
    for b in range(4): a(f"v_sub_f32 v{GG+2*b+1}, 1.0, v{GG+2*b}")
    for b in range(4): a(f"v_cvt_pk_bf16_f32 v{GG+2*b+1}, v{GG+2*b+1}, v{GG+2*b+1}")
    for b in range(4): a(f"v_lshlrev_b32 v{GG+2*b+1}, 16, v{GG+2*b+1}")
    a(f"v_mov_b32 v{VT}, 0")
    a("s_mov_b64 exec, 1")
    a(f"ds_write_b128 v{VT}, v[{GG}:{GG+3}] offset:{L_G}")
    a(f"ds_write_b128 v{VT}, v[{GG+4}:{GG+7}] offset:{L_G + 16}")
    a("s_mov_b64 exec, -1")
    a("s_waitcnt lgkmcnt(0)")
    a(f"v_lshlrev_b32 v{VT}, 3, v{VG}")
    a(f"ds_read_b32 v{V_GS}, v{VT} offset:{L_G + 4}")
    stamp(2, HST)
    if "j3" not in skip:
        a(f"v_lshlrev_b32 v{VT}, 11, v{VG}")
        a(f"v_lshl_add_u32 v{VT}, v{VC}, 4, v{VT}")
        a(f"s_lshl_b32 s4, s{H_h}, {13 if split else 14}")
        a(f"s_lshl_b32 s5, s{H_b}, 9")
        a("s_add_u32 s4, s4, s5")
        a("s_lshr_b32 s6, s2, 7")
        a("s_lshl_b32 s5, s6, 8")
        a("s_add_u32 s4, s4, s5")
        a(f"s_add_u32 s4, s4, {QBP_G}")
        a("s_add_u32 s5, s4, 8192")
        a.label("L_qbc")
        a(f"buffer_load_dwordx4 v[{VW}:{VW+3}], v{VT}, s[{H_WS}:{H_WS+3}], s4 offen {fl_qbc}")
        if not split:
            a(f"buffer_load_dwordx4 v[{VW+4}:{VW+7}], v{VT}, s[{H_WS}:{H_WS+3}], s5 offen {fl_qbc}")
        a("s_waitcnt vmcnt(0)")
        check("L_qbc", quads=([VW] if split else [VW, VW + 4]), sleep=midsleep)
        untag([VW] if split else [VW, VW + 4])
        if not split:
            for i in range(4): a(f"v_add_f32 v{VW+i}, v{VW+i}, v{VW+4+i}")
        xsum([VW + i for i in range(4)], VW + 4, "32")
        xsum([VW + i for i in range(4)], VW + 4, "16")
        a(f"v_cvt_pk_bf16_f32 v{VW}, v{VW}, v{VW+1}")
        a(f"v_cvt_pk_bf16_f32 v{VW+2}, v{VW+2}, v{VW+3}")
        a(f"v_mov_b32 v{VW+1}, s{H_T}")
        a(f"v_mov_b32 v{VW+3}, s{H_T}")
        a(f"s_lshl_b32 s4, s{H_h}, 11")
        a(f"s_lshl_b32 s5, s{H_b}, 9")
        a("s_add_u32 s4, s4, s5")
        a("s_lshl_b32 s5, s6, 8")
        a("s_add_u32 s4, s4, s5")
        a(f"s_add_u32 s4, s4, {QBF_G}")
        a("s_mov_b64 exec, 0xffff")
        a(f"buffer_store_dwordx4 v[{VW}:{VW+3}], v{V_L16}, s[{H_WS}:{H_WS+3}], s4 offen {sf_qbf}")
        a("s_mov_b64 exec, -1")
        stamp(3, HST)
        if bm is not None:
            if flags:
                a(f"v_mov_b32 v{VST+2}, 0")
                lds_wait(4, VST, VST + 2, sleep=16)
            else: a("s_barrier")
        a(f"v_lshlrev_b32 v{VT}, 11, v{VG}")
        a(f"v_lshl_add_u32 v{VT}, v{VC}, 4, v{VT}")
        a("s_bfe_u32 s4, s2, 0x30003")
        a("s_lshl_b32 s4, s4, 13")
        a("s_lshr_b32 s5, s2, 6")
        a("s_lshl_b32 s5, s5, 9")
        a("s_add_u32 s4, s4, s5")
        a(f"s_add_u32 s4, s4, {QBF_G}")
        a.label("L_qbg")
        for u in range(2):
            a(f"buffer_load_dwordx4 v[{VW+8+4*u}:{VW+8+4*u+3}], v{VT}, s[{H_WS}:{H_WS+3}], s4 offen offset:{u*256} {fl_qbg}")
        a("s_waitcnt vmcnt(0)")
        check("L_qbg", fulltags=[VW+9, VW+11, VW+13, VW+15], sleep=midsleep)
        a(f"v_lshlrev_b32 v{VT}, 8, v{VG}")
        a(f"v_lshl_add_u32 v{VT}, v{VC}, 4, v{VT}")
        for u in range(2):
            a(f"v_mov_b32 v{VW+8+4*u+1}, v{VW+8+4*u+2}")
            a(f"ds_write_b64 v{VT}, v[{VW+8+4*u}:{VW+8+4*u+1}] offset:{L_QB + 8*u}")
    elif bm is not None and not flags: a("s_barrier")
    a("s_waitcnt lgkmcnt(0)")
    if flags:
        a(f"v_mov_b32 v{VST+2}, 0")
        a(f"v_mov_b32 v{VST+3}, 1")
        lds_set(0, VST + 3, VST + 2)
    perm_addr(4096)
    st2_addr(8, GP_G, GP_ML)
    a("s_lshr_b32 s4, s2, 6")
    a("s_lshl_b32 s4, s4, 8")
    a("s_bfe_u32 s5, s2, 0x30003")
    a("s_lshl_b32 s5, s5, 5")
    a("s_add_u32 s4, s4, s5")
    a("s_and_b32 s5, s2, 7")
    a("s_add_u32 s4, s4, s5")
    a("s_lshl_b32 s40, s4, 9")
    a(f"s_add_u32 s40, s40, {GP_G}")
    a("s_lshl_b32 s41, s2, 7")
    a(f"s_add_u32 s41, s41, {GP_ML}")
    stamp(4, HST)
    if "t1" in dry:
        a(f"s_mov_b32 s{H_DRY}, 1")
        a(f"s_mov_b32 s{H_WS+2}, 0")
        a("s_mov_b32 s21, 0")
        a("s_branch L_tail_h1")
        a.label("L_after_dry_h1")
        a(f"s_mov_b32 s{H_DRY}, 0")
        a(f"s_mov_b32 s{H_WS+2}, {WS_USED}")
        st2_addr(8, GP_G, GP_ML)
    if flags:
        a(f"v_mov_b32 v{VST+2}, 0")
        lds_wait(8, VST, VST + 2, sleep=8, n=2)
    else:
        a("s_barrier")
        a("s_barrier")
    for rr in range(2):
        merge(VW + 32 * rr, L_SPB, L_MLB, 2 * rr)
        merge_ml(VW + 32 * rr)
    a("s_mov_b32 s4, 0xaaaaaaaa")
    a("s_mov_b32 s5, 0xaaaaaaaa")
    for i in range(4): a(f"v_cndmask_b32 v{VW+4+i}, v{VW+4+i}, v{VW+32+4+i}, s[4:5]")
    a(f"v_lshrrev_b32 v{VT}, 5, v0")
    a(f"v_and_b32 v{VT+1}, 1, v0")
    a(f"v_lshl_add_u32 v{VT}, v{VT+1}, 1, v{VT}")
    a(f"v_bfe_u32 v{VT+1}, v0, 1, 1")
    a(f"v_lshl_add_u32 v{VT}, v{VT+1}, 2, v{VT}")
    a(f"v_lshlrev_b32 v{VT}, 4, v{VT}")
    stamp(5, HST)
    a("s_barrier")
    if "gp" not in skip:
        for rr in range(2):
            q0 = VW + 32 * rr
            a(f"buffer_store_dwordx4 v[{q0}:{q0+3}], v{V_PERM}, s[{H_WS}:{H_WS+3}], s40 offen {sf_gp}")
            if rr == 0: a("s_add_u32 s40, s40, 8192")
        a("s_mov_b32 exec_lo, 0xf")
        a("s_mov_b32 exec_hi, 0xf")
        a(f"buffer_store_dwordx4 v[{VW+4}:{VW+7}], v{VT}, s[{H_WS}:{H_WS+3}], s41 offen {sf_gp}")
        a("s_mov_b64 exec, -1")
    stamp(6, HST)
    if prepoll and not nob5 and "tail" not in skip:
        NPB = 8; Yb = VW; MLb = VW + 4 * NPB
        a(f"buffer_load_dwordx4 v[{MLb+32}:{MLb+35}], v{VGM}, s[{H_WS}:{H_WS+3}], s43 offen {fl_st2b}")
        a("s_waitcnt vmcnt(0)")
        a(f"v_xor_b32 v{VST}, s{H_T}, v{MLb+33}")
        a(f"v_bitop3_b32 v{VST}, v{VST}, v{MLb+35}, s{H_T} bitop3:0xf6")
        a(f"v_cmp_ne_u32 vcc, 0, v{VST}")
        a("s_mov_b32 s21, 0")
        a("s_cbranch_vccnz L_pre_done")
        a("s_mov_b32 s21, 1")
        for i in range(4): a(f"v_mov_b32 v{MLb+i}, v{MLb+32+i}")
        for p in range(NPB):
            a(f"buffer_load_dwordx4 v[{Yb+4*p}:{Yb+4*p+3}], v{VGP}, s[{H_WS}:{H_WS+3}], s42 offen offset:{p*512} {fl_st2b}")
        a.label("L_pre_done")
    if not nob5:
        a("s_barrier")
        if "tail" in skip: a("s_branch L_hend")
    if not (nob5 and "tail" in skip):
        a.label("L_tail_h1")
        st2(8, L_OBB, "st2b", tailsleep, True)
        a(f"v_lshlrev_b32 v{VT}, 5, v0")
        a("s_nop 6")
        select_batch(VW)
        a(f"ds_write_b128 v{VT}, v[{VW}:{VW+3}] offset:{L_YB}")
        a(f"ds_write_b128 v{VT}, v[{VW+4}:{VW+7}] offset:{L_YB + 16}")
        a("s_waitcnt lgkmcnt(0)")
    stamp(7, HST)
    if "t1" in dry:
        a(f"s_cmp_eq_u32 s{H_DRY}, 1")
        a("s_cbranch_scc1 L_after_dry_h1")
    a("s_barrier")
    a.label("L_hend")
    a("s_waitcnt vmcnt(0)")
    a.label("L_end")
    a("s_endpgm")
    a.label("L_code_end")
    nagpr = 32 * D
    a.raw('.section .rodata,"a"')
    a.raw(".p2align 6")
    a.raw(f".amdhsa_kernel {NAME}_kernel")
    a.raw(f"  .amdhsa_next_free_vgpr {256 + max(nagpr, 64)}")
    a.raw("  .amdhsa_next_free_sgpr 96")
    a.raw("  .amdhsa_accum_offset 256")
    a.raw("  .amdhsa_group_segment_fixed_size 0")
    a.raw("  .amdhsa_kernarg_size 112")
    a.raw("  .amdhsa_user_sgpr_count 2")
    a.raw("  .amdhsa_user_sgpr_kernarg_segment_ptr 1")
    a.raw("  .amdhsa_system_sgpr_workgroup_id_x 1")
    a.raw("  .amdhsa_float_denorm_mode_32 3")
    a.raw(".end_amdhsa_kernel")
    return a.text()

if __name__ == "__main__":
    import json
    kw = json.loads(sys.argv[2]) if len(sys.argv) > 2 else {}
    open(sys.argv[1], "w").write(gen(**kw))
```
